```python
import torch

def _softmax(x, axis=-1):
    return torch.softmax(x, dim=axis)
def _gelu(x):
    return torch.nn.functional.gelu(x, approximate="tanh")
def _silu(x):
    return torch.nn.functional.silu(x)
def _sigmoid(x):
    return torch.sigmoid(x)
def _layernorm(x, axis=-1, eps=1e-5):
    m = x.mean(dim=axis, keepdim=True)
    v = x.var(dim=axis, keepdim=True, unbiased=False)
    return (x - m) / torch.sqrt(v + eps)
def _scatter_add(tgt, idx, src, axis=0):
    return tgt.clone().index_add_(axis, idx, src)
def _segment_sum(src, seg, n):
    out = torch.zeros((n,) + src.shape[1:], dtype=src.dtype)
    return out.index_add_(0, seg, src)
def _pad(x, pw):
    flat = tuple(v for pair in reversed(pw) for v in pair)
    return torch.nn.functional.pad(x, flat)

kernel_name = 'recurrent_scan__linear_kernel_hedgehog__glu_gated_bilinear__prompt'

def setup_inputs():

    _w = (lambda a: (lambda t: t.to(torch.bfloat16) if t.is_floating_point() else t)(torch.as_tensor(a)))
    def _A_setup():
        B, S, D, H = 1, 2048, 1024, 32
        Dh = D // H
        return {
            "x": _w((lambda *s: torch.randn(*s, dtype=torch.bfloat16) * 0.05)(B, S, D)),
            "wqkv": _w((lambda *s: torch.randn(*s, dtype=torch.bfloat16) * 0.8)(D, 3 * D)),
            "w_phi": _w((lambda *s: torch.randn(*s, dtype=torch.bfloat16) * 0.8)(H, Dh, Dh) * (Dh ** -0.5)),
            "wo": _w((lambda *s: torch.randn(*s, dtype=torch.bfloat16) * 0.8)(D, D)),
        }
    _A_in = _A_setup()

    def _B_setup():
        B, S, D, F = 1, 2048, 1024, 3584
        return {
            "x": _w((lambda *s: torch.randn(*s, dtype=torch.bfloat16) * 0.05)(B, S, D)),
            "w_gate": _w((lambda *s: torch.randn(*s, dtype=torch.bfloat16) * 0.2)(D, F) * (D ** -0.5)),
            "w_up": _w((lambda *s: torch.randn(*s, dtype=torch.bfloat16) * 0.2)(D, F) * (D ** -0.5)),
            "w_down": _w((lambda *s: torch.randn(*s, dtype=torch.bfloat16) * 0.2)(F, D) * (F ** -0.5)),
        }
    _B_in = _B_setup()

    return {
        "A_x": _A_in["x"],
        "A_wqkv": _A_in["wqkv"],
        "A_w_phi": _A_in["w_phi"],
        "A_wo": _A_in["wo"],
        "B_x": _B_in["x"],
        "B_w_gate": _B_in["w_gate"],
        "B_w_up": _B_in["w_up"],
        "B_w_down": _B_in["w_down"],
    }

def reference(A_x, A_wqkv, A_w_phi, A_wo, B_x, B_w_gate, B_w_up, B_w_down):
    def _A_ref(x, wqkv, w_phi, wo):
        B, S, D = x.shape
        H = 32; Dh = D // H
        qkv = (lambda x, *d: x.permute(*d))((x @ wqkv).reshape(B, S, 3, H, Dh), 2, 0, 3, 1, 4)
        q, k, v = qkv[0], qkv[1], qkv[2]
        pq = torch.einsum("bhsd,hdf->bhsf", q, w_phi)
        pk = torch.einsum("bhsd,hdf->bhsf", k, w_phi)
        phi_q = torch.concatenate([_softmax(pq, axis=-1), _softmax(-pq, axis=-1)], axis=-1)
        phi_k = torch.concatenate([_softmax(pk, axis=-1), _softmax(-pk, axis=-1)], axis=-1)
        kv = torch.einsum("bhsf,bhsd->bhfd", phi_k, v)
        z  = torch.einsum("bhsf->bhf", phi_k)
        num = torch.einsum("bhqf,bhfd->bhqd", phi_q, kv)
        den = torch.einsum("bhqf,bhf->bhq", phi_q, z)[..., None] + 1e-6
        o = num / den
        return (lambda x, *d: x.permute(*d))(o, 0, 2, 1, 3).reshape(B, S, D) @ wo

    def _B_ref(x, w_gate, w_up, w_down):
        g = torch.einsum("bsd,df->bsf", x, w_gate)
        u = torch.einsum("bsd,df->bsf", x, w_up)
        h = g * u
        return torch.einsum("bsf,fd->bsd", h, w_down)

    x = A_x
    xn = _layernorm(x, axis=-1)
    s = _A_ref(xn, A_wqkv, A_w_phi, A_wo)
    g = _silu(_B_ref(xn, B_w_gate, B_w_up, B_w_down))
    return x + s * g
```

```python
import re

_REG = re.compile(r'^(-|\|)?([vas])(?:(\d+)|\[(\d+):(\d+)\])\|?$')
TRANS = ('v_exp_f32', 'v_log_f32', 'v_rcp_f32', 'v_rsq_f32', 'v_sqrt_f32', 'v_sin_f32', 'v_cos_f32')


def regs_of(tok):
    tok = tok.strip()
    if tok.startswith('abs(') and tok.endswith(')'):
        tok = tok[4:-1]
    if tok.startswith('-abs(') and tok.endswith(')'):
        tok = tok[5:-1]
    if tok == 'vcc':
        return [('s', 106), ('s', 107)]
    if tok == 'exec':
        return [('s', 126), ('s', 127)]
    if tok == 'm0':
        return [('s', 124)]
    m = _REG.match(tok)
    if not m:
        return []
    k = m.group(2)
    if m.group(3) is not None:
        return [(k, int(m.group(3)))]
    return [(k, i) for i in range(int(m.group(4)), int(m.group(5)) + 1)]


def split_ops(s):
    out, depth, cur = [], 0, ''
    for ch in s:
        if ch in '[(':
            depth += 1
        if ch in '])':
            depth -= 1
        if ch == ',' and depth == 0:
            out.append(cur.strip())
            cur = ''
        else:
            cur += ch
    if cur.strip():
        out.append(cur.strip())
    return out


class Ins:
    __slots__ = ('text', 'op', 'kind', 'wr', 'rd', 'srcc', 'srcab', 'passes', 'stdata', 'lds', 'dpp')


def parse(text):
    t = text.split(';')[0].strip()
    parts = t.split(None, 1)
    op = parts[0]
    rest = parts[1] if len(parts) > 1 else ''
    ops = split_ops(rest)
    mods = ''
    if ops:
        last = ops[-1].split(None, 1)
        ops[-1] = last[0]
        mods = last[1] if len(last) > 1 else ''
    i = Ins()
    i.text, i.op = text, op
    i.wr, i.rd, i.srcc, i.srcab, i.stdata = [], [], [], [], []
    i.passes, i.lds, i.dpp = 0, False, False
    R = [regs_of(o) for o in ops]
    if op.startswith('v_mfma'):
        i.kind = 'mfma'
        i.wr = R[0]
        i.srcab = R[1] + R[2]
        i.srcc = R[3]
        i.rd = i.srcab + i.srcc
        i.passes = 8 if '32x32' in op else 4
    elif op.startswith('v_'):
        i.kind = 'valu'
        i.dpp = ('dpp' in op) or ('quad_perm' in mods) or ('row_' in mods)
        if op.startswith('v_cmp'):
            i.wr = R[0]
            i.rd = sum(R[1:], [])
        elif 'permlane' in op and 'swap' in op:
            i.wr = R[0] + R[1]
            i.rd = R[0] + R[1]
        elif op.startswith(('v_add_co', 'v_sub_co', 'v_addc_co', 'v_subb_co')):
            i.wr = R[0] + R[1]
            i.rd = sum(R[2:], [])
        else:
            i.wr = R[0]
            i.rd = sum(R[1:], [])
            if op.startswith(('v_fmac', 'v_dot2c', 'v_pk_fmac')) or i.dpp:
                i.rd = i.rd + R[0]
    elif op.startswith('ds_'):
        i.kind = 'ds'
        if op.startswith(('ds_read', 'ds_bpermute', 'ds_permute', 'ds_swizzle')):
            i.wr = R[0]
            i.rd = sum(R[1:], [])
        else:
            i.rd = sum(R, [])
    elif op.startswith(('buffer_', 'global_')):
        i.kind = 'vmem'
        allmods = ' ' + mods + ' '
        if op in ('buffer_wbl2', 'buffer_inv'):
            pass
        elif ' lds ' in allmods or 'load_lds' in op:
            i.lds = True
            i.rd = sum(R, []) + [('s', 124)]
        elif '_load' in op:
            i.wr = R[0]
            i.rd = sum(R[1:], [])
        elif op.startswith('buffer_store'):
            i.rd = sum(R, [])
            if 'x4' in op or 'x3' in op:
                i.stdata = R[0]
        elif op.startswith('global_store'):
            i.rd = sum(R, [])
            if 'x4' in op or 'x3' in op:
                i.stdata = R[1]
        else:
            i.rd = sum(R, [])
            if ' sc0 ' in allmods:
                i.wr = R[0]
    elif op.startswith('s_'):
        i.kind = 'salu'
        if op in ('s_nop', 's_waitcnt', 's_barrier', 's_endpgm', 's_setprio', 's_sleep') or op.startswith(('s_cbranch', 's_branch', 's_cmp')):
            i.rd = sum(R, [])
        else:
            i.wr = R[0] if R else []
            i.rd = sum(R[1:], [])
            if 'saveexec' in op:
                i.wr = i.wr + [('s', 126), ('s', 127)]
    else:
        raise ValueError('unknown op ' + text)
    return i


MFMA_D_TO_AB = {4: 8, 8: 12}
MFMA_D_TO_VALU = {4: 8, 8: 12}
MFMA_D_TO_C_OVERLAP = {4: 6, 8: 10}
MFMA_C_WAR = {4: 3, 8: 7}


class Asm:
    def __init__(self):
        self.lines = []
        self.hist = []
        self.nops_added = 0

    def raw(self, s):
        self.lines.append(s)

    def comment(self, s):
        self.lines.append('    ; ' + s)

    def label(self, name):
        self.lines.append(name + ':')

    def reset(self):
        self.hist = []

    def _need(self, i):
        need = 0
        dist = 0
        wr, rd = set(i.wr), set(i.rd)
        isv = i.kind == 'valu'
        for (p, st) in reversed(self.hist):
            if dist >= 20:
                break
            req = 0
            pw = set(p.wr)
            if p.kind == 'valu':
                pv = {r for r in pw if r[0] in 'va'}
                ps = {r for r in pw if r[0] == 's'}
                if i.kind == 'mfma' and pv & rd:
                    req = max(req, 2)
                if isv and i.dpp and pv & rd:
                    req = max(req, 2)
                if isv and 'permlane' in i.op and pv & rd:
                    req = max(req, 2)
                if isv and i.op.startswith(('v_readlane', 'v_readfirstlane')) and pv & rd:
                    req = max(req, 1)
                if p.op.startswith(TRANS) and pv & rd and (i.kind != 'valu' or not i.op.startswith(TRANS)):
                    req = max(req, 1)
                if 'sdwa' in p.op and isv and pv & (rd | wr):
                    req = max(req, 1)
                if ps & rd:
                    if i.kind == 'vmem':
                        req = max(req, 5)
                    elif isv:
                        req = max(req, 4 if i.op.startswith(('v_readlane', 'v_writelane')) else 2)
                    elif i.kind == 'salu':
                        req = max(req, 2)
                if ps & {('s', 126), ('s', 127)}:
                    if i.kind == 'mfma':
                        req = max(req, 4)
                    if isv and (i.dpp or 'permlane' in i.op or 'readlane' in i.op or 'readfirstlane' in i.op):
                        req = max(req, 5)
            elif p.kind == 'mfma':
                if i.kind == 'mfma':
                    if pw & set(i.srcab):
                        req = max(req, MFMA_D_TO_AB[p.passes])
                    if pw & set(i.srcc):
                        if not (list(p.wr) == list(i.srcc) and p.passes == i.passes):
                            req = max(req, MFMA_D_TO_C_OVERLAP[p.passes])
                    elif pw & wr:
                        req = max(req, MFMA_D_TO_C_OVERLAP[p.passes])
                else:
                    if pw & (rd | wr):
                        req = max(req, MFMA_D_TO_VALU[p.passes])
                    if isv and set(p.srcc) & wr:
                        req = max(req, MFMA_C_WAR[p.passes])
            elif p.kind == 'salu':
                if ('s', 124) in pw and i.lds:
                    req = max(req, 1)
            elif p.kind == 'vmem':
                if p.stdata and set(p.stdata) & wr:
                    req = max(req, 2)
            if req > dist:
                need = max(need, req - dist)
            dist += st
        return need

    def __call__(self, text):
        for line in text.split('\n'):
            line = line.strip()
            if not line:
                continue
            if line.startswith(';'):
                self.lines.append('    ' + line)
                continue
            i = parse(line)
            n = self._need(i)
            while n > 0:
                k = min(n, 16)
                self._emit_nop(k)
                self.nops_added += 1
                n -= k
            self.lines.append('    ' + line)
            st = 1
            if i.op == 's_nop':
                st = int(line.split()[1], 0) + 1
            self.hist.append((i, st))
            if len(self.hist) > 64:
                self.hist = self.hist[-40:]

    def _emit_nop(self, k):
        t = 's_nop %d' % (k - 1)
        self.lines.append('    ' + t)
        self.hist.append((parse(t), k))

    def nop(self, k):
        self._emit_nop(k)

    def text(self):
        return '\n'.join(self.lines) + '\n'


def vr(base, n=1, k='v'):
    return '%s%d' % (k, base) if n == 1 else '%s[%d:%d]' % (k, base, base + n - 1)


def ar(base, n=1):
    return vr(base, n, 'a')


def sr(base, n=1):
    return vr(base, n, 's')
```

```python
import sys
import os
sys.path.insert(0, os.path.dirname(os.path.abspath(__file__)))
from asmlib import Asm, vr, ar, sr

NAME = 'recurrent_scan__linear_kernel_hedgehog__glu_gated_bilinear__prompt'

XN_OFF = 0
HO_OFF = 0x400000
HO_RB = 288 * 1024
Q_OFF = 0x1600000
KVP_OFF = 0x1A00000
ZP_OFF = 0x1C00000
WS_USED = 0x1C10000

KA_X, KA_WQKV, KA_WPHI, KA_WO, KA_WG, KA_WU, KA_WD, KA_OUT, KA_DBG, KA_WS = 0, 8, 16, 24, 40, 48, 56, 64, 72, 80
LOG2E = 0x3FB8AA3B
MFMA = 'v_mfma_f32_32x32x16_bf16'


def srd(a, d, lo, hi, nrec):
    a(f's_mov_b32 s{d}, {lo}')
    a(f's_and_b32 s{d+1}, {hi}, 0xffff')
    a(f's_mov_b32 s{d+2}, {nrec}')
    a(f's_mov_b32 s{d+3}, 0x20000')


def srd_off(a, d, lo, hi, off, nrec):
    a(f's_add_u32 s{d}, {lo}, {off}')
    a(f's_addc_u32 s{d+1}, {hi}, 0')
    a(f's_and_b32 s{d+1}, s{d+1}, 0xffff')
    a(f's_mov_b32 s{d+2}, {nrec}')
    a(f's_mov_b32 s{d+3}, 0x20000')


def kernel_head(a, label):
    a.raw('.p2align 8')
    a.raw(f'.globl {label}')
    a.raw(f'.type {label},@function')
    a.label(label)
    a.reset()


def kernel_desc(label, nv, ns, acc):
    return f""".amdhsa_kernel {label}
  .amdhsa_next_free_vgpr {nv}
  .amdhsa_next_free_sgpr {ns}
  .amdhsa_accum_offset {acc}
  .amdhsa_group_segment_fixed_size 0
  .amdhsa_kernarg_size 88
  .amdhsa_user_sgpr_count 2
  .amdhsa_user_sgpr_kernarg_segment_ptr 1
  .amdhsa_system_sgpr_workgroup_id_x 1
  .amdhsa_float_denorm_mode_32 3
.end_amdhsa_kernel
"""


def gen_k0(a):
    L = 'k0_ln_kernel'
    kernel_head(a, L)
    a('s_cmp_ge_u32 s2, 256')
    a(f's_cbranch_scc1 {L}_end')
    a(f's_load_dwordx2 s[4:5], s[0:1], {KA_X}')
    a(f's_load_dwordx2 s[6:7], s[0:1], {KA_WS}')
    a('v_and_b32 v1, 7, v0')
    a('v_lshrrev_b32 v2, 3, v0')
    a('v_lshlrev_b32 v3, 11, v1')
    a('v_lshl_add_u32 v3, v2, 4, v3')
    a('s_lshl_b32 s3, s2, 14')
    a('s_waitcnt lgkmcnt(0)')
    srd(a, 8, 's4', 's5', 0x400000)
    a('buffer_load_dwordx4 v[8:11], v3, s[8:11], s3 offen')
    a('buffer_load_dwordx4 v[12:15], v3, s[8:11], s3 offen offset:1024')
    srd(a, 12, 's6', 's7', 0x400000)
    a('s_lshr_b32 s16, s2, 3')
    a('s_lshl_b32 s16, s16, 17')
    a('s_bfe_u32 s17, s2, 0x10002')
    a('s_lshl_b32 s17, s17, 10')
    a('s_or_b32 s16, s16, s17')
    a('s_and_b32 s17, s2, 3')
    a('s_lshl_b32 s17, s17, 7')
    a('s_or_b32 s16, s16, s17')
    a('s_add_u32 s17, s16, 0x10000')
    a('v_lshrrev_b32 v4, 1, v2')
    a('v_lshlrev_b32 v4, 11, v4')
    a('v_and_b32 v5, 1, v2')
    a('v_lshl_add_u32 v4, v5, 9, v4')
    a('v_lshl_add_u32 v4, v1, 4, v4')
    a('v_lshrrev_b32 v5, 6, v0')
    a('v_lshlrev_b32 v6, 5, v1')
    a('v_lshl_add_u32 v5, v5, 2, v6')
    a('s_mov_b32 s18, 0xffff0000')
    a('s_waitcnt vmcnt(0)')
    X = 16
    for i in range(8):
        a(f'v_lshlrev_b32 v{X+2*i}, 16, v{8+i}')
        a(f'v_and_b32 v{X+2*i+1}, s18, v{8+i}')

    def reduce_all(acc, tmp, ldsoff):
        a(f'v_add_f32_dpp v{acc}, v{acc}, v{acc} row_ror:8 row_mask:0xf bank_mask:0xf')
        a(f'v_mov_b32 v{tmp}, v{acc}')
        a(f'v_permlane16_swap_b32 v{acc}, v{tmp}')
        a(f'v_add_f32 v{acc}, v{acc}, v{tmp}')
        a(f'v_mov_b32 v{tmp}, v{acc}')
        a(f'v_permlane32_swap_b32 v{acc}, v{tmp}')
        a(f'v_add_f32 v{acc}, v{acc}, v{tmp}')
        a('s_mov_b64 exec, 0xff')
        a(f'ds_write_b32 v5, v{acc} offset:{ldsoff}')
        a('s_mov_b64 exec, -1')
        a('s_waitcnt lgkmcnt(0)')
        a('s_barrier')
        a(f'ds_read_b128 v[48:51], v6 offset:{ldsoff}')
        a(f'ds_read_b128 v[52:55], v6 offset:{ldsoff+16}')
        a('s_waitcnt lgkmcnt(0)')
        a('v_pk_add_f32 v[48:49], v[48:49], v[50:51]')
        a('v_pk_add_f32 v[52:53], v[52:53], v[54:55]')
        a('v_pk_add_f32 v[48:49], v[48:49], v[52:53]')
        a(f'v_add_f32 v{acc}, v48, v49')

    a(f'v_pk_add_f32 v[32:33], v[{X}:{X+1}], v[{X+2}:{X+3}]')
    a(f'v_pk_add_f32 v[34:35], v[{X+4}:{X+5}], v[{X+6}:{X+7}]')
    a(f'v_pk_add_f32 v[36:37], v[{X+8}:{X+9}], v[{X+10}:{X+11}]')
    a(f'v_pk_add_f32 v[38:39], v[{X+12}:{X+13}], v[{X+14}:{X+15}]')
    a('v_pk_add_f32 v[32:33], v[32:33], v[34:35]')
    a('v_pk_add_f32 v[36:37], v[36:37], v[38:39]')
    a('v_pk_add_f32 v[32:33], v[32:33], v[36:37]')
    a('v_add_f32 v56, v32, v33')
    reduce_all(56, 57, 0)
    a('v_mul_f32 v56, 0x3a800000, v56')
    for i in range(16):
        a(f'v_sub_f32 v{32+i}, v{X+i}, v56')
    a('v_pk_mul_f32 v[58:59], v[32:33], v[32:33]')
    a('v_pk_mul_f32 v[60:61], v[34:35], v[34:35]')
    for i in range(2, 8):
        d = 58 + 2 * (i & 1)
        a(f'v_pk_fma_f32 v[{d}:{d+1}], v[{32+2*i}:{33+2*i}], v[{32+2*i}:{33+2*i}], v[{d}:{d+1}]')
    a('v_pk_add_f32 v[58:59], v[58:59], v[60:61]')
    a('v_add_f32 v58, v58, v59')
    a('v_cvt_pk_bf16_f32 v62, v56, v56')
    a('v_lshlrev_b32 v62, 16, v62')
    for i in range(16):
        a(f'v_sub_f32 v{32+i}, v{X+i}, v62')
    for i in range(8):
        a(f'v_cvt_pk_bf16_f32 v{8+i}, v{32+2*i}, v{33+2*i}')
    for i in range(8):
        a(f'v_lshlrev_b32 v{X+2*i}, 16, v{8+i}')
        a(f'v_and_b32 v{X+2*i+1}, s18, v{8+i}')
    reduce_all(58, 57, 256)
    a('v_mul_f32 v58, 0x3a800000, v58')
    a('v_cvt_pk_bf16_f32 v58, v58, v58')
    a('v_lshlrev_b32 v58, 16, v58')
    a('v_add_f32 v58, 0x3727c5ac, v58')
    a('v_cvt_pk_bf16_f32 v58, v58, v58')
    a('v_lshlrev_b32 v58, 16, v58')
    a('v_sqrt_f32 v58, v58')
    a('v_cvt_pk_bf16_f32 v58, v58, v58')
    a('v_lshlrev_b32 v58, 16, v58')
    a('v_rcp_f32 v58, v58')
    for i in range(16):
        a(f'v_mul_f32 v{X+i}, v{X+i}, v58')
    for i in range(8):
        a(f'v_cvt_pk_bf16_f32 v{8+i}, v{X+2*i}, v{X+2*i+1}')
    a('buffer_store_dwordx4 v[8:11], v4, s[12:15], s16 offen')
    a('buffer_store_dwordx4 v[12:15], v4, s[12:15], s17 offen')
    a.label(f'{L}_end')
    a('s_endpgm')
    return L, kernel_desc(L, 64, 24, 64), (256, 512, 512)


def softmax_pm(a, blocks, sL, sMask):
    def each(f):
        for b in blocks:
            f(b)
    for i in range(8):
        each(lambda b: a(f"v_cvt_pk_bf16_f32 v{b['T']+i}, v{b['P']+2*i}, v{b['P']+2*i+1}"))
    for i in range(8):
        each(lambda b: (a(f"v_lshlrev_b32 v{b['P']+2*i}, 16, v{b['T']+i}"),
                        a(f"v_and_b32 v{b['P']+2*i+1}, {sMask}, v{b['T']+i}")))
    each(lambda b: (a(f"v_max3_f32 v{b['T']}, v{b['P']}, v{b['P']+1}, v{b['P']+2}"),
                    a(f"v_min3_f32 v{b['T']+1}, v{b['P']}, v{b['P']+1}, v{b['P']+2}")))
    for i in range(3, 15, 2):
        each(lambda b: (a(f"v_max3_f32 v{b['T']}, v{b['T']}, v{b['P']+i}, v{b['P']+i+1}"),
                        a(f"v_min3_f32 v{b['T']+1}, v{b['T']+1}, v{b['P']+i}, v{b['P']+i+1}")))
    each(lambda b: (a(f"v_max_f32 v{b['T']}, v{b['T']}, v{b['P']+15}"),
                    a(f"v_min_f32 v{b['T']+1}, v{b['T']+1}, v{b['P']+15}")))
    each(lambda b: (a(f"v_mov_b32 v{b['T']+2}, v{b['T']}"),
                    a(f"v_mov_b32 v{b['T']+3}, v{b['T']+1}")))
    each(lambda b: (a(f"v_permlane32_swap_b32 v{b['T']}, v{b['T']+2}"),
                    a(f"v_permlane32_swap_b32 v{b['T']+1}, v{b['T']+3}")))
    each(lambda b: (a(f"v_max_f32 v{b['T']}, v{b['T']}, v{b['T']+2}"),
                    a(f"v_min_f32 v{b['T']+1}, v{b['T']+1}, v{b['T']+3}")))
    for i in range(16):
        each(lambda b: (a(f"v_sub_f32 v{b['E']+i}, v{b['T']+1}, v{b['P']+i}"),
                        a(f"v_sub_f32 v{b['P']+i}, v{b['P']+i}, v{b['T']}")))
    for i in range(16):
        each(lambda b: (a(f"v_mul_f32 v{b['E']+i}, {sL}, v{b['E']+i}"),
                        a(f"v_mul_f32 v{b['P']+i}, {sL}, v{b['P']+i}")))
    for i in range(16):
        each(lambda b: (a(f"v_exp_f32 v{b['P']+i}, v{b['P']+i}"),
                        a(f"v_exp_f32 v{b['E']+i}, v{b['E']+i}")))
    each(lambda b: (a(f"v_pk_add_f32 v[{b['T']}:{b['T']+1}], v[{b['P']}:{b['P']+1}], v[{b['P']+2}:{b['P']+3}]"),
                    a(f"v_pk_add_f32 v[{b['T']+2}:{b['T']+3}], v[{b['E']}:{b['E']+1}], v[{b['E']+2}:{b['E']+3}]")))
    for i in range(4, 16, 2):
        each(lambda b: (a(f"v_pk_add_f32 v[{b['T']}:{b['T']+1}], v[{b['T']}:{b['T']+1}], v[{b['P']+i}:{b['P']+i+1}]"),
                        a(f"v_pk_add_f32 v[{b['T']+2}:{b['T']+3}], v[{b['T']+2}:{b['T']+3}], v[{b['E']+i}:{b['E']+i+1}]")))
    each(lambda b: (a(f"v_add_f32 v{b['T']}, v{b['T']}, v{b['T']+1}"),
                    a(f"v_add_f32 v{b['T']+2}, v{b['T']+2}, v{b['T']+3}")))
    each(lambda b: (a(f"v_mov_b32 v{b['T']+1}, v{b['T']}"),
                    a(f"v_mov_b32 v{b['T']+3}, v{b['T']+2}")))
    each(lambda b: (a(f"v_permlane32_swap_b32 v{b['T']}, v{b['T']+1}"),
                    a(f"v_permlane32_swap_b32 v{b['T']+2}, v{b['T']+3}")))
    each(lambda b: (a(f"v_add_f32 v{b['T']}, v{b['T']}, v{b['T']+1}"),
                    a(f"v_add_f32 v{b['T']+2}, v{b['T']+2}, v{b['T']+3}")))
    each(lambda b: (a(f"v_rcp_f32 v{b['T']}, v{b['T']}"),
                    a(f"v_rcp_f32 v{b['T']+2}, v{b['T']+2}")))
    for i in range(0, 16, 2):
        each(lambda b: (a(f"v_pk_mul_f32 v[{b['P']+i}:{b['P']+i+1}], v[{b['P']+i}:{b['P']+i+1}], v[{b['T']}:{b['T']+1}] op_sel_hi:[1,0]"),
                        a(f"v_pk_mul_f32 v[{b['E']+i}:{b['E']+i+1}], v[{b['E']+i}:{b['E']+i+1}], v[{b['T']+2}:{b['T']+3}] op_sel_hi:[1,0]")))
    for i in range(8):
        each(lambda b: (a(f"v_cvt_pk_bf16_f32 v{b['O']+i}, v{b['P']+2*i}, v{b['P']+2*i+1}"),
                        a(f"v_cvt_pk_bf16_f32 v{b['O']+8+i}, v{b['E']+2*i}, v{b['E']+2*i+1}")))


class VmQ:
    def __init__(self):
        self.q = []

    def issue(self, tag):
        self.q.append(tag)

    def need(self, tags):
        last = -1
        for i, t in enumerate(self.q):
            if t in tags:
                last = i
        assert last >= 0, tags
        return len(self.q) - 1 - last


K1_QKV0, K1_G0, K1_U0 = 0, 6144, 6144 + 7168 + 128
K1_STAGE = K1_U0 + 7168
K1_NS = 4
K1_WPHI = K1_STAGE * K1_NS
K1_RED = K1_WPHI + 2048
K1_ZR = K1_RED + 4 * 8192
K1_LDS = K1_ZR + 4 * 512


def gen_k1(a, cfg):
    L = 'k1_gemm1_kernel'
    kernel_head(a, L)
    sA, sB0, sW, sP = 8, 12, 32, 36
    sOff, sStep, sDst = 40, 45, 50
    sAo, sCnt, sWave, sHead, sMt = 55, 56, 57, 58, 59
    vLane, vDma, vA, vGU, vQ = 1, 2, 7, 8, 10
    ACC_V = 32
    aRing, aB, aI, aOnes, aWp = 96, 160, 200, 208, 212

    def acc(rb, j):
        if j < 3:
            return ('a', (j * 2 + rb) * 16)
        return ('v', ACC_V + ((j - 3) * 2 + rb) * 16)

    def accs(rb, j):
        k, b = acc(rb, j)
        return vr(b, 16, k)

    a('s_cmp_ge_u32 s2, 256')
    a(f's_cbranch_scc1 {L}_end')
    a(f's_load_dwordx4 s[60:63], s[0:1], {KA_WQKV}')
    a(f's_load_dwordx4 s[64:67], s[0:1], {KA_WG}')
    a(f's_load_dwordx2 s[68:69], s[0:1], {KA_WS}')
    a('v_lshrrev_b32 v12, 6, v0')
    a(f'v_and_b32 v{vLane}, 63, v0')
    a(f'v_readfirstlane_b32 s{sWave}, v12')
    a('s_and_b32 s70, s2, 7')
    a('s_lshl_b32 s70, s70, 2')
    a('s_bfe_u32 s71, s2, 0x20003')
    a(f's_add_u32 s{sHead}, s70, s71')
    a(f's_lshr_b32 s{sMt}, s2, 5')
    a(f'v_lshlrev_b32 v{vA}, 4, v{vLane}')
    a('s_waitcnt lgkmcnt(0)')
    a(f's_lshl_b32 s70, s{sMt}, 2')
    a(f's_add_u32 s70, s70, s{sWave}')
    a('s_lshl_b32 s70, s70, 17')
    srd_off(a, sA, 's68', 's69', 's70', 131072)
    srd(a, sP, 's62', 's63', 65536)
    a(f's_and_b32 s70, s{sWave}, 1')
    a('s_lshl_b32 s70, s70, 10')
    a(f's_lshl_b32 s71, s{sHead}, 11')
    a('s_add_u32 s71, s71, s70')
    a(f's_add_u32 m0, s70, {K1_WPHI}')
    a(f'buffer_load_dwordx4 v{vA}, s[{sP}:{sP+3}], s71 offen lds')
    a(f's_mul_i32 s72, s{sWave}, 5')
    a(f's_lshl_b32 s80, s{sHead}, 6')
    a(f's_mul_i32 s81, s{sHead}, 224')
    a('s_mov_b32 s84, 4682')
    a(f's_mov_b32 s85, {K1_G0}')
    for t in range(5):
        d = sB0 + 4 * t
        a(f's_add_u32 s73, s72, {t}')
        a('s_cmp_ge_u32 s73, 13')
        a(f's_cselect_b32 s{d}, s66, s64')
        a(f's_cselect_b32 s{d+1}, s67, s65')
        a('s_cselect_b32 s74, 13, 6')
        a(f's_cselect_b32 s75, {K1_U0}, s85')
        a('s_cmp_lt_u32 s73, 6')
        a(f's_cselect_b32 s{d}, s60, s{d}')
        a(f's_cselect_b32 s{d+1}, s61, s{d+1}')
        a('s_cselect_b32 s74, 0, s74')
        a(f's_cselect_b32 s75, {K1_QKV0}, s75')
        a('s_cselect_b32 s76, 5462, s84')
        a('s_cselect_b32 s77, 12, 14')
        a('s_cselect_b32 s79, 1984, 0')
        a('s_cselect_b32 s82, s80, s81')
        a('s_lshl_b32 s78, s77, 9')
        a(f's_lshl_b32 s{d+2}, s78, 10')
        a(f's_and_b32 s{d+1}, s{d+1}, 0xffff')
        a(f's_mov_b32 s{d+3}, 0x20000')
        a('s_sub_u32 s74, s73, s74')
        a(f's_lshl_b32 s{sStep+t}, s78, 5')
        a(f's_mov_b32 s{sOff+t}, 0')
        a('s_lshl_b32 s83, s74, 10')
        a(f's_add_u32 s{sDst+t}, s83, s75')
        a('s_lshl_b32 s83, s74, 6')
        a(f'v_add_u32 v12, s83, v{vLane}')
        a('v_mul_u32_u24 v13, s76, v12')
        a('v_lshrrev_b32 v13, 16, v13')
        a('v_mul_u32_u24 v14, s77, v13')
        a('v_sub_u32 v14, v12, v14')
        a('v_mul_u32_u24 v13, s78, v13')
        a('v_lshl_add_u32 v13, v14, 4, v13')
        a('v_lshrrev_b32 v14, 2, v14')
        a('v_mul_u32_u24 v14, s79, v14')
        a(f'v_add3_u32 v{vDma+t}, v13, v14, s82')
    a(f's_mov_b32 s{sAo}, 0')

    vm = VmQ()

    def dma(t, chunk):
        slot = chunk % K1_NS
        a(f's_add_u32 m0, s{sDst+t}, {slot*K1_STAGE}')
        d = sB0 + 4 * t
        a(f'buffer_load_dwordx4 v{vDma+t}, s[{d}:{d+3}], s{sOff+t} offen lds')
        a(f's_add_u32 s{sOff+t}, s{sOff+t}, s{sStep+t}')
        vm.issue(('B', chunk))

    def aload(step, rb):
        e = step % 8
        off = (step & 1) * 2048 + rb * 1024
        a(f'buffer_load_dwordx4 {ar(aRing+e*8+rb*4, 4)}, v{vA}, s[{sA}:{sA+3}], s{sAo} offen offset:{off}')
        vm.issue(('A', step))
        if (step & 1) and rb == 1:
            a(f's_add_u32 s{sAo}, s{sAo}, 4096')

    def bread(step, j, half):
        chunk = step >> 1
        slot = chunk % K1_NS
        t = step & 1
        hi_set = slot >> 1
        sb = (slot & 1) * K1_STAGE
        if j < 3:
            off = sb + K1_QKV0 + (t * 16 + 4 * half) * 192 + 64 * j
            addr = vQ + hi_set
        else:
            off = sb + K1_G0 + (t * 16 + 4 * half) * 224 + 32 * (j - 3)
            addr = vGU + hi_set
        a(f'ds_read_b64_tr_b16 {ar(aB+4*j+2*half, 2)}, v{addr} offset:{off}')

    for s in range(-7, -1):
        if s & 1:
            for t in range(5):
                dma(t, (s + 7) // 2)
        else:
            for st in (s + 6, s + 7):
                for rb in range(2):
                    aload(st, rb)
    a(f'v_lshrrev_b32 v12, 5, v{vLane}')
    a(f'v_bfe_u32 v13, v{vLane}, 2, 2')
    a('v_lshl_add_u32 v12, v12, 3, v13')
    a(f'v_bfe_u32 v13, v{vLane}, 4, 1')
    a(f'v_and_b32 v14, 3, v{vLane}')
    a('v_mul_u32_u24 v15, 224, v12')
    a(f'v_mul_u32_u24 v16, {K1_U0-K1_G0}, v13')
    a('v_lshl_add_u32 v15, v14, 3, v15')
    a(f'v_add_u32 v{vGU}, v15, v16')
    a(f'v_add_u32 v{vGU+1}, {2*K1_STAGE}, v{vGU}')
    a('v_mul_u32_u24 v15, 192, v12')
    a('v_lshl_add_u32 v15, v13, 5, v15')
    a(f'v_lshl_add_u32 v{vQ}, v14, 3, v15')
    a(f'v_add_u32 v{vQ+1}, {2*K1_STAGE}, v{vQ}')
    a(f'v_and_b32 v12, 31, v{vLane}')
    a(f'v_lshrrev_b32 v13, 5, v{vLane}')
    a('v_lshlrev_b32 v13, 2, v13')
    a('v_sub_u32 v12, v12, v13')
    a('v_mov_b32 v14, 0x3f80')
    a('v_mov_b32 v15, 0x3f800000')
    for t in range(2):
        for rho in range(4):
            c = 16 * t + 8 * (rho >> 1) + 2 * (rho & 1)
            a(f'v_cmp_eq_u32 vcc, {c}, v12')
            a('v_cndmask_b32 v16, 0, v14, vcc')
            a(f'v_cmp_eq_u32 vcc, {c+1}, v12')
            a('v_cndmask_b32 v16, v16, v15, vcc')
            a(f'v_accvgpr_write_b32 a{aI+4*t+rho}, v16')
    a('v_mov_b32 v16, 0x3f803f80')
    for i in range(4):
        a(f'v_accvgpr_write_b32 a{aOnes+i}, v16')
    for i in range(96):
        a(f'v_accvgpr_write_b32 a{i}, 0')
    for i in range(ACC_V, 256):
        a(f'v_mov_b32 v{i}, 0')
    a(f's_waitcnt vmcnt({vm.need([("B", 0)])})')
    a('s_barrier')
    for j in range(10):
        bread(0, j, 0)
        bread(0, j, 1)
    for t in range(5):
        dma(t, 3)
    a(f's_mov_b32 s{sCnt}, 0')

    waits = {}

    def step(s, emit=True):
        odd = s & 1
        e = s % 8
        for m in range(20):
            j, rb = m >> 1, m & 1
            if m == 0 and not odd:
                n = vm.need([('A', s), ('A', s + 1)])
                waits[(s % 8, 'A')] = waits.get((s % 8, 'A'), []) + [n]
                a(f's_waitcnt vmcnt({n}) lgkmcnt(10)')
            if m == 10 and not odd:
                a('s_waitcnt lgkmcnt(6)')
            xf = ar(aRing + e * 8 + rb * 4, 4)
            wf = ar(aB + 4 * j, 4)
            if j == 2:
                a(f'{MFMA} {accs(rb, j)}, {xf}, {wf}, {accs(rb, j)}')
            else:
                a(f'{MFMA} {accs(rb, j)}, {wf}, {xf}, {accs(rb, j)}')
            if odd:
                p = (s + 1) // 2
                if m == 3:
                    n = vm.need([('B', p)])
                    waits[(s % 8, 'B')] = waits.get((s % 8, 'B'), []) + [n]
                    a(f's_waitcnt vmcnt({n}) lgkmcnt(0)')
                    a('s_barrier')
                    bread(s + 1, 0, 0)
                    bread(s + 1, 0, 1)
                elif m == 4:
                    bread(s + 1, 1, 0)
                    bread(s + 1, 1, 1)
                elif m > 4 and rb == 1:
                    bread(s + 1, j, 0)
                    bread(s + 1, j, 1)
                elif m in (6, 8, 10, 12, 14):
                    dma((m - 6) // 2, p + 3)
            else:
                if rb == 1:
                    bread(s + 1, j, 0)
                    bread(s + 1, j, 1)
                elif m in (2, 6, 12, 16):
                    k = (2, 6, 12, 16).index(m)
                    aload(s + 6 + (k >> 1), k & 1)

    a.raw('.p2align 6')
    a.label(f'{L}_loop')
    for s in range(8):
        step(s)
    a(f's_add_u32 s{sCnt}, s{sCnt}, 1')
    a(f's_cmp_lt_u32 s{sCnt}, 8')
    a(f's_cbranch_scc1 {L}_loop')
    saved_lines, saved_hist = a.lines, a.hist
    a.lines = []
    for s in range(8, 16):
        step(s)
    a.lines, a.hist = saved_lines, saved_hist
    for k, v in waits.items():
        assert v[0] <= v[1], (k, v)

    a.nop(16)
    srd(a, sW, 's68', 's69', WS_USED)
    a(f'v_lshrrev_b32 v12, 5, v{vLane}')
    a(f'v_bfe_u32 v13, v{vLane}, 2, 2')
    a('v_lshl_add_u32 v12, v12, 2, v13')
    a('v_lshlrev_b32 v12, 6, v12')
    a(f'v_bfe_u32 v13, v{vLane}, 4, 1')
    a('v_lshl_add_u32 v12, v13, 5, v12')
    a(f'v_and_b32 v13, 3, v{vLane}')
    a('v_lshl_add_u32 v12, v13, 3, v12')
    a(f'v_add_u32 v12, {K1_WPHI}, v12')
    for t in range(2):
        for h in range(2):
            a(f'ds_read_b64_tr_b16 {ar(aWp+4*t+2*h, 2)}, v12 offset:{(16*t+8*h)*64}')
    a(f's_lshl_b32 s70, s{sMt}, 3')
    a(f's_lshl_b32 s71, s{sWave}, 1')
    a('s_add_u32 s70, s70, s71')
    a(f's_mul_i32 s71, s70, {HO_RB}')
    a(f's_mul_i32 s72, s{sHead}, {7*1024}')
    a('s_add_u32 s71, s71, s72')
    a(f's_add_u32 s71, s71, {HO_OFF}')
    a('s_add_u32 s72, s71, 4096')
    a(f's_add_u32 s73, s71, {HO_RB}')
    a(f's_add_u32 s74, s72, {HO_RB}')
    for j in range(3, 10):
        for rb in range(2):
            G = acc(rb, j)[1]
            for i in range(0, 8, 2):
                a(f'v_pk_mul_f32 v[{G+i}:{G+i+1}], v[{G+i}:{G+i+1}], v[{G+8+i}:{G+9+i}]')
            for i in range(4):
                a(f'v_cvt_pk_bf16_f32 v{G+i}, v{G+2*i}, v{G+2*i+1}')
            jj = j - 3
            so = 71 + 2 * rb + (jj >> 2)
            a(f'buffer_store_dwordx4 v[{G}:{G+3}], v{vA}, s[{sW}:{sW+3}], s{so} offen offset:{(jj&3)*1024}')
    a('s_lshl_b32 s71, s70, 16')
    a(f's_lshl_b32 s72, s{sHead}, 11')
    a('s_add_u32 s71, s71, s72')
    a(f's_add_u32 s71, s71, {Q_OFF}')
    a('s_add_u32 s72, s71, 65536')
    a(f's_mov_b32 s75, {LOG2E}')
    a('s_mov_b32 s76, 0xffff0000')

    def base(rb):
        return 32 + rb * 96
    KVp, KVm, Zp, Zm = 224, 240, 0, 16

    def rd_cvt(src_a, tmp, dst):
        for i in range(16):
            a(f'v_accvgpr_read_b32 v{tmp+i}, a{src_a+i}')
        for i in range(8):
            a(f'v_cvt_pk_bf16_f32 v{dst+i}, v{tmp+2*i}, v{tmp+2*i+1}')

    for rb in range(2):
        b = base(rb)
        rd_cvt(acc(rb, 1)[1], b + 16, b + 32)
    a('s_waitcnt lgkmcnt(0)')
    for rb in range(2):
        b = base(rb)
        a(f'{MFMA} {vr(b,16)}, {ar(aWp,4)}, {vr(b+32,4)}, 0')
    for rb in range(2):
        b = base(rb)
        a(f'{MFMA} {vr(b,16)}, {ar(aWp+4,4)}, {vr(b+36,4)}, {vr(b,16)}')
    for rb in range(2):
        b = base(rb)
        rd_cvt(acc(rb, 0)[1], b + 16, b + 40)
        a(f'buffer_store_dwordx4 {vr(b+40,4)}, v{vA}, s[{sW}:{sW+3}], s{71+rb} offen')
        a(f'buffer_store_dwordx4 {vr(b+44,4)}, v{vA}, s[{sW}:{sW+3}], s{71+rb} offen offset:1024')
    for rb in range(2):
        b = base(rb)
        rd_cvt(acc(rb, 2)[1], b + 16, b + 80)
    softmax_pm(a, [dict(P=base(rb), E=base(rb) + 16, T=base(rb) + 32, O=base(rb) + 48) for rb in range(2)], 's75', 's76')
    for t in range(2):
        for rb in range(2):
            b = base(rb)
            for pm in range(2):
                d = vr(b + 16 * pm, 16)
                a(f'{MFMA} {d}, {vr(b+48+8*pm+4*t,4)}, {ar(aI+4*t,4)}, {d if t else 0}')
    for rb in range(2):
        b = base(rb)
        for pm in range(2):
            for i in range(8):
                a(f'v_cvt_pk_bf16_f32 v{b+64+8*pm+i}, v{b+16*pm+2*i}, v{b+16*pm+2*i+1}')
    first = True
    for rb in range(2):
        b = base(rb)
        for t in range(2):
            for pm in range(2):
                d = vr(KVm if pm else KVp, 16)
                a(f'{MFMA} {d}, {vr(b+64+8*pm+4*t,4)}, {vr(b+80+4*t,4)}, {0 if first else d}')
            for pm in range(2):
                d = ar(Zm if pm else Zp, 16)
                a(f'{MFMA} {d}, {ar(aOnes,4)}, {vr(b+64+8*pm+4*t,4)}, {0 if first else d}')
            first = False
    a(f's_lshl_b32 s70, s{sWave}, 13')
    a(f's_add_u32 s70, s70, {K1_RED}')
    a(f'v_add_u32 v12, s70, v{vA}')
    a(f's_lshl_b32 s70, s{sWave}, 9')
    a(f's_add_u32 s70, s70, {K1_ZR}')
    a(f'v_lshlrev_b32 v13, 2, v{vLane}')
    a('v_add_u32 v14, s70, v13')
    for q in range(8):
        a(f'ds_write_b128 v12, {vr(KVp+4*q,4)} offset:{q*1024}')
    a(f'ds_write_b32 v14, a{Zp}')
    a(f'ds_write_b32 v14, a{Zm} offset:256')
    a(f's_lshl_b32 s70, s{sWave}, 11')
    a(f's_add_u32 s70, s70, {K1_RED}')
    a(f'v_add_u32 v12, s70, v{vA}')
    a(f'v_lshrrev_b32 v14, 5, v{vLane}')
    a('v_lshlrev_b32 v14, 8, v14')
    a(f'v_and_b32 v15, 31, v{vLane}')
    a('v_lshl_add_u32 v14, v15, 2, v14')
    a(f'v_add_u32 v14, {K1_ZR}, v14')
    a(f's_lshl_b32 s70, s{sHead}, 3')
    a(f's_add_u32 s70, s70, s{sMt}')
    a('s_lshl_b32 s71, s70, 13')
    a(f's_lshl_b32 s72, s{sWave}, 11')
    a('s_add_u32 s71, s71, s72')
    a(f's_add_u32 s71, s71, {KVP_OFF}')
    a('s_lshl_b32 s72, s70, 8')
    a(f's_add_u32 s72, s72, {ZP_OFF}')
    a('s_waitcnt lgkmcnt(0)')
    a('s_barrier')
    for w in range(4):
        for q in range(2):
            a(f'ds_read_b128 {vr(32+w*8+q*4,4)}, v12 offset:{w*8192+q*1024}')
    for w in range(4):
        a(f'ds_read_b32 v{64+w}, v14 offset:{w*512}')
    a('s_waitcnt lgkmcnt(0)')
    for i in range(0, 8, 2):
        a(f'v_pk_add_f32 v[{32+i}:{33+i}], v[{32+i}:{33+i}], v[{40+i}:{41+i}]')
        a(f'v_pk_add_f32 v[{48+i}:{49+i}], v[{48+i}:{49+i}], v[{56+i}:{57+i}]')
    for i in range(0, 8, 2):
        a(f'v_pk_add_f32 v[{32+i}:{33+i}], v[{32+i}:{33+i}], v[{48+i}:{49+i}]')
    a('v_add_f32 v64, v64, v65')
    a('v_add_f32 v66, v66, v67')
    a('v_add_f32 v64, v64, v66')
    a(f'buffer_store_dwordx4 v[32:35], v{vA}, s[{sW}:{sW+3}], s71 offen')
    a(f'buffer_store_dwordx4 v[36:39], v{vA}, s[{sW}:{sW+3}], s71 offen offset:1024')
    a(f's_cmp_lg_u32 s{sWave}, 0')
    a(f's_cbranch_scc1 {L}_end')
    a(f'buffer_store_dword v64, v13, s[{sW}:{sW+3}], s72 offen')
    a.label(f'{L}_end')
    a('s_endpgm')
    return L, kernel_desc(L, 512, 96, 256), (256, 256, K1_LDS)


def ophase(a, sWs, sWphiLo, sHead, sMt, sWave, vLane, vL16, lds0, sW, sP, sT, vb, sc=''):
    L_KV, L_WP, L_Z = lds0, lds0 + 4096, lds0 + 6144
    srd(a, sP, f's{sWphiLo}', f's{sWphiLo+1}', 65536)
    a(f's_and_b32 s{sT}, s{sWave}, 1')
    a(f's_lshl_b32 s{sT}, s{sT}, 10')
    a(f's_lshl_b32 s{sT+1}, s{sHead}, 11')
    a(f's_add_u32 s{sT+1}, s{sT+1}, s{sT}')
    a(f's_add_u32 m0, s{sT}, {L_WP}')
    a(f'buffer_load_dwordx4 v{vL16}, s[{sP}:{sP+3}], s{sT+1} offen lds')
    a(f's_lshl_b32 s{sT}, s{sHead}, 16')
    a(f's_lshl_b32 s{sT+1}, s{sWave}, 11')
    a(f's_add_u32 s{sT}, s{sT}, s{sT+1}')
    a(f's_add_u32 s{sT}, s{sT}, {KVP_OFF}')
    KL = vb
    for m in range(8):
        for q in range(2):
            a(f'buffer_load_dwordx4 {vr(KL+m*8+q*4,4)}, v{vL16}, s[{sW}:{sW+3}], s{sT} offen offset:{q*1024}')
        if m < 7:
            a(f's_add_u32 s{sT}, s{sT}, 8192')
    ZL = vb + 64
    vT = vb + 72
    a(f's_lshl_b32 s{sT}, s{sHead}, 11')
    a(f's_add_u32 s{sT}, s{sT}, {ZP_OFF}')
    a(f'v_lshlrev_b32 v{vT}, 2, v{vLane}')
    for m in range(8):
        a(f'buffer_load_dword v{ZL+m}, v{vT}, s[{sW}:{sW+3}], s{sT} offen offset:{m*256}')
    QF = vb + 80
    a(f's_lshl_b32 s{sT+2}, s{sMt}, 3')
    a(f's_lshl_b32 s{sT+1}, s{sWave}, 1')
    a(f's_add_u32 s{sT+2}, s{sT+2}, s{sT+1}')
    a(f's_lshl_b32 s{sT}, s{sT+2}, 16')
    a(f's_lshl_b32 s{sT+1}, s{sHead}, 11')
    a(f's_add_u32 s{sT}, s{sT}, s{sT+1}')
    a(f's_add_u32 s{sT}, s{sT}, {Q_OFF}')
    a(f's_add_u32 s{sT+3}, s{sT}, 65536')
    for rb in range(2):
        for t in range(2):
            a(f'buffer_load_dwordx4 {vr(QF+rb*8+t*4,4)}, v{vL16}, s[{sW}:{sW+3}], s{sT+3*rb} offen offset:{t*1024}')
    a(f's_mul_i32 s{sT+4}, s{sT+2}, {HO_RB}')
    a(f's_add_u32 s{sT+4}, s{sT+4}, s{sT+1}')
    a(f's_add_u32 s{sT+4}, s{sT+4}, {HO_OFF + 224*1024}')
    a(f's_add_u32 s{sT+5}, s{sT+4}, {HO_RB}')
    a(f's_mov_b32 s{sT+6}, {LOG2E}')
    a(f's_mov_b32 s{sT+7}, 0xffff0000')
    a(f's_lshl_b32 s{sT}, s{sWave}, 10')
    a(f's_add_u32 s{sT}, s{sT}, {L_KV}')
    a(f'v_add_u32 v{vT+1}, s{sT}, v{vL16}')
    a(f'v_lshlrev_b32 v{vT+2}, 1, v{vLane}')
    a(f'v_lshrrev_b32 v{vT+3}, 5, v{vLane}')
    a(f'v_lshlrev_b32 v{vT+4}, 3, v{vT+3}')
    a(f'v_bfe_u32 v{vT+5}, v{vLane}, 2, 2')
    a(f'v_lshl_add_u32 v{vT+3}, v{vT+3}, 2, v{vT+5}')
    a(f'v_lshlrev_b32 v{vT+3}, 6, v{vT+3}')
    a(f'v_bfe_u32 v{vT+5}, v{vLane}, 4, 1')
    a(f'v_lshl_add_u32 v{vT+3}, v{vT+5}, 5, v{vT+3}')
    a(f'v_and_b32 v{vT+5}, 3, v{vLane}')
    a(f'v_lshl_add_u32 v{vT+3}, v{vT+5}, 3, v{vT+3}')
    a('s_waitcnt vmcnt(12)')
    for stride in (32, 16, 8):
        for o in range(0, stride, 2):
            a(f'v_pk_add_f32 v[{KL+o}:{KL+o+1}], v[{KL+o}:{KL+o+1}], v[{KL+stride+o}:{KL+stride+o+1}]')
    for i in range(4):
        a(f'v_cvt_pk_bf16_f32 v{KL+i}, v{KL+2*i}, v{KL+2*i+1}')
    a(f'ds_write_b128 v{vT+1}, {vr(KL,4)}')
    a('s_waitcnt vmcnt(4)')
    for stride in (4, 2):
        for o in range(0, stride, 2):
            a(f'v_pk_add_f32 v[{ZL+o}:{ZL+o+1}], v[{ZL+o}:{ZL+o+1}], v[{ZL+stride+o}:{ZL+stride+o+1}]')
    a(f'v_add_f32 v{ZL}, v{ZL}, v{ZL+1}')
    a(f'v_cvt_pk_bf16_f32 v{ZL}, v{ZL}, v{ZL}')
    a(f'ds_write_b16 v{vT+2}, v{ZL} offset:{L_Z}')
    a('s_waitcnt lgkmcnt(0)')
    a('s_barrier')
    WP = vb
    KVF = vb + 8
    ZF = vb + 24
    for t in range(2):
        for h in range(2):
            a(f'ds_read_b64_tr_b16 {vr(WP+4*t+2*h,2)}, v{vT+3} offset:{L_WP+(16*t+8*h)*64}')
    for f in range(4):
        a(f'ds_read_b128 {vr(KVF+4*f,4)}, v{vL16} offset:{L_KV+f*1024}')
    for f in range(4):
        for h in range(2):
            a(f'ds_read_b64 {vr(ZF+4*f+2*h,2)}, v{vT+4} offset:{L_Z+f*32+h*16}')
    B0 = vb + 96

    def base(rb):
        return B0 + rb * 56
    a('s_waitcnt vmcnt(0) lgkmcnt(12)')
    for t in range(2):
        for rb in range(2):
            d = vr(base(rb), 16)
            a(f'{MFMA} {d}, {vr(WP+4*t,4)}, {vr(QF+rb*8+t*4,4)}, {d if t else 0}')
    softmax_pm(a, [dict(P=base(rb), E=base(rb) + 16, T=base(rb) + 32, O=base(rb) + 40) for rb in range(2)],
               f's{sT+6}', f's{sT+7}')
    a('s_waitcnt lgkmcnt(0)')
    for f in range(4):
        for rb in range(2):
            b = base(rb)
            a(f'{MFMA} {vr(b+16,16)}, {vr(ZF+4*f,4)}, {vr(b+40+4*f,4)}, {vr(b+16,16) if f else 0}')
            a(f'{MFMA} {vr(b,16)}, {vr(KVF+4*f,4)}, {vr(b+40+4*f,4)}, {vr(b,16) if f else 0}')
    for rb in range(2):
        b = base(rb)
        D = b + 16
        a(f'v_cvt_pk_bf16_f32 v{D}, v{D}, v{D}')
        a(f'v_lshlrev_b32 v{D}, 16, v{D}')
        a(f'v_add_f32 v{D}, 0x358637bd, v{D}')
        a(f'v_cvt_pk_bf16_f32 v{D}, v{D}, v{D}')
        a(f'v_lshlrev_b32 v{D}, 16, v{D}')
        a(f'v_rcp_f32 v{D}, v{D}')
    for rb in range(2):
        b = base(rb)
        D = b + 16
        for i in range(8):
            a(f'v_cvt_pk_bf16_f32 v{b+32+i}, v{b+2*i}, v{b+2*i+1}')
        for i in range(8):
            a(f'v_lshlrev_b32 v{b+2*i}, 16, v{b+32+i}')
            a(f'v_and_b32 v{b+2*i+1}, s{sT+7}, v{b+32+i}')
        for i in range(0, 16, 2):
            a(f'v_pk_mul_f32 v[{b+i}:{b+i+1}], v[{b+i}:{b+i+1}], v[{D}:{D+1}] op_sel_hi:[1,0]')
        for i in range(8):
            a(f'v_cvt_pk_bf16_f32 v{b+32+i}, v{b+2*i}, v{b+2*i+1}')
        a(f'buffer_store_dwordx4 {vr(b+32,4)}, v{vL16}, s[{sW}:{sW+3}], s{sT+4+rb} offen{sc}')
        a(f'buffer_store_dwordx4 {vr(b+36,4)}, v{vL16}, s[{sW}:{sW+3}], s{sT+4+rb} offen offset:1024{sc}')


def gen_k2(a):
    L = 'k2_ophase_kernel'
    kernel_head(a, L)
    a('s_cmp_ge_u32 s2, 256')
    a(f's_cbranch_scc1 {L}_end')
    a(f's_load_dwordx2 s[4:5], s[0:1], {KA_WPHI}')
    a(f's_load_dwordx2 s[6:7], s[0:1], {KA_WS}')
    a('v_lshrrev_b32 v3, 6, v0')
    a('v_and_b32 v1, 63, v0')
    a('v_readfirstlane_b32 s20, v3')
    a('v_lshlrev_b32 v2, 4, v1')
    a('s_and_b32 s21, s2, 31')
    a('s_lshr_b32 s22, s2, 5')
    a('s_waitcnt lgkmcnt(0)')
    srd(a, 8, 's6', 's7', WS_USED)
    ophase(a, 6, 4, 21, 22, 20, 1, 2, 0, 8, 12, 24, 8)
    a.label(f'{L}_end')
    a('s_endpgm')
    return L, kernel_desc(L, 216, 40, 216), (256, 256, 8192)


K3_NS = 8
K3_STAGE = 8192
K3_LDS = K3_NS * K3_STAGE


def gen_k3(a, cfg):
    L = 'k3_gemm2_kernel'
    kernel_head(a, L)
    sA, sB, sX, sO = 8, 12, 16, 20
    sWave, sMt, sNt, sAo, sBo, sStage, sCnt, sDst = 24, 25, 26, 27, 28, 29, 30, 31
    vLane, vL16, vDma, vRd, vXo = 1, 2, 3, 5, 7
    ACC, GS, XR, BF, AR = 16, 48, 64, 80, 112
    a('s_cmp_ge_u32 s2, 256')
    a(f's_cbranch_scc1 {L}_end')
    a(f's_load_dwordx2 s[40:41], s[0:1], {KA_X}')
    a(f's_load_dwordx2 s[42:43], s[0:1], {KA_WO}')
    a(f's_load_dwordx4 s[44:47], s[0:1], {KA_WD}')
    a(f's_load_dwordx2 s[48:49], s[0:1], {KA_WS}')
    a('v_lshrrev_b32 v8, 6, v0')
    a(f'v_and_b32 v{vLane}, 63, v0')
    a(f'v_readfirstlane_b32 s{sWave}, v8')
    a(f'v_lshlrev_b32 v{vL16}, 4, v{vLane}')
    a('s_bfe_u32 s50, s2, 0x20001')
    a('s_lshl_b32 s50, s50, 2')
    a('s_bfe_u32 s51, s2, 0x20003')
    a(f's_add_u32 s{sMt}, s50, s51')
    a('s_and_b32 s50, s2, 1')
    a('s_lshl_b32 s50, s50, 3')
    a('s_lshr_b32 s51, s2, 5')
    a(f's_add_u32 s{sNt}, s50, s51')
    a('s_waitcnt lgkmcnt(0)')
    a(f's_lshl_b32 s50, s{sMt}, 2')
    a(f's_add_u32 s50, s50, s{sWave}')
    a(f's_mul_i32 s51, s50, {HO_RB}')
    a(f's_add_u32 s51, s51, {HO_OFF}')
    srd_off(a, sA, 's48', 's49', 's51', HO_RB)
    srd(a, sB, 's44', 's45', 3584 * 2048)
    srd(a, sX, 's40', 's41', 0x400000)
    srd(a, sO, 's46', 's47', 0x400000)
    a('s_and_b32 s43, s43, 0xffff')
    a(f'v_lshrrev_b32 v8, 3, v{vLane}')
    a(f'v_and_b32 v9, 7, v{vLane}')
    a('v_and_b32 v10, 2, v8')
    a('v_xor_b32 v9, v9, v10')
    a(f's_lshl_b32 s51, s{sWave}, 4')
    a('v_add_u32 v8, s51, v8')
    a('v_lshlrev_b32 v8, 11, v8')
    a('v_lshl_add_u32 v8, v9, 4, v8')
    a(f's_lshl_b32 s51, s{sNt}, 7')
    a(f'v_add_u32 v{vDma}, s51, v8')
    a(f'v_add_u32 v{vDma+1}, {8*2048}, v{vDma}')
    a(f's_lshl_b32 s{sDst}, s{sWave}, 11')
    a(f's_mov_b32 s{sAo}, 0')
    a(f's_mov_b32 s{sBo}, 0')
    a(f's_mov_b32 s{sStage}, 0')

    vm = VmQ()

    def dma(stage):
        slot = stage % K3_NS
        for u in range(2):
            a(f's_add_u32 m0, s{sDst}, {slot*K3_STAGE + u*1024}')
            a(f'buffer_load_dwordx4 v{vDma+u}, s[{sB}:{sB+3}], s{sBo} offen lds')
            vm.issue(('B', stage))
        a(f's_add_u32 s{sBo}, s{sBo}, {64*2048}')
        a(f's_add_u32 s{sStage}, s{sStage}, 1')
        a(f's_cmp_eq_u32 s{sStage}, 56')
        a(f's_cselect_b32 s{sB}, s42, s{sB}')
        a(f's_cselect_b32 s{sB+1}, s43, s{sB+1}')
        a(f's_cselect_b32 s{sB+2}, {1024*2048}, s{sB+2}')
        a(f's_cselect_b32 s{sBo}, 0, s{sBo}')

    def aload(step):
        e = step % 32
        a(f'buffer_load_dwordx4 {vr(AR+4*e,4)}, v{vL16}, s[{sA}:{sA+3}], s{sAo} offen offset:{(step&3)*1024}')
        vm.issue(('A', step))
        if (step & 3) == 3:
            a(f's_add_u32 s{sAo}, s{sAo}, 4096')

    def bread(step):
        stage = step >> 2
        slot = stage % K3_NS
        e = step % 4
        for b in range(2):
            for h in range(2):
                off = slot * K3_STAGE + ((step & 3) * 16 + 8 * h) * 128
                a(f'ds_read_b64_tr_b16 {vr(BF+e*8+b*4+2*h,2)}, v{vRd+b} offset:{off}')

    a(f'v_and_b32 v8, 31, v{vLane}')
    a('v_lshlrev_b32 v8, 11, v8')
    a(f'v_lshrrev_b32 v9, 5, v{vLane}')
    a('v_lshl_add_u32 v8, v9, 6, v8')
    a('s_lshl_b32 s52, s50, 16')
    a('s_add_u32 s52, s52, s51')
    a(f'v_add_u32 v{vXo}, s52, v8')
    for i in range(4):
        a(f'buffer_load_dwordx4 {vr(XR+4*i,4)}, v{vXo}, s[{sX}:{sX+3}], 0 offen offset:{16*i}')
    for s in range(-32, 0):
        if (s + 3) % 4 == 0:
            p = (s + 3) // 4
            if p + 6 >= 0 and p < 0:
                dma(p + 6)
            if p == 0:
                a(f'v_lshrrev_b32 v8, 5, v{vLane}')
                a(f'v_bfe_u32 v9, v{vLane}, 2, 2')
                a('v_lshl_add_u32 v8, v8, 2, v9')
                a('v_lshlrev_b32 v8, 7, v8')
                a(f'v_and_b32 v10, 1, v{vLane}')
                a('v_lshl_add_u32 v8, v10, 6, v8')
                a(f'v_bfe_u32 v10, v{vLane}, 4, 1')
                a('v_lshl_add_u32 v8, v10, 4, v8')
                a(f'v_bfe_u32 v10, v{vLane}, 1, 1')
                a('v_lshl_add_u32 v8, v10, 3, v8')
                a('v_lshrrev_b32 v9, 1, v9')
                a(f'v_lshl_add_u32 v{vRd}, v9, 5, v8')
                a(f'v_xor_b32 v{vRd+1}, 32, v{vRd}')
                for i in range(32):
                    a(f'v_mov_b32 v{ACC+i}, 0')
                a(f's_waitcnt vmcnt({vm.need([("B", 0)])})')
                a('s_barrier')
                dma(6)
        if s >= -3:
            bread(s + 3)
        aload(s + 32)
    a(f's_mov_b32 s{sCnt}, 0')
    waits = {}

    def step(s):
        e = s % 32
        if (s + 3) % 4 == 0:
            p = (s + 3) // 4
            n = min(vm.need([('B', p)]), vm.need([('A', s)]))
            waits.setdefault((e, 'B'), []).append(n)
            a(f's_waitcnt vmcnt({n}) lgkmcnt(8)')
            a('s_barrier')
        else:
            n = vm.need([('A', s)])
            waits.setdefault((e, 'A'), []).append(n)
            a(f's_waitcnt vmcnt({n}) lgkmcnt(8)')
        for b in range(2):
            d = vr(ACC + 16 * b, 16)
            a(f'{MFMA} {d}, {vr(BF+(s%4)*8+b*4,4)}, {vr(AR+4*e,4)}, {d}')
        if (s + 3) % 4 == 0:
            dma((s + 3) // 4 + 6)
        bread(s + 3)
        aload(s + 32)

    a.raw('.p2align 6')
    a.label(f'{L}_loop')
    for s in range(32):
        step(s)
    a(f's_add_u32 s{sCnt}, s{sCnt}, 1')
    a(f's_cmp_lg_u32 s{sCnt}, 7')
    a(f's_cbranch_scc1 {L}_noswitch')
    a.nop(16)
    a(f's_mov_b32 s53, {LOG2E | 0x80000000}')
    a('s_mov_b32 s54, 0xffff0000')
    for i in range(16):
        a(f'v_cvt_pk_bf16_f32 v{GS+i}, v{ACC+2*i}, v{ACC+2*i+1}')
    for i in range(16):
        a(f'v_lshlrev_b32 v{ACC+2*i}, 16, v{GS+i}')
        a(f'v_and_b32 v{ACC+2*i+1}, s54, v{GS+i}')
    for half in range(4):
        o = ACC + 8 * half
        for i in range(8):
            a(f'v_mul_f32 v{8+i}, s53, v{o+i}')
        for i in range(8):
            a(f'v_exp_f32 v{8+i}, v{8+i}')
        for i in range(8):
            a(f'v_add_f32 v{8+i}, 1.0, v{8+i}')
        for i in range(8):
            a(f'v_rcp_f32 v{8+i}, v{8+i}')
        for i in range(8):
            a(f'v_mul_f32 v{o+i}, v{o+i}, v{8+i}')
    for i in range(16):
        a(f'v_cvt_pk_bf16_f32 v{GS+i}, v{ACC+2*i}, v{ACC+2*i+1}')
    for i in range(32):
        a(f'v_mov_b32 v{ACC+i}, 0')
    a.nop(2)
    a.label(f'{L}_noswitch')
    a(f's_cmp_lt_u32 s{sCnt}, 9')
    a(f's_cbranch_scc1 {L}_loop')
    saved_lines, saved_hist = a.lines, a.hist
    a.lines = []
    for s in range(32, 64):
        step(s)
    a.lines, a.hist = saved_lines, saved_hist
    for k, v in waits.items():
        assert v[0] <= v[1], (k, v)
    a.nop(16)
    T = AR
    a('s_waitcnt vmcnt(0)')
    for i in range(16):
        a(f'v_cvt_pk_bf16_f32 v{T+i}, v{ACC+2*i}, v{ACC+2*i+1}')
    for i in range(16):
        a(f'v_lshlrev_b32 v{ACC+2*i}, 16, v{T+i}')
        a(f'v_and_b32 v{ACC+2*i+1}, s54, v{T+i}')
        a(f'v_lshlrev_b32 v{T+32+2*i}, 16, v{GS+i}')
        a(f'v_and_b32 v{T+32+2*i+1}, s54, v{GS+i}')
    for i in range(0, 32, 2):
        a(f'v_pk_mul_f32 v[{ACC+i}:{ACC+i+1}], v[{ACC+i}:{ACC+i+1}], v[{T+32+i}:{T+33+i}]')
    for i in range(16):
        a(f'v_cvt_pk_bf16_f32 v{T+i}, v{ACC+2*i}, v{ACC+2*i+1}')
    for i in range(16):
        a(f'v_lshlrev_b32 v{ACC+2*i}, 16, v{T+i}')
        a(f'v_and_b32 v{ACC+2*i+1}, s54, v{T+i}')
        a(f'v_lshlrev_b32 v{T+32+2*i}, 16, v{XR+i}')
        a(f'v_and_b32 v{T+32+2*i+1}, s54, v{XR+i}')
    for i in range(0, 32, 2):
        a(f'v_pk_add_f32 v[{ACC+i}:{ACC+i+1}], v[{ACC+i}:{ACC+i+1}], v[{T+32+i}:{T+33+i}]')
    for i in range(16):
        a(f'v_cvt_pk_bf16_f32 v{T+i}, v{ACC+2*i}, v{ACC+2*i+1}')
    for i in range(4):
        a(f'buffer_store_dwordx4 {vr(T+4*i,4)}, v{vXo}, s[{sO}:{sO+3}], 0 offen offset:{16*i}')
    a.label(f'{L}_end')
    a('s_endpgm')
    return L, kernel_desc(L, 240, 64, 240), (256, 256, K3_LDS)


HEADER = """; Kernarg layout for this problem (88 bytes, ptrs only, base s[0:1]):
"""


def build(cfg):
    a = Asm()
    ks = [gen_k0(a), gen_k1(a, cfg), gen_k2(a), gen_k3(a, cfg)]
    out = HEADER
    for (lab, _, (g, b, lds)) in ks:
        out += f'; @launch kernel={lab} grid=({g},1,1) block=({b},1,1) lds={lds}\n'
    out += '.amdgcn_target "amdgcn-amd-amdhsa--gfx950"\n.text\n'
    out += a.text()
    out += '.section .rodata,"a"\n'
    for (_, desc, _) in ks:
        out += '.p2align 6\n' + desc
    return out


if __name__ == '__main__':
    cfg = {}
    outp = sys.argv[1] if len(sys.argv) > 1 else f'cdna_kernels/{NAME}.s'
    for kv in sys.argv[2:]:
        k, v = kv.split('=')
        cfg[k] = int(v)
    open(outp, 'w').write(build(cfg))
    print('wrote', outp)
```

```python
import re

_REG = re.compile(r'^(-|\|)?([vas])(?:(\d+)|\[(\d+):(\d+)\])\|?$')
TRANS = ('v_exp_f32', 'v_log_f32', 'v_rcp_f32', 'v_rsq_f32', 'v_sqrt_f32', 'v_sin_f32', 'v_cos_f32')


def regs_of(tok):
    tok = tok.strip()
    if tok.startswith('abs(') and tok.endswith(')'):
        tok = tok[4:-1]
    if tok.startswith('-abs(') and tok.endswith(')'):
        tok = tok[5:-1]
    if tok == 'vcc':
        return [('s', 106), ('s', 107)]
    if tok == 'exec':
        return [('s', 126), ('s', 127)]
    if tok == 'm0':
        return [('s', 124)]
    m = _REG.match(tok)
    if not m:
        return []
    k = m.group(2)
    if m.group(3) is not None:
        return [(k, int(m.group(3)))]
    return [(k, i) for i in range(int(m.group(4)), int(m.group(5)) + 1)]


def split_ops(s):
    out, depth, cur = [], 0, ''
    for ch in s:
        if ch in '[(':
            depth += 1
        if ch in '])':
            depth -= 1
        if ch == ',' and depth == 0:
            out.append(cur.strip())
            cur = ''
        else:
            cur += ch
    if cur.strip():
        out.append(cur.strip())
    return out


class Ins:
    __slots__ = ('text', 'op', 'kind', 'wr', 'rd', 'srcc', 'srcab', 'passes', 'stdata', 'lds', 'dpp')


def parse(text):
    t = text.split(';')[0].strip()
    parts = t.split(None, 1)
    op = parts[0]
    rest = parts[1] if len(parts) > 1 else ''
    ops = split_ops(rest)
    mods = ''
    if ops:
        last = ops[-1].split(None, 1)
        ops[-1] = last[0]
        mods = last[1] if len(last) > 1 else ''
    i = Ins()
    i.text, i.op = text, op
    i.wr, i.rd, i.srcc, i.srcab, i.stdata = [], [], [], [], []
    i.passes, i.lds, i.dpp = 0, False, False
    R = [regs_of(o) for o in ops]
    if op.startswith('v_mfma'):
        i.kind = 'mfma'
        i.wr = R[0]
        i.srcab = R[1] + R[2]
        i.srcc = R[3]
        i.rd = i.srcab + i.srcc
        i.passes = 8 if '32x32' in op else 4
    elif op.startswith('v_'):
        i.kind = 'valu'
        i.dpp = ('dpp' in op) or ('quad_perm' in mods) or ('row_' in mods)
        if op.startswith('v_cmp'):
            i.wr = R[0]
            i.rd = sum(R[1:], [])
        elif 'permlane' in op and 'swap' in op:
            i.wr = R[0] + R[1]
            i.rd = R[0] + R[1]
        elif op.startswith(('v_add_co', 'v_sub_co', 'v_addc_co', 'v_subb_co')):
            i.wr = R[0] + R[1]
            i.rd = sum(R[2:], [])
        else:
            i.wr = R[0]
            i.rd = sum(R[1:], [])
            if op.startswith(('v_fmac', 'v_dot2c', 'v_pk_fmac')) or i.dpp:
                i.rd = i.rd + R[0]
    elif op.startswith('ds_'):
        i.kind = 'ds'
        if op.startswith(('ds_read', 'ds_bpermute', 'ds_permute', 'ds_swizzle')):
            i.wr = R[0]
            i.rd = sum(R[1:], [])
        else:
            i.rd = sum(R, [])
    elif op.startswith(('buffer_', 'global_')):
        i.kind = 'vmem'
        allmods = ' ' + mods + ' '
        if op in ('buffer_wbl2', 'buffer_inv'):
            pass
        elif ' lds ' in allmods or 'load_lds' in op:
            i.lds = True
            i.rd = sum(R, []) + [('s', 124)]
        elif '_load' in op:
            i.wr = R[0]
            i.rd = sum(R[1:], [])
        elif op.startswith('buffer_store'):
            i.rd = sum(R, [])
            if 'x4' in op or 'x3' in op:
                i.stdata = R[0]
        elif op.startswith('global_store'):
            i.rd = sum(R, [])
            if 'x4' in op or 'x3' in op:
                i.stdata = R[1]
        else:
            i.rd = sum(R, [])
            if ' sc0 ' in allmods:
                i.wr = R[0]
    elif op.startswith('s_'):
        i.kind = 'salu'
        if op in ('s_nop', 's_waitcnt', 's_barrier', 's_endpgm', 's_setprio', 's_sleep') or op.startswith(('s_cbranch', 's_branch', 's_cmp')):
            i.rd = sum(R, [])
        else:
            i.wr = R[0] if R else []
            i.rd = sum(R[1:], [])
            if 'saveexec' in op:
                i.wr = i.wr + [('s', 126), ('s', 127)]
    else:
        raise ValueError('unknown op ' + text)
    return i


MFMA_D_TO_AB = {4: 8, 8: 12}
MFMA_D_TO_VALU = {4: 8, 8: 12}
MFMA_D_TO_C_OVERLAP = {4: 6, 8: 10}
MFMA_C_WAR = {4: 3, 8: 7}


class Asm:
    def __init__(self):
        self.lines = []
        self.hist = []
        self.nops_added = 0
        self.defer = []
        self.every = 0
        self.cnt = 0
        self._in = False

    def sprinkle(self, items, every):
        self.defer = self.defer + list(items)
        self.every = every
        self.cnt = 0

    def flush(self):
        d, self.defer = self.defer, []
        for t in d:
            self(t)

    def raw(self, s):
        self.lines.append(s)

    def comment(self, s):
        self.lines.append('    ; ' + s)

    def label(self, name):
        self.lines.append(name + ':')

    def reset(self):
        self.hist = []

    def _need(self, i):
        need = 0
        dist = 0
        wr, rd = set(i.wr), set(i.rd)
        isv = i.kind == 'valu'
        for (p, st) in reversed(self.hist):
            if dist >= 20:
                break
            req = 0
            pw = set(p.wr)
            if p.kind == 'valu':
                pv = {r for r in pw if r[0] in 'va'}
                ps = {r for r in pw if r[0] == 's'}
                if i.kind == 'mfma' and pv & rd:
                    req = max(req, 2)
                if isv and i.dpp and pv & rd:
                    req = max(req, 2)
                if isv and 'permlane' in i.op and pv & rd:
                    req = max(req, 2)
                if isv and i.op.startswith(('v_readlane', 'v_readfirstlane')) and pv & rd:
                    req = max(req, 1)
                if p.op.startswith(TRANS) and pv & rd and (i.kind != 'valu' or not i.op.startswith(TRANS)):
                    req = max(req, 1)
                if 'sdwa' in p.op and isv and pv & (rd | wr):
                    req = max(req, 1)
                if ps & rd:
                    if i.kind == 'vmem':
                        req = max(req, 5)
                    elif isv:
                        req = max(req, 4 if i.op.startswith(('v_readlane', 'v_writelane')) else 2)
                    elif i.kind == 'salu':
                        req = max(req, 2)
                if ps & {('s', 126), ('s', 127)}:
                    if i.kind == 'mfma':
                        req = max(req, 4)
                    if isv and (i.dpp or 'permlane' in i.op or 'readlane' in i.op or 'readfirstlane' in i.op):
                        req = max(req, 5)
            elif p.kind == 'mfma':
                if i.kind == 'mfma':
                    if pw & set(i.srcab):
                        req = max(req, MFMA_D_TO_AB[p.passes])
                    if pw & set(i.srcc):
                        if not (list(p.wr) == list(i.srcc) and p.passes == i.passes):
                            req = max(req, MFMA_D_TO_C_OVERLAP[p.passes])
                    elif pw & wr:
                        req = max(req, MFMA_D_TO_C_OVERLAP[p.passes])
                else:
                    if pw & (rd | wr):
                        req = max(req, MFMA_D_TO_VALU[p.passes])
                    if isv and set(p.srcc) & wr:
                        req = max(req, MFMA_C_WAR[p.passes])
            elif p.kind == 'salu':
                if ('s', 124) in pw and i.lds:
                    req = max(req, 1)
            elif p.kind == 'vmem':
                if p.stdata and set(p.stdata) & wr:
                    req = max(req, 2)
            if req > dist:
                need = max(need, req - dist)
            dist += st
        return need

    def __call__(self, text):
        for line in text.split('\n'):
            line = line.strip()
            if not line:
                continue
            if line.startswith(';'):
                self.lines.append('    ' + line)
                continue
            i = parse(line)
            n = self._need(i)
            while n > 0:
                k = min(n, 16)
                self._emit_nop(k)
                self.nops_added += 1
                n -= k
            self.lines.append('    ' + line)
            st = 1
            if i.op == 's_nop':
                st = int(line.split()[1], 0) + 1
            self.hist.append((i, st))
            if len(self.hist) > 64:
                self.hist = self.hist[-40:]
            if self.defer and not self._in:
                self.cnt += 1
                if self.cnt >= self.every:
                    self.cnt = 0
                    self._in = True
                    self(self.defer.pop(0))
                    self._in = False

    def _emit_nop(self, k):
        t = 's_nop %d' % (k - 1)
        self.lines.append('    ' + t)
        self.hist.append((parse(t), k))

    def nop(self, k):
        self._emit_nop(k)

    def text(self):
        return '\n'.join(self.lines) + '\n'


def vr(base, n=1, k='v'):
    return '%s%d' % (k, base) if n == 1 else '%s[%d:%d]' % (k, base, base + n - 1)


def ar(base, n=1):
    return vr(base, n, 'a')


def sr(base, n=1):
    return vr(base, n, 's')
```

```python
import sys
import os
sys.path.insert(0, os.path.dirname(os.path.abspath(__file__)))
from asmlib import Asm, vr, ar, sr

NAME = 'recurrent_scan__linear_kernel_hedgehog__glu_gated_bilinear__prompt'

XN_OFF = 0
HO_OFF = 0x400000
HO_RB = 288 * 1024
Q_OFF = 0x1600000
KVP_OFF = 0x1A00000
ZP_OFF = 0x1C00000
WDT_OFF = 0x1D00000
WOT_OFF = 0x2400000
EX_OFF = 0x2600000
CNT_OFF = 0x2E00000
WS_USED = 0x2E01000

KA_X, KA_WQKV, KA_WPHI, KA_WO, KA_WG, KA_WU, KA_WD, KA_OUT, KA_DBG, KA_WS = 0, 8, 16, 24, 40, 48, 56, 64, 72, 80
LOG2E = 0x3FB8AA3B
MFMA = 'v_mfma_f32_32x32x16_bf16'


def srd(a, d, lo, hi, nrec):
    a(f's_mov_b32 s{d}, {lo}')
    a(f's_and_b32 s{d+1}, {hi}, 0xffff')
    a(f's_mov_b32 s{d+2}, {nrec}')
    a(f's_mov_b32 s{d+3}, 0x20000')


def srd_off(a, d, lo, hi, off, nrec):
    a(f's_add_u32 s{d}, {lo}, {off}')
    a(f's_addc_u32 s{d+1}, {hi}, 0')
    a(f's_and_b32 s{d+1}, s{d+1}, 0xffff')
    a(f's_mov_b32 s{d+2}, {nrec}')
    a(f's_mov_b32 s{d+3}, 0x20000')


PROF_OFF = 0x3000000


def stamp(a, cfg, idx):
    if not cfg.get('prof'):
        return
    a('s_waitcnt lgkmcnt(0)')
    if idx in (0, 5):
        a(f's_memrealtime s[{86+2*idx}:{87+2*idx}]')
    else:
        a(f's_memtime s[{86+2*idx}:{87+2*idx}]')
    a('s_waitcnt lgkmcnt(0)')


def stampv(a, cfg, vreg, lane, lvl=3):
    if cfg.get('prof') != lvl:
        return
    a('s_waitcnt lgkmcnt(0)')
    a('s_memtime s[98:99]')
    a('s_waitcnt lgkmcnt(0)')
    a(f'v_writelane_b32 v{vreg}, s98, {lane}')


def stampv_store(a, cfg, vreg, vtmp, lvl=3):
    if cfg.get('prof') != lvl:
        return
    a(f's_load_dwordx2 s[4:5], s[0:1], {KA_WS}')
    a('s_waitcnt lgkmcnt(0)')
    a(f's_lshl_b32 s3, s2, 10')
    a(f's_add_u32 s3, s3, {PROF_OFF + 0x200000}')
    a('s_add_u32 s4, s4, s3')
    a('s_addc_u32 s5, s5, 0')
    a('s_and_b32 s5, s5, 0xffff')
    a('s_mov_b32 s6, 1024')
    a('s_mov_b32 s7, 0x20000')
    a(f'v_lshlrev_b32 v{vtmp}, 2, v0')
    a(f'buffer_store_dword v{vreg}, v{vtmp}, s[4:7], 0 offen')


def stamp_store(a, cfg, kidx):
    if not cfg.get('prof'):
        return
    a(f's_load_dwordx2 s[4:5], s[0:1], {KA_WS}')
    a('s_waitcnt lgkmcnt(0)')
    a(f's_lshl_b32 s3, s2, 6')
    a(f's_add_u32 s3, s3, {PROF_OFF + kidx*16384}')
    a('s_add_u32 s4, s4, s3')
    a('s_addc_u32 s5, s5, 0')
    a('s_and_b32 s5, s5, 0xffff')
    a('s_mov_b32 s6, 64')
    a('s_mov_b32 s7, 0x20000')
    a('v_mov_b32 v1, 0')
    a('v_cmp_eq_u32 vcc, 0, v0')
    a('s_and_saveexec_b64 s[98:99], vcc')
    for i in range(12):
        a(f'v_mov_b32 v2, s{86+i}')
        a(f'buffer_store_dword v2, v1, s[4:7], 0 offen offset:{4*i}')
    a('s_mov_b64 exec, s[98:99]')


def kernel_head(a, label):
    a.raw('.p2align 8')
    a.raw(f'.globl {label}')
    a.raw(f'.type {label},@function')
    a.label(label)
    a.reset()


def kernel_desc(label, nv, ns, acc):
    return f""".amdhsa_kernel {label}
  .amdhsa_next_free_vgpr {nv}
  .amdhsa_next_free_sgpr {ns}
  .amdhsa_accum_offset {acc}
  .amdhsa_group_segment_fixed_size 0
  .amdhsa_kernarg_size 88
  .amdhsa_user_sgpr_count 2
  .amdhsa_user_sgpr_kernarg_segment_ptr 1
  .amdhsa_system_sgpr_workgroup_id_x 1
  .amdhsa_float_denorm_mode_32 3
.end_amdhsa_kernel
"""


def gen_k0(a, cfg):
    L = 'k0_ln_kernel'
    kernel_head(a, L)
    a('s_cmp_ge_u32 s2, 256')
    a(f's_cbranch_scc1 {L}_end')
    a(f's_load_dwordx2 s[4:5], s[0:1], {KA_X}')
    a(f's_load_dwordx2 s[6:7], s[0:1], {KA_WS}')
    a('v_and_b32 v1, 7, v0')
    a('v_lshrrev_b32 v2, 3, v0')
    a('v_lshlrev_b32 v3, 11, v1')
    a('v_lshl_add_u32 v3, v2, 4, v3')
    a('s_lshl_b32 s3, s2, 14')
    a('s_waitcnt lgkmcnt(0)')
    srd(a, 8, 's4', 's5', 0x400000)
    a('buffer_load_dwordx4 v[8:11], v3, s[8:11], s3 offen')
    a('buffer_load_dwordx4 v[12:15], v3, s[8:11], s3 offen offset:1024')
    if cfg.get('pf_code'):
        a('s_getpc_b64 s[20:21]')
        a.label('k0_pc')
        a('s_sub_u32 s20, s20, k0_pc-k0_ln_kernel')
        a('s_subb_u32 s21, s21, 0')
        a('s_and_b32 s21, s21, 0xffff')
        a('s_mov_b32 s22, code_end-k0_ln_kernel')
        a('s_mov_b32 s23, 0x20000')
        a('v_lshlrev_b32 v7, 6, v0')
        a('buffer_load_dword v63, v7, s[20:23], 0 offen')
        a('s_mov_b32 s19, 32768')
        a('buffer_load_dword v63, v7, s[20:23], s19 offen')
    if cfg.get('pf_tlb'):
        a('s_load_dwordx4 s[24:27], s[0:1], 8')
        a('s_load_dwordx2 s[28:29], s[0:1], 24')
        a('s_load_dwordx8 s[32:39], s[0:1], 40')
        a('v_lshlrev_b32 v7, 16, v0')
        a('s_waitcnt lgkmcnt(0)')
        for (lo, n) in ((24, 6144*1024), (28, 2048*1024), (32, 7168*1024), (34, 7168*1024), (36, 7168*1024), (38, 4096*1024), (6, WS_USED)):
            srd(a, 40, f's{lo}', f's{lo+1}', n)
            a('buffer_load_dword v63, v7, s[40:43], 0 offen')
    a('s_cmp_lg_u32 s2, 0')
    a(f's_cbranch_scc1 {L}_nz')
    srd_off(a, 12, 's6', 's7', CNT_OFF, 1024)
    for i in range(4):
        a(f'v_mov_b32 v{16+i}, 0')
    a('v_lshlrev_b32 v7, 4, v0')
    a('buffer_store_dwordx4 v[16:19], v7, s[12:15], 0 offen')
    a('s_nop 1')
    a.label(f'{L}_nz')
    srd(a, 12, 's6', 's7', 0x400000)
    a('s_lshr_b32 s16, s2, 3')
    a('s_lshl_b32 s16, s16, 17')
    a('s_bfe_u32 s17, s2, 0x10002')
    a('s_lshl_b32 s17, s17, 10')
    a('s_or_b32 s16, s16, s17')
    a('s_and_b32 s17, s2, 3')
    a('s_lshl_b32 s17, s17, 7')
    a('s_or_b32 s16, s16, s17')
    a('s_add_u32 s17, s16, 0x10000')
    a('v_lshrrev_b32 v4, 1, v2')
    a('v_lshlrev_b32 v4, 11, v4')
    a('v_and_b32 v5, 1, v2')
    a('v_lshl_add_u32 v4, v5, 9, v4')
    a('v_lshl_add_u32 v4, v1, 4, v4')
    a('v_lshrrev_b32 v5, 6, v0')
    a('v_lshlrev_b32 v6, 5, v1')
    a('v_lshl_add_u32 v5, v5, 2, v6')
    a('s_mov_b32 s18, 0xffff0000')
    a(f"s_waitcnt vmcnt({(2 if cfg.get('pf_code') else 0) + (7 if cfg.get('pf_tlb') else 0)})")
    X = 16
    for i in range(8):
        a(f'v_lshlrev_b32 v{X+2*i}, 16, v{8+i}')
        a(f'v_and_b32 v{X+2*i+1}, s18, v{8+i}')

    def reduce_all(acc, tmp, ldsoff):
        a(f'v_add_f32_dpp v{acc}, v{acc}, v{acc} row_ror:8 row_mask:0xf bank_mask:0xf')
        a(f'v_mov_b32 v{tmp}, v{acc}')
        a(f'v_permlane16_swap_b32 v{acc}, v{tmp}')
        a(f'v_add_f32 v{acc}, v{acc}, v{tmp}')
        a(f'v_mov_b32 v{tmp}, v{acc}')
        a(f'v_permlane32_swap_b32 v{acc}, v{tmp}')
        a(f'v_add_f32 v{acc}, v{acc}, v{tmp}')
        a('s_mov_b64 exec, 0xff')
        a(f'ds_write_b32 v5, v{acc} offset:{ldsoff}')
        a('s_mov_b64 exec, -1')
        a('s_waitcnt lgkmcnt(0)')
        a('s_barrier')
        a(f'ds_read_b128 v[48:51], v6 offset:{ldsoff}')
        a(f'ds_read_b128 v[52:55], v6 offset:{ldsoff+16}')
        a('s_waitcnt lgkmcnt(0)')
        a('v_pk_add_f32 v[48:49], v[48:49], v[50:51]')
        a('v_pk_add_f32 v[52:53], v[52:53], v[54:55]')
        a('v_pk_add_f32 v[48:49], v[48:49], v[52:53]')
        a(f'v_add_f32 v{acc}, v48, v49')

    a(f'v_pk_add_f32 v[32:33], v[{X}:{X+1}], v[{X+2}:{X+3}]')
    a(f'v_pk_add_f32 v[34:35], v[{X+4}:{X+5}], v[{X+6}:{X+7}]')
    a(f'v_pk_add_f32 v[36:37], v[{X+8}:{X+9}], v[{X+10}:{X+11}]')
    a(f'v_pk_add_f32 v[38:39], v[{X+12}:{X+13}], v[{X+14}:{X+15}]')
    a('v_pk_add_f32 v[32:33], v[32:33], v[34:35]')
    a('v_pk_add_f32 v[36:37], v[36:37], v[38:39]')
    a('v_pk_add_f32 v[32:33], v[32:33], v[36:37]')
    a('v_add_f32 v56, v32, v33')
    reduce_all(56, 57, 0)
    a('v_mul_f32 v56, 0x3a800000, v56')
    for i in range(16):
        a(f'v_sub_f32 v{32+i}, v{X+i}, v56')
    a('v_pk_mul_f32 v[58:59], v[32:33], v[32:33]')
    a('v_pk_mul_f32 v[60:61], v[34:35], v[34:35]')
    for i in range(2, 8):
        d = 58 + 2 * (i & 1)
        a(f'v_pk_fma_f32 v[{d}:{d+1}], v[{32+2*i}:{33+2*i}], v[{32+2*i}:{33+2*i}], v[{d}:{d+1}]')
    a('v_pk_add_f32 v[58:59], v[58:59], v[60:61]')
    a('v_add_f32 v58, v58, v59')
    a('v_cvt_pk_bf16_f32 v62, v56, v56')
    a('v_lshlrev_b32 v62, 16, v62')
    for i in range(16):
        a(f'v_sub_f32 v{32+i}, v{X+i}, v62')
    for i in range(8):
        a(f'v_cvt_pk_bf16_f32 v{8+i}, v{32+2*i}, v{33+2*i}')
    for i in range(8):
        a(f'v_lshlrev_b32 v{X+2*i}, 16, v{8+i}')
        a(f'v_and_b32 v{X+2*i+1}, s18, v{8+i}')
    reduce_all(58, 57, 256)
    a('v_mul_f32 v58, 0x3a800000, v58')
    a('v_cvt_pk_bf16_f32 v58, v58, v58')
    a('v_lshlrev_b32 v58, 16, v58')
    a('v_add_f32 v58, 0x3727c5ac, v58')
    a('v_cvt_pk_bf16_f32 v58, v58, v58')
    a('v_lshlrev_b32 v58, 16, v58')
    a('v_sqrt_f32 v58, v58')
    a('v_cvt_pk_bf16_f32 v58, v58, v58')
    a('v_lshlrev_b32 v58, 16, v58')
    a('v_rcp_f32 v58, v58')
    for i in range(16):
        a(f'v_mul_f32 v{X+i}, v{X+i}, v58')
    for i in range(8):
        a(f'v_cvt_pk_bf16_f32 v{8+i}, v{X+2*i}, v{X+2*i+1}')
    a('buffer_store_dwordx4 v[8:11], v4, s[12:15], s16 offen')
    a('buffer_store_dwordx4 v[12:15], v4, s[12:15], s17 offen')
    a.label(f'{L}_end')
    a('s_endpgm')
    return L, kernel_desc(L, 64, 48, 64), (256, 512, 512)


def softmax_pm(a, blocks, sL, sMask):
    def each(f):
        for b in blocks:
            f(b)
    for i in range(8):
        each(lambda b: a(f"v_cvt_pk_bf16_f32 v{b['T']+i}, v{b['P']+2*i}, v{b['P']+2*i+1}"))
    for i in range(8):
        each(lambda b: (a(f"v_lshlrev_b32 v{b['P']+2*i}, 16, v{b['T']+i}"),
                        a(f"v_and_b32 v{b['P']+2*i+1}, {sMask}, v{b['T']+i}")))
    each(lambda b: (a(f"v_max3_f32 v{b['T']}, v{b['P']}, v{b['P']+1}, v{b['P']+2}"),
                    a(f"v_min3_f32 v{b['T']+1}, v{b['P']}, v{b['P']+1}, v{b['P']+2}")))
    for i in range(3, 15, 2):
        each(lambda b: (a(f"v_max3_f32 v{b['T']}, v{b['T']}, v{b['P']+i}, v{b['P']+i+1}"),
                        a(f"v_min3_f32 v{b['T']+1}, v{b['T']+1}, v{b['P']+i}, v{b['P']+i+1}")))
    each(lambda b: (a(f"v_max_f32 v{b['T']}, v{b['T']}, v{b['P']+15}"),
                    a(f"v_min_f32 v{b['T']+1}, v{b['T']+1}, v{b['P']+15}")))
    each(lambda b: (a(f"v_mov_b32 v{b['T']+2}, v{b['T']}"),
                    a(f"v_mov_b32 v{b['T']+3}, v{b['T']+1}")))
    each(lambda b: (a(f"v_permlane32_swap_b32 v{b['T']}, v{b['T']+2}"),
                    a(f"v_permlane32_swap_b32 v{b['T']+1}, v{b['T']+3}")))
    each(lambda b: (a(f"v_max_f32 v{b['T']}, v{b['T']}, v{b['T']+2}"),
                    a(f"v_min_f32 v{b['T']+1}, v{b['T']+1}, v{b['T']+3}")))
    for i in range(16):
        each(lambda b: (a(f"v_sub_f32 v{b['E']+i}, v{b['T']+1}, v{b['P']+i}"),
                        a(f"v_sub_f32 v{b['P']+i}, v{b['P']+i}, v{b['T']}")))
    for i in range(16):
        each(lambda b: (a(f"v_mul_f32 v{b['E']+i}, {sL}, v{b['E']+i}"),
                        a(f"v_mul_f32 v{b['P']+i}, {sL}, v{b['P']+i}")))
    for i in range(16):
        each(lambda b: (a(f"v_exp_f32 v{b['P']+i}, v{b['P']+i}"),
                        a(f"v_exp_f32 v{b['E']+i}, v{b['E']+i}")))
    each(lambda b: (a(f"v_pk_add_f32 v[{b['T']}:{b['T']+1}], v[{b['P']}:{b['P']+1}], v[{b['P']+2}:{b['P']+3}]"),
                    a(f"v_pk_add_f32 v[{b['T']+2}:{b['T']+3}], v[{b['E']}:{b['E']+1}], v[{b['E']+2}:{b['E']+3}]")))
    for i in range(4, 16, 2):
        each(lambda b: (a(f"v_pk_add_f32 v[{b['T']}:{b['T']+1}], v[{b['T']}:{b['T']+1}], v[{b['P']+i}:{b['P']+i+1}]"),
                        a(f"v_pk_add_f32 v[{b['T']+2}:{b['T']+3}], v[{b['T']+2}:{b['T']+3}], v[{b['E']+i}:{b['E']+i+1}]")))
    each(lambda b: (a(f"v_add_f32 v{b['T']}, v{b['T']}, v{b['T']+1}"),
                    a(f"v_add_f32 v{b['T']+2}, v{b['T']+2}, v{b['T']+3}")))
    each(lambda b: (a(f"v_mov_b32 v{b['T']+1}, v{b['T']}"),
                    a(f"v_mov_b32 v{b['T']+3}, v{b['T']+2}")))
    each(lambda b: (a(f"v_permlane32_swap_b32 v{b['T']}, v{b['T']+1}"),
                    a(f"v_permlane32_swap_b32 v{b['T']+2}, v{b['T']+3}")))
    each(lambda b: (a(f"v_add_f32 v{b['T']}, v{b['T']}, v{b['T']+1}"),
                    a(f"v_add_f32 v{b['T']+2}, v{b['T']+2}, v{b['T']+3}")))
    each(lambda b: (a(f"v_rcp_f32 v{b['T']}, v{b['T']}"),
                    a(f"v_rcp_f32 v{b['T']+2}, v{b['T']+2}")))
    for i in range(0, 16, 2):
        each(lambda b: (a(f"v_pk_mul_f32 v[{b['P']+i}:{b['P']+i+1}], v[{b['P']+i}:{b['P']+i+1}], v[{b['T']}:{b['T']+1}] op_sel_hi:[1,0]"),
                        a(f"v_pk_mul_f32 v[{b['E']+i}:{b['E']+i+1}], v[{b['E']+i}:{b['E']+i+1}], v[{b['T']+2}:{b['T']+3}] op_sel_hi:[1,0]")))
    for i in range(8):
        each(lambda b: (a(f"v_cvt_pk_bf16_f32 v{b['O']+i}, v{b['P']+2*i}, v{b['P']+2*i+1}"),
                        a(f"v_cvt_pk_bf16_f32 v{b['O']+8+i}, v{b['E']+2*i}, v{b['E']+2*i+1}")))


class VmQ:
    def __init__(self):
        self.q = []

    def issue(self, tag, w=1):
        self.q.append((tag, w))

    def need(self, tags):
        last = -1
        for i, (t, w) in enumerate(self.q):
            if t in tags:
                last = i
        assert last >= 0, tags
        return min(63, sum(w for (t, w) in self.q[last + 1:]))


K1_QKV0, K1_G0, K1_U0 = 0, 6144, 6144 + 7168 + 128
K1_STAGE = K1_U0 + 7168
K1_NS = 4
K1_WPHI = K1_STAGE * K1_NS
K1_RED = K1_WPHI + 2048
K1_ZR = K1_RED + 4 * 8192
K1_LDS = K1_ZR + 4 * 512


def gen_k1(a, cfg):
    L = 'k1_gemm1_kernel'
    kernel_head(a, L)
    sA, sB0, sW, sP = 8, 12, 32, 36
    sOff, sStep, sDst = 40, 45, 50
    sAo, sCnt, sWave, sHead, sMt = 55, 56, 57, 58, 59
    sCs, sCd, sEx = 3, 4, 5
    vLane, vDma, vA, vGU, vQ = 1, 2, 7, 8, 10
    ACC_V = 32
    aRing, aB, aI, aOnes, aWp = 96, 160, 200, 208, 212

    def acc(rb, j):
        if j < 3:
            return ('a', (j * 2 + rb) * 16)
        return ('v', ACC_V + ((j - 3) * 2 + rb) * 16)

    def accs(rb, j):
        k, b = acc(rb, j)
        return vr(b, 16, k)

    a('s_cmp_ge_u32 s2, 256')
    a(f's_cbranch_scc1 {L}_end')
    stamp(a, cfg, 0)
    stamp(a, cfg, 1)
    stampv(a, cfg, 19, 0, 4)
    a(f's_load_dwordx4 s[60:63], s[0:1], {KA_WQKV}')
    a(f's_load_dwordx4 s[64:67], s[0:1], {KA_WG}')
    a(f's_load_dwordx2 s[68:69], s[0:1], {KA_WS}')
    a(f's_load_dwordx2 s[4:5], s[0:1], {KA_WD}')
    a(f's_load_dwordx2 s[6:7], s[0:1], {KA_WO}')
    a('v_lshrrev_b32 v12, 6, v0')
    a(f'v_and_b32 v{vLane}, 63, v0')
    a(f'v_readfirstlane_b32 s{sWave}, v12')
    a('s_and_b32 s70, s2, 7')
    a('s_lshl_b32 s70, s70, 2')
    a('s_bfe_u32 s71, s2, 0x20003')
    a(f's_add_u32 s{sHead}, s70, s71')
    a(f's_lshr_b32 s{sMt}, s2, 5')
    a(f'v_lshlrev_b32 v{vA}, 4, v{vLane}')
    a('s_waitcnt lgkmcnt(0)')
    stampv(a, cfg, 19, 1, 4)
    a(f's_lshl_b32 s70, s{sMt}, 2')
    a(f's_add_u32 s70, s70, s{sWave}')
    a('s_lshl_b32 s70, s70, 17')
    srd_off(a, sA, 's68', 's69', 's70', 131072)
    srd(a, sP, 's62', 's63', 65536)
    a(f's_and_b32 s70, s{sWave}, 1')
    a('s_lshl_b32 s70, s70, 10')
    a(f's_lshl_b32 s71, s{sHead}, 11')
    a('s_add_u32 s71, s71, s70')
    a(f's_add_u32 m0, s70, {K1_WPHI}')
    a(f'buffer_load_dwordx4 v{vA}, s[{sP}:{sP+3}], s71 offen lds')
    a(f's_mul_i32 s72, s{sWave}, 5')
    a(f's_lshl_b32 s80, s{sHead}, 6')
    a(f's_mul_i32 s81, s{sHead}, 224')
    a('s_mov_b32 s84, 4682')
    a(f's_mov_b32 s85, {K1_G0}')
    for t in range(5):
        d = sB0 + 4 * t
        a(f's_add_u32 s73, s72, {t}')
        a('s_cmp_ge_u32 s73, 13')
        a(f's_cselect_b32 s{d}, s66, s64')
        a(f's_cselect_b32 s{d+1}, s67, s65')
        a('s_cselect_b32 s74, 13, 6')
        a(f's_cselect_b32 s75, {K1_U0}, s85')
        a('s_cmp_lt_u32 s73, 6')
        a(f's_cselect_b32 s{d}, s60, s{d}')
        a(f's_cselect_b32 s{d+1}, s61, s{d+1}')
        a('s_cselect_b32 s74, 0, s74')
        a(f's_cselect_b32 s75, {K1_QKV0}, s75')
        a('s_cselect_b32 s76, 5462, s84')
        a('s_cselect_b32 s77, 12, 14')
        a('s_cselect_b32 s79, 1984, 0')
        a('s_cselect_b32 s82, s80, s81')
        a('s_lshl_b32 s78, s77, 9')
        a(f's_lshl_b32 s{d+2}, s78, 10')
        a(f's_and_b32 s{d+1}, s{d+1}, 0xffff')
        a(f's_mov_b32 s{d+3}, 0x20000')
        a('s_sub_u32 s74, s73, s74')
        a(f's_lshl_b32 s{sStep+t}, s78, 5')
        a(f's_mov_b32 s{sOff+t}, 0')
        a('s_lshl_b32 s83, s74, 10')
        a(f's_add_u32 s{sDst+t}, s83, s75')
        a('s_lshl_b32 s83, s74, 6')
        a(f'v_add_u32 v12, s83, v{vLane}')
        a('v_mul_u32_u24 v13, s76, v12')
        a('v_lshrrev_b32 v13, 16, v13')
        a('v_mul_u32_u24 v14, s77, v13')
        a('v_sub_u32 v14, v12, v14')
        a('v_mul_u32_u24 v13, s78, v13')
        a('v_lshl_add_u32 v13, v14, 4, v13')
        a('v_lshrrev_b32 v14, 2, v14')
        a('v_mul_u32_u24 v14, s79, v14')
        a(f'v_add3_u32 v{vDma+t}, v13, v14, s82')
    a(f's_mov_b32 s{sAo}, 0')

    vm = VmQ()
    inloop = [False]

    def dma(t, chunk):
        if inloop[0] and cfg.get('k1_nodma'):
            vm.issue(('B', chunk))
            return
        slot = chunk % K1_NS
        a(f's_add_u32 m0, s{sDst+t}, {slot*K1_STAGE}')
        d = sB0 + 4 * t
        a(f'buffer_load_dwordx4 v{vDma+t}, s[{d}:{d+3}], s{sOff+t} offen lds')
        a(f's_add_u32 s{sOff+t}, s{sOff+t}, s{sStep+t}')
        vm.issue(('B', chunk))

    def aload(step, rb):
        if inloop[0] and cfg.get('k1_noa'):
            vm.issue(('A', step))
            return
        e = step % 8
        off = (step & 1) * 2048 + rb * 1024
        a(f'buffer_load_dwordx4 {ar(aRing+e*8+rb*4, 4)}, v{vA}, s[{sA}:{sA+3}], s{sAo} offen offset:{off}')
        vm.issue(('A', step))
        if (step & 1) and rb == 1:
            a(f's_add_u32 s{sAo}, s{sAo}, 4096')

    def bread(step, j, half):
        if inloop[0] and cfg.get('k1_nods'):
            return
        chunk = step >> 1
        slot = chunk % K1_NS
        t = step & 1
        hi_set = slot >> 1
        sb = (slot & 1) * K1_STAGE
        if j < 3:
            off = sb + K1_QKV0 + (t * 16 + 4 * half) * 192 + 64 * j
            addr = vQ + hi_set
        else:
            off = sb + K1_G0 + (t * 16 + 4 * half) * 224 + 32 * (j - 3)
            addr = vGU + hi_set
        a(f'ds_read_b64_tr_b16 {ar(aB+4*j+2*half, 2)}, v{addr} offset:{off}')

    stampv(a, cfg, 19, 2, 4)
    for s in range(-7, -1):
        if s & 1:
            for t in range(5):
                dma(t, (s + 7) // 2)
        else:
            for st in (s + 6, s + 7):
                for rb in range(2):
                    aload(st, rb)
    stampv(a, cfg, 19, 3, 4)
    srd(a, sW, 's68', 's69', WS_USED)
    srd(a, sP, 's6', 's7', 1024 * 2048)
    a('s_lshl_b32 s70, s2, 2')
    a(f's_add_u32 s70, s70, s{sWave}')
    a(f's_lshl_b32 s{sCs}, s70, 10')
    a(f's_add_u32 s71, s{sCs}, {1024*1024}')
    a(f'buffer_load_dwordx4 v[20:23], v{vA}, s[{sP}:{sP+3}], s{sCs} offen')
    a(f'buffer_load_dwordx4 v[24:27], v{vA}, s[{sP}:{sP+3}], s71 offen')
    srd(a, sP, 's4', 's5', 3584 * 2048)
    a(f's_mov_b32 s{sCd}, {WDT_OFF}')
    a(f's_lshl_b32 s{sEx}, s70, 13')
    a(f's_add_u32 s{sEx}, s{sEx}, {EX_OFF}')
    a('s_lshr_b32 s71, s70, 1')
    a('s_and_b32 s72, s70, 1')
    a('s_and_b32 s73, s71, 1')
    a('s_lshl_b32 s73, s73, 1')
    a('s_and_b32 s74, s71, 2')
    a('s_lshl_b32 s75, s74, 2')
    a('s_or_b32 s73, s73, s75')
    a(f'v_and_b32 v12, 15, v{vLane}')
    a('v_xor_b32 v12, s73, v12')
    a(f'v_lshrrev_b32 v13, 4, v{vLane}')
    a('s_lshl_b32 s75, s72, 2')
    a('v_add_u32 v13, s75, v13')
    a(f'v_mul_u32_u24 v13, {3584*256}, v13')
    a('v_lshl_add_u32 v13, v12, 4, v13')
    a('s_lshl_b32 s75, s71, 8')
    a('v_add_u32 v18, s75, v13')
    a(f'v_and_b32 v12, 7, v{vLane}')
    a('v_xor_b32 v12, s74, v12')
    a(f'v_lshrrev_b32 v13, 3, v{vLane}')
    a('s_lshl_b32 s75, s72, 3')
    a('v_add_u32 v13, s75, v13')
    a('v_lshlrev_b32 v13, 17, v13')
    a('v_lshl_add_u32 v13, v12, 4, v13')
    a('s_lshl_b32 s75, s71, 7')
    a('v_add_u32 v17, s75, v13')
    for i in range(4):
        a(f'v_mov_b32 v{28+i}, -1')
    a(f'v_lshrrev_b32 v12, 5, v{vLane}')
    a(f'v_bfe_u32 v13, v{vLane}, 2, 2')
    a('v_lshl_add_u32 v12, v12, 3, v13')
    a(f'v_bfe_u32 v13, v{vLane}, 4, 1')
    a(f'v_and_b32 v14, 3, v{vLane}')
    a('v_mul_u32_u24 v15, 224, v12')
    a(f'v_mul_u32_u24 v16, {K1_U0-K1_G0}, v13')
    a('v_lshl_add_u32 v15, v14, 3, v15')
    a(f'v_add_u32 v{vGU}, v15, v16')
    a(f'v_add_u32 v{vGU+1}, {2*K1_STAGE}, v{vGU}')
    a('v_mul_u32_u24 v15, 192, v12')
    a('v_lshl_add_u32 v15, v13, 5, v15')
    a(f'v_lshl_add_u32 v{vQ}, v14, 3, v15')
    a(f'v_add_u32 v{vQ+1}, {2*K1_STAGE}, v{vQ}')
    a(f'v_and_b32 v12, 31, v{vLane}')
    a(f'v_lshrrev_b32 v13, 5, v{vLane}')
    a('v_lshlrev_b32 v13, 2, v13')
    a('v_sub_u32 v12, v12, v13')
    a('v_mov_b32 v14, 0x3f80')
    a('v_mov_b32 v15, 0x3f800000')
    for t in range(2):
        for rho in range(4):
            c = 16 * t + 8 * (rho >> 1) + 2 * (rho & 1)
            a(f'v_cmp_eq_u32 vcc, {c}, v12')
            a('v_cndmask_b32 v16, 0, v14, vcc')
            a(f'v_cmp_eq_u32 vcc, {c+1}, v12')
            a('v_cndmask_b32 v16, v16, v15, vcc')
            a(f'v_accvgpr_write_b32 a{aI+4*t+rho}, v16')
    a('v_mov_b32 v16, 0x3f803f80')
    for i in range(4):
        a(f'v_accvgpr_write_b32 a{aOnes+i}, v16')
    stampv(a, cfg, 19, 4, 4)
    for i in range(96):
        a(f'v_accvgpr_write_b32 a{i}, 0')
    for i in range(ACC_V, 256):
        a(f'v_mov_b32 v{i}, 0')
    stampv(a, cfg, 19, 5, 4)
    a(f's_waitcnt vmcnt({vm.need([("B", 0)])})')
    a('s_barrier')
    stampv(a, cfg, 19, 6, 4)
    for j in range(10):
        bread(0, j, 0)
        bread(0, j, 1)
    for t in range(5):
        dma(t, 3)
    a(f's_mov_b32 s{sCnt}, 0')
    stamp(a, cfg, 2)
    if cfg.get('prof') == 2:
        a('s_memtime s[98:99]')
        a('s_memrealtime s[100:101]')
        a('s_waitcnt lgkmcnt(0)')
        a('v_writelane_b32 v19, s98, 63')
        a('v_writelane_b32 v16, s100, 63')
    stampv(a, cfg, 19, 7, 4)
    inloop[0] = True

    waits = {}

    def step(s, emit=True):
        odd = s & 1
        e = s % 8
        for m in range(20):
            j, rb = m >> 1, m & 1
            if m == 0 and not odd:
                n = vm.need([('A', s), ('A', s + 1)])
                waits[(s % 8, 'A')] = waits.get((s % 8, 'A'), []) + [n]
                a(f's_waitcnt vmcnt({n}) lgkmcnt(10)')
            if m == 10 and not odd:
                a('s_waitcnt lgkmcnt(6)')
            xf = ar(aRing + e * 8 + rb * 4, 4)
            wf = ar(aB + 4 * j, 4)
            if j == 2:
                a(f'{MFMA} {accs(rb, j)}, {xf}, {wf}, {accs(rb, j)}')
            else:
                a(f'{MFMA} {accs(rb, j)}, {wf}, {xf}, {accs(rb, j)}')
            if odd:
                p = (s + 1) // 2
                if m == 3:
                    n = vm.need([('B', p)])
                    waits[(s % 8, 'B')] = waits.get((s % 8, 'B'), []) + [n]
                    a(f's_waitcnt vmcnt({n}) lgkmcnt(0)')
                    if not cfg.get('k1_nobar'):
                        a('s_barrier')
                    bread(s + 1, 0, 0)
                    bread(s + 1, 0, 1)
                elif m == 4:
                    bread(s + 1, 1, 0)
                    bread(s + 1, 1, 1)
                elif m > 4 and rb == 1:
                    bread(s + 1, j, 0)
                    bread(s + 1, j, 1)
                elif m in (6, 8, 10, 12, 14):
                    dma((m - 6) // 2, p + 3)
            else:
                if rb == 1:
                    bread(s + 1, j, 0)
                    bread(s + 1, j, 1)
                elif m in (2, 6, 12, 16):
                    k = (2, 6, 12, 16).index(m)
                    aload(s + 6 + (k >> 1), k & 1)
                elif m == 8 and e == 0 and not cfg.get('k1_nocopy'):
                    a(f'buffer_load_dwordx4 v[12:15], v{vA}, s[{sP}:{sP+3}], s{sCs} offen')
                    a(f's_add_u32 s{sCs}, s{sCs}, {1024*1024}')
                    vm.issue(('C', s))
                elif m == 8 and e == 2 and not cfg.get('k1_nosent'):
                    a(f'buffer_store_dwordx4 v[28:31], v{vA}, s[{sW}:{sW+3}], s{sEx} offen')
                    a(f's_add_u32 s{sEx}, s{sEx}, 1024')
                    vm.issue(('S', s))
                elif m == 8 and e == 6 and not cfg.get('k1_nocopy'):
                    a(f's_cmp_eq_u32 s{sCnt}, 7')
                    a(f's_cselect_b32 s{sCd}, {WS_USED}, s{sCd}')
                    n = vm.need([('C', s - 6)])
                    waits[(s % 8, 'C')] = waits.get((s % 8, 'C'), []) + [n]
                    a(f's_waitcnt vmcnt({n})')
                    a(f'buffer_store_dwordx4 v[12:15], v18, s[{sW}:{sW+3}], s{sCd} offen')
                    a(f's_add_u32 s{sCd}, s{sCd}, {512*256}')
                    vm.issue(('S', s))

    a.raw('.p2align 6')
    a.label(f'{L}_loop')
    for s in range(8):
        step(s)
    if cfg.get('prof') == 2:
        a('s_memtime s[98:99]')
        a('s_memrealtime s[100:101]')
        a('s_waitcnt lgkmcnt(0)')
        a(f's_mov_b32 m0, s{sCnt}')
        a('s_nop 4')
        a('v_writelane_b32 v19, s98, m0')
        a('v_writelane_b32 v16, s100, m0')
    a(f's_add_u32 s{sCnt}, s{sCnt}, 1')
    a(f's_cmp_lt_u32 s{sCnt}, 8')
    a(f's_cbranch_scc1 {L}_loop')
    saved_lines, saved_hist = a.lines, a.hist
    a.lines = []
    for s in range(8, 16):
        step(s)
    a.lines, a.hist = saved_lines, saved_hist
    for k, v in waits.items():
        assert v[0] <= v[1], (k, v)

    inloop[0] = False
    stampv(a, cfg, 19, 8, 4)
    stamp(a, cfg, 3)
    a.nop(16)
    a(f's_mov_b32 s70, {WOT_OFF}')
    a(f's_mov_b32 s71, {WOT_OFF + 512*128}')
    a(f'buffer_store_dwordx4 v[20:23], v17, s[{sW}:{sW+3}], s70 offen')
    a(f'buffer_store_dwordx4 v[24:27], v17, s[{sW}:{sW+3}], s71 offen')
    a(f'v_lshrrev_b32 v12, 5, v{vLane}')
    a(f'v_bfe_u32 v13, v{vLane}, 2, 2')
    a('v_lshl_add_u32 v12, v12, 2, v13')
    a('v_lshlrev_b32 v12, 6, v12')
    a(f'v_bfe_u32 v13, v{vLane}, 4, 1')
    a('v_lshl_add_u32 v12, v13, 5, v12')
    a(f'v_and_b32 v13, 3, v{vLane}')
    a('v_lshl_add_u32 v12, v13, 3, v12')
    a(f'v_add_u32 v12, {K1_WPHI}, v12')
    for t in range(2):
        for h in range(2):
            a(f'ds_read_b64_tr_b16 {ar(aWp+4*t+2*h, 2)}, v12 offset:{(16*t+8*h)*64}')
    a(f's_lshl_b32 s70, s{sMt}, 3')
    a(f's_lshl_b32 s71, s{sWave}, 1')
    a('s_add_u32 s70, s70, s71')
    a(f's_mul_i32 s71, s70, {HO_RB}')
    a(f's_mul_i32 s72, s{sHead}, {7*1024}')
    a('s_add_u32 s71, s71, s72')
    a(f's_add_u32 s71, s71, {HO_OFF}')
    a('s_add_u32 s72, s71, 4096')
    a(f's_add_u32 s73, s71, {HO_RB}')
    a(f's_add_u32 s74, s72, {HO_RB}')
    for j in range(3, 10):
        for rb in range(2):
            G = acc(rb, j)[1]
            for i in range(0, 8, 2):
                a(f'v_pk_mul_f32 v[{G+i}:{G+i+1}], v[{G+i}:{G+i+1}], v[{G+8+i}:{G+9+i}]')
            for i in range(4):
                a(f'v_cvt_pk_bf16_f32 v{G+i}, v{G+2*i}, v{G+2*i+1}')
            jj = j - 3
            so = 71 + 2 * rb + (jj >> 2)
            a(f'buffer_store_dwordx4 v[{G}:{G+3}], v{vA}, s[{sW}:{sW+3}], s{so} offen offset:{(jj&3)*1024}')
    stampv(a, cfg, 19, 9, 4)
    a('s_lshl_b32 s71, s70, 16')
    a(f's_lshl_b32 s72, s{sHead}, 11')
    a('s_add_u32 s71, s71, s72')
    a(f's_add_u32 s71, s71, {Q_OFF}')
    a('s_add_u32 s72, s71, 65536')
    a(f's_mov_b32 s75, {LOG2E}')
    a('s_mov_b32 s76, 0xffff0000')

    def base(rb):
        return 32 + rb * 96
    KVp, KVm, Zp, Zm = 224, 240, 0, 16

    def rd_cvt(src_a, tmp, dst):
        for i in range(16):
            a(f'v_accvgpr_read_b32 v{tmp+i}, a{src_a+i}')
        for i in range(8):
            a(f'v_cvt_pk_bf16_f32 v{dst+i}, v{tmp+2*i}, v{tmp+2*i+1}')

    for rb in range(2):
        b = base(rb)
        rd_cvt(acc(rb, 1)[1], b + 16, b + 32)
    a('s_waitcnt lgkmcnt(0)')
    for rb in range(2):
        b = base(rb)
        a(f'{MFMA} {vr(b,16)}, {ar(aWp,4)}, {vr(b+32,4)}, 0')
    for rb in range(2):
        b = base(rb)
        a(f'{MFMA} {vr(b,16)}, {ar(aWp+4,4)}, {vr(b+36,4)}, {vr(b,16)}')
    for rb in range(2):
        b = base(rb)
        rd_cvt(acc(rb, 0)[1], b + 16, b + 40)
        a(f'buffer_store_dwordx4 {vr(b+40,4)}, v{vA}, s[{sW}:{sW+3}], s{71+rb} offen')
        a(f'buffer_store_dwordx4 {vr(b+44,4)}, v{vA}, s[{sW}:{sW+3}], s{71+rb} offen offset:1024')
    for rb in range(2):
        b = base(rb)
        rd_cvt(acc(rb, 2)[1], b + 16, b + 80)
    stampv(a, cfg, 19, 10, 4)
    softmax_pm(a, [dict(P=base(rb), E=base(rb) + 16, T=base(rb) + 32, O=base(rb) + 48) for rb in range(2)], 's75', 's76')
    stampv(a, cfg, 19, 11, 4)
    for t in range(2):
        for rb in range(2):
            b = base(rb)
            for pm in range(2):
                d = vr(b + 16 * pm, 16)
                a(f'{MFMA} {d}, {vr(b+48+8*pm+4*t,4)}, {ar(aI+4*t,4)}, {d if t else 0}')
    for rb in range(2):
        b = base(rb)
        for pm in range(2):
            for i in range(8):
                a(f'v_cvt_pk_bf16_f32 v{b+64+8*pm+i}, v{b+16*pm+2*i}, v{b+16*pm+2*i+1}')
    first = True
    for rb in range(2):
        b = base(rb)
        for t in range(2):
            for pm in range(2):
                d = vr(KVm if pm else KVp, 16)
                a(f'{MFMA} {d}, {vr(b+64+8*pm+4*t,4)}, {vr(b+80+4*t,4)}, {0 if first else d}')
            for pm in range(2):
                d = ar(Zm if pm else Zp, 16)
                a(f'{MFMA} {d}, {ar(aOnes,4)}, {vr(b+64+8*pm+4*t,4)}, {0 if first else d}')
            first = False
    stampv(a, cfg, 19, 12, 4)
    a(f's_lshl_b32 s70, s{sWave}, 13')
    a(f's_add_u32 s70, s70, {K1_RED}')
    a(f'v_add_u32 v12, s70, v{vA}')
    a(f's_lshl_b32 s70, s{sWave}, 9')
    a(f's_add_u32 s70, s70, {K1_ZR}')
    a(f'v_lshlrev_b32 v13, 2, v{vLane}')
    a('v_add_u32 v14, s70, v13')
    for q in range(8):
        a(f'ds_write_b128 v12, {vr(KVp+4*q,4)} offset:{q*1024}')
    a(f'ds_write_b32 v14, a{Zp}')
    a(f'ds_write_b32 v14, a{Zm} offset:256')
    a(f's_lshl_b32 s70, s{sWave}, 11')
    a(f's_add_u32 s70, s70, {K1_RED}')
    a(f'v_add_u32 v12, s70, v{vA}')
    a(f'v_lshrrev_b32 v14, 5, v{vLane}')
    a('v_lshlrev_b32 v14, 8, v14')
    a(f'v_and_b32 v15, 31, v{vLane}')
    a('v_lshl_add_u32 v14, v15, 2, v14')
    a(f'v_add_u32 v14, {K1_ZR}, v14')
    a(f's_lshl_b32 s70, s{sHead}, 3')
    a(f's_add_u32 s70, s70, s{sMt}')
    a('s_lshl_b32 s71, s70, 13')
    a(f's_lshl_b32 s72, s{sWave}, 11')
    a('s_add_u32 s71, s71, s72')
    a(f's_add_u32 s71, s71, {KVP_OFF}')
    a('s_lshl_b32 s72, s70, 8')
    a(f's_add_u32 s72, s72, {ZP_OFF}')
    a('s_waitcnt lgkmcnt(0)')
    a('s_barrier')
    for w in range(4):
        for q in range(2):
            a(f'ds_read_b128 {vr(32+w*8+q*4,4)}, v12 offset:{w*8192+q*1024}')
    for w in range(4):
        a(f'ds_read_b32 v{64+w}, v14 offset:{w*512}')
    a('s_waitcnt lgkmcnt(0)')
    for i in range(0, 8, 2):
        a(f'v_pk_add_f32 v[{32+i}:{33+i}], v[{32+i}:{33+i}], v[{40+i}:{41+i}]')
        a(f'v_pk_add_f32 v[{48+i}:{49+i}], v[{48+i}:{49+i}], v[{56+i}:{57+i}]')
    for i in range(0, 8, 2):
        a(f'v_pk_add_f32 v[{32+i}:{33+i}], v[{32+i}:{33+i}], v[{48+i}:{49+i}]')
    a('v_add_f32 v64, v64, v65')
    a('v_add_f32 v66, v66, v67')
    a('v_add_f32 v64, v64, v66')
    a(f'buffer_store_dwordx4 v[32:35], v{vA}, s[{sW}:{sW+3}], s71 offen')
    a(f'buffer_store_dwordx4 v[36:39], v{vA}, s[{sW}:{sW+3}], s71 offen offset:1024')
    stampv(a, cfg, 19, 13, 4)
    stampv_store(a, cfg, 19, 16, 4)
    a(f's_cmp_lg_u32 s{sWave}, 0')
    a(f's_cbranch_scc1 {L}_end')
    a(f'buffer_store_dword v64, v13, s[{sW}:{sW+3}], s72 offen')
    if cfg.get('prof'):
        a('s_waitcnt vmcnt(0)')
    stamp(a, cfg, 4)
    stamp(a, cfg, 5)
    stamp_store(a, cfg, 1)
    if cfg.get('prof') == 2:
        a(f's_load_dwordx2 s[4:5], s[0:1], {KA_WS}')
        a('s_waitcnt lgkmcnt(0)')
        a(f's_lshl_b32 s3, s2, 9')
        a(f's_add_u32 s3, s3, {PROF_OFF + 0x100000}')
        a('s_add_u32 s4, s4, s3')
        a('s_addc_u32 s5, s5, 0')
        a('s_and_b32 s5, s5, 0xffff')
        a('s_mov_b32 s6, 512')
        a('s_mov_b32 s7, 0x20000')
        a('buffer_store_dword v19, v13, s[4:7], 0 offen')
        a('buffer_store_dword v16, v13, s[4:7], 0 offen offset:256')
    a.label(f'{L}_end')
    a('s_endpgm')
    return L, kernel_desc(L, 512, 102, 256), (256, 256, K1_LDS)


def ophase(a, sWs, sWphiLo, sHead, sMt, sWave, vLane, vL16, lds0, sW, sP, sT, vb, sc=''):
    L_KV, L_WP, L_Z = lds0, lds0 + 4096, lds0 + 6144
    srd(a, sP, f's{sWphiLo}', f's{sWphiLo+1}', 65536)
    a(f's_and_b32 s{sT}, s{sWave}, 1')
    a(f's_lshl_b32 s{sT}, s{sT}, 10')
    a(f's_lshl_b32 s{sT+1}, s{sHead}, 11')
    a(f's_add_u32 s{sT+1}, s{sT+1}, s{sT}')
    a(f's_add_u32 m0, s{sT}, {L_WP}')
    a(f'buffer_load_dwordx4 v{vL16}, s[{sP}:{sP+3}], s{sT+1} offen lds')
    a(f's_lshl_b32 s{sT}, s{sHead}, 16')
    a(f's_lshl_b32 s{sT+1}, s{sWave}, 11')
    a(f's_add_u32 s{sT}, s{sT}, s{sT+1}')
    a(f's_add_u32 s{sT}, s{sT}, {KVP_OFF}')
    KL = vb
    for m in range(8):
        for q in range(2):
            a(f'buffer_load_dwordx4 {vr(KL+m*8+q*4,4)}, v{vL16}, s[{sW}:{sW+3}], s{sT} offen offset:{q*1024}')
        if m < 7:
            a(f's_add_u32 s{sT}, s{sT}, 8192')
    ZL = vb + 64
    vT = vb + 72
    a(f's_lshl_b32 s{sT}, s{sHead}, 11')
    a(f's_add_u32 s{sT}, s{sT}, {ZP_OFF}')
    a(f'v_lshlrev_b32 v{vT}, 2, v{vLane}')
    for m in range(8):
        a(f'buffer_load_dword v{ZL+m}, v{vT}, s[{sW}:{sW+3}], s{sT} offen offset:{m*256}')
    QF = vb + 80
    a(f's_lshl_b32 s{sT+2}, s{sMt}, 3')
    a(f's_lshl_b32 s{sT+1}, s{sWave}, 1')
    a(f's_add_u32 s{sT+2}, s{sT+2}, s{sT+1}')
    a(f's_lshl_b32 s{sT}, s{sT+2}, 16')
    a(f's_lshl_b32 s{sT+1}, s{sHead}, 11')
    a(f's_add_u32 s{sT}, s{sT}, s{sT+1}')
    a(f's_add_u32 s{sT}, s{sT}, {Q_OFF}')
    a(f's_add_u32 s{sT+3}, s{sT}, 65536')
    for rb in range(2):
        for t in range(2):
            a(f'buffer_load_dwordx4 {vr(QF+rb*8+t*4,4)}, v{vL16}, s[{sW}:{sW+3}], s{sT+3*rb} offen offset:{t*1024}')
    a(f's_mul_i32 s{sT+4}, s{sT+2}, {HO_RB}')
    a(f's_add_u32 s{sT+4}, s{sT+4}, s{sT+1}')
    a(f's_add_u32 s{sT+4}, s{sT+4}, {HO_OFF + 224*1024}')
    a(f's_add_u32 s{sT+5}, s{sT+4}, {HO_RB}')
    a(f's_mov_b32 s{sT+6}, {LOG2E}')
    a(f's_mov_b32 s{sT+7}, 0xffff0000')
    a(f's_lshl_b32 s{sT}, s{sWave}, 10')
    a(f's_add_u32 s{sT}, s{sT}, {L_KV}')
    a(f'v_add_u32 v{vT+1}, s{sT}, v{vL16}')
    a(f'v_lshlrev_b32 v{vT+2}, 1, v{vLane}')
    a(f'v_lshrrev_b32 v{vT+3}, 5, v{vLane}')
    a(f'v_lshlrev_b32 v{vT+4}, 3, v{vT+3}')
    a(f'v_bfe_u32 v{vT+5}, v{vLane}, 2, 2')
    a(f'v_lshl_add_u32 v{vT+3}, v{vT+3}, 2, v{vT+5}')
    a(f'v_lshlrev_b32 v{vT+3}, 6, v{vT+3}')
    a(f'v_bfe_u32 v{vT+5}, v{vLane}, 4, 1')
    a(f'v_lshl_add_u32 v{vT+3}, v{vT+5}, 5, v{vT+3}')
    a(f'v_and_b32 v{vT+5}, 3, v{vLane}')
    a(f'v_lshl_add_u32 v{vT+3}, v{vT+5}, 3, v{vT+3}')
    a('s_waitcnt vmcnt(12)')
    for stride in (32, 16, 8):
        for o in range(0, stride, 2):
            a(f'v_pk_add_f32 v[{KL+o}:{KL+o+1}], v[{KL+o}:{KL+o+1}], v[{KL+stride+o}:{KL+stride+o+1}]')
    for i in range(4):
        a(f'v_cvt_pk_bf16_f32 v{KL+i}, v{KL+2*i}, v{KL+2*i+1}')
    a(f'ds_write_b128 v{vT+1}, {vr(KL,4)}')
    a('s_waitcnt vmcnt(4)')
    for stride in (4, 2):
        for o in range(0, stride, 2):
            a(f'v_pk_add_f32 v[{ZL+o}:{ZL+o+1}], v[{ZL+o}:{ZL+o+1}], v[{ZL+stride+o}:{ZL+stride+o+1}]')
    a(f'v_add_f32 v{ZL}, v{ZL}, v{ZL+1}')
    a(f'v_cvt_pk_bf16_f32 v{ZL}, v{ZL}, v{ZL}')
    a(f'ds_write_b16 v{vT+2}, v{ZL} offset:{L_Z}')
    a('s_waitcnt lgkmcnt(0)')
    a('s_barrier')
    WP = vb
    KVF = vb + 8
    ZF = vb + 24
    for t in range(2):
        for h in range(2):
            a(f'ds_read_b64_tr_b16 {vr(WP+4*t+2*h,2)}, v{vT+3} offset:{L_WP+(16*t+8*h)*64}')
    for f in range(4):
        a(f'ds_read_b128 {vr(KVF+4*f,4)}, v{vL16} offset:{L_KV+f*1024}')
    for f in range(4):
        for h in range(2):
            a(f'ds_read_b64 {vr(ZF+4*f+2*h,2)}, v{vT+4} offset:{L_Z+f*32+h*16}')
    B0 = vb + 96

    def base(rb):
        return B0 + rb * 56
    a('s_waitcnt vmcnt(0) lgkmcnt(12)')
    for t in range(2):
        for rb in range(2):
            d = vr(base(rb), 16)
            a(f'{MFMA} {d}, {vr(WP+4*t,4)}, {vr(QF+rb*8+t*4,4)}, {d if t else 0}')
    softmax_pm(a, [dict(P=base(rb), E=base(rb) + 16, T=base(rb) + 32, O=base(rb) + 40) for rb in range(2)],
               f's{sT+6}', f's{sT+7}')
    a('s_waitcnt lgkmcnt(0)')
    for f in range(4):
        for rb in range(2):
            b = base(rb)
            a(f'{MFMA} {vr(b+16,16)}, {vr(ZF+4*f,4)}, {vr(b+40+4*f,4)}, {vr(b+16,16) if f else 0}')
            a(f'{MFMA} {vr(b,16)}, {vr(KVF+4*f,4)}, {vr(b+40+4*f,4)}, {vr(b,16) if f else 0}')
    for rb in range(2):
        b = base(rb)
        D = b + 16
        a(f'v_cvt_pk_bf16_f32 v{D}, v{D}, v{D}')
        a(f'v_lshlrev_b32 v{D}, 16, v{D}')
        a(f'v_add_f32 v{D}, 0x358637bd, v{D}')
        a(f'v_cvt_pk_bf16_f32 v{D}, v{D}, v{D}')
        a(f'v_lshlrev_b32 v{D}, 16, v{D}')
        a(f'v_rcp_f32 v{D}, v{D}')
    for rb in range(2):
        b = base(rb)
        D = b + 16
        for i in range(8):
            a(f'v_cvt_pk_bf16_f32 v{b+32+i}, v{b+2*i}, v{b+2*i+1}')
        for i in range(8):
            a(f'v_lshlrev_b32 v{b+2*i}, 16, v{b+32+i}')
            a(f'v_and_b32 v{b+2*i+1}, s{sT+7}, v{b+32+i}')
        for i in range(0, 16, 2):
            a(f'v_pk_mul_f32 v[{b+i}:{b+i+1}], v[{b+i}:{b+i+1}], v[{D}:{D+1}] op_sel_hi:[1,0]')
        for i in range(8):
            a(f'v_cvt_pk_bf16_f32 v{b+32+i}, v{b+2*i}, v{b+2*i+1}')
        a(f'buffer_store_dwordx4 {vr(b+32,4)}, v{vL16}, s[{sW}:{sW+3}], s{sT+4+rb} offen{sc}')
        a(f'buffer_store_dwordx4 {vr(b+36,4)}, v{vL16}, s[{sW}:{sW+3}], s{sT+4+rb} offen offset:1024{sc}')


def gen_k2(a):
    L = 'k2_ophase_kernel'
    kernel_head(a, L)
    a('s_cmp_ge_u32 s2, 256')
    a(f's_cbranch_scc1 {L}_end')
    a(f's_load_dwordx2 s[4:5], s[0:1], {KA_WPHI}')
    a(f's_load_dwordx2 s[6:7], s[0:1], {KA_WS}')
    a('v_lshrrev_b32 v3, 6, v0')
    a('v_and_b32 v1, 63, v0')
    a('v_readfirstlane_b32 s20, v3')
    a('v_lshlrev_b32 v2, 4, v1')
    a('s_and_b32 s21, s2, 31')
    a('s_lshr_b32 s22, s2, 5')
    a('s_waitcnt lgkmcnt(0)')
    srd(a, 8, 's6', 's7', WS_USED)
    ophase(a, 6, 4, 21, 22, 20, 1, 2, 0, 8, 12, 24, 8)
    a.label(f'{L}_end')
    a('s_endpgm')
    return L, kernel_desc(L, 216, 40, 216), (256, 256, 8192)


K3_NS = 8
K3_STAGE = 8192
K3_LDS = K3_NS * K3_STAGE


def gen_k3(a, cfg):
    L = 'k3_gemm2_kernel'
    kernel_head(a, L)
    sA, sB, sX, sO = 8, 12, 16, 20
    sWave, sMt, sNt, sAo, sBo, sStage, sCnt, sDst = 24, 25, 26, 27, 28, 29, 30, 31
    vLane, vL16, vDma, vRd, vXo = 1, 2, 3, 5, 7
    ACC, GS, XR, BF, AR = 16, 48, 64, 80, 112
    a('s_cmp_ge_u32 s2, 256')
    a(f's_cbranch_scc1 {L}_end')
    stamp(a, cfg, 0)
    stamp(a, cfg, 1)
    a(f's_load_dwordx2 s[40:41], s[0:1], {KA_X}')
    a(f's_load_dwordx2 s[42:43], s[0:1], {KA_WO}')
    a(f's_load_dwordx4 s[44:47], s[0:1], {KA_WD}')
    a(f's_load_dwordx2 s[48:49], s[0:1], {KA_WS}')
    a('v_lshrrev_b32 v8, 6, v0')
    a(f'v_and_b32 v{vLane}, 63, v0')
    a(f'v_readfirstlane_b32 s{sWave}, v8')
    a(f'v_lshlrev_b32 v{vL16}, 4, v{vLane}')
    mp = cfg.get('k3_map', 0)
    if mp == 0:
        a('s_bfe_u32 s50, s2, 0x20001')
        a('s_lshl_b32 s50, s50, 2')
        a('s_bfe_u32 s51, s2, 0x20003')
        a(f's_add_u32 s{sMt}, s50, s51')
        a('s_and_b32 s50, s2, 1')
        a('s_lshl_b32 s50, s50, 3')
        a('s_lshr_b32 s51, s2, 5')
        a(f's_add_u32 s{sNt}, s50, s51')
    elif mp == 1:
        a('s_and_b32 s50, s2, 7')
        a('s_lshl_b32 s50, s50, 1')
        a('s_bfe_u32 s51, s2, 0x10003')
        a(f's_add_u32 s{sMt}, s50, s51')
        a(f's_lshr_b32 s{sNt}, s2, 4')
    elif mp == 2:
        a('s_bfe_u32 s50, s2, 0x20001')
        a('s_lshl_b32 s50, s50, 2')
        a('s_bfe_u32 s51, s2, 0x20003')
        a(f's_add_u32 s{sMt}, s50, s51')
        a('s_and_b32 s50, s2, 1')
        a('s_lshr_b32 s51, s2, 5')
        a('s_lshl_b32 s51, s51, 1')
        a(f's_add_u32 s{sNt}, s50, s51')
    elif mp == 3:
        a('s_bfe_u32 s50, s2, 0x10002')
        a('s_lshl_b32 s50, s50, 3')
        a('s_bfe_u32 s51, s2, 0x30003')
        a(f's_add_u32 s{sMt}, s50, s51')
        a('s_and_b32 s50, s2, 3')
        a('s_lshl_b32 s50, s50, 2')
        a('s_lshr_b32 s51, s2, 6')
        a(f's_add_u32 s{sNt}, s50, s51')
    a('s_waitcnt lgkmcnt(0)')
    PFD = cfg.get('k3_pf', 0)
    if PFD:
        a(f's_cmp_lg_u32 s{sWave}, 4')
        a(f's_cbranch_scc1 {L}_main')
        a(f's_and_b32 s50, s{sNt}, 3')
        a(f's_lshl_b32 s51, s{sMt}, 2')
        a('s_add_u32 s50, s50, s51')
        a(f's_mul_i32 s51, s50, {HO_RB}')
        a(f's_add_u32 s51, s51, {HO_OFF}')
        srd_off(a, sA, 's48', 's49', 's51', HO_RB)
        srd(a, sB, 's44', 's45', 3584 * 2048)
        a('s_and_b32 s43, s43, 0xffff')
        a(f's_bfe_u32 s{sAo}, s{sNt}, 0x10002')
        a(f's_lshl_b32 s{sAo}, s{sAo}, 13')
        a(f's_and_b32 s{sBo}, s{sMt}, 3')
        a(f's_lshl_b32 s{sBo}, s{sBo}, 17')
        a(f's_mov_b32 s52, s{sBo}')
        a(f'v_lshlrev_b32 v3, 7, v{vLane}')
        a(f'v_lshlrev_b32 v4, 11, v{vLane}')
        a(f's_lshl_b32 s51, s{sNt}, 7')
        a('v_add_u32 v4, s51, v4')
        a(f's_mov_b32 s{sCnt}, 0')
        a.label(f'{L}_pf')
        a(f'buffer_load_dword v5, v4, s[{sB}:{sB+3}], s{sBo} offen')
        a(f'buffer_load_dword v5, v3, s[{sA}:{sA+3}], s{sAo} offen')
        a(f's_add_u32 s{sAo}, s{sAo}, 16384')
        a(f's_add_u32 s{sBo}, s{sBo}, {256*2048}')
        a(f's_add_u32 s{sCnt}, s{sCnt}, 1')
        a(f's_cmp_eq_u32 s{sCnt}, 14')
        a(f's_cselect_b32 s{sB}, s42, s{sB}')
        a(f's_cselect_b32 s{sB+1}, s43, s{sB+1}')
        a(f's_cselect_b32 s{sB+2}, {1024*2048}, s{sB+2}')
        a(f's_cselect_b32 s{sBo}, s52, s{sBo}')
        a(f's_cmp_ge_u32 s{sCnt}, 18')
        a(f's_cbranch_scc1 {L}_end')
        a(f's_cmp_lt_u32 s{sCnt}, {PFD}')
        a(f's_cbranch_scc1 {L}_pf')
        for i in range(4):
            a('s_barrier')
        a(f's_branch {L}_pf')
        a.label(f'{L}_main')
    a(f's_lshl_b32 s50, s{sMt}, 2')
    a(f's_add_u32 s50, s50, s{sWave}')
    a(f's_mul_i32 s51, s50, {HO_RB}')
    a(f's_add_u32 s51, s51, {HO_OFF}')
    srd_off(a, sA, 's48', 's49', 's51', HO_RB)
    srd(a, sB, 's44', 's45', 3584 * 2048)
    srd(a, sX, 's40', 's41', 0x400000)
    srd(a, sO, 's46', 's47', 0x400000)
    a('s_and_b32 s43, s43, 0xffff')
    a(f'v_lshrrev_b32 v8, 3, v{vLane}')
    a(f'v_and_b32 v9, 7, v{vLane}')
    a('v_and_b32 v10, 2, v8')
    a('v_xor_b32 v9, v9, v10')
    a(f's_lshl_b32 s51, s{sWave}, 4')
    a('v_add_u32 v8, s51, v8')
    a('v_lshlrev_b32 v8, 11, v8')
    a('v_lshl_add_u32 v8, v9, 4, v8')
    a(f's_lshl_b32 s51, s{sNt}, 7')
    a(f'v_add_u32 v{vDma}, s51, v8')
    a(f'v_add_u32 v{vDma+1}, {8*2048}, v{vDma}')
    if cfg.get('k3_fakeb'):
        a(f's_lshl_b32 s53, s{sNt}, 13')
        a(f's_lshl_b32 s54, s{sWave}, 11')
        a('s_add_u32 s53, s53, s54')
        a(f'v_add_u32 v{vDma}, s53, v{vL16}')
        a(f'v_add_u32 v{vDma+1}, 1024, v{vDma}')
    a(f's_lshl_b32 s{sDst}, s{sWave}, 11')
    a(f's_mov_b32 s{sAo}, 0')
    a(f's_mov_b32 s{sBo}, 0')
    a(f's_mov_b32 s{sStage}, 0')

    vm = VmQ()

    inloop = [False]

    def dma_u(stage, u):
        slot = stage % K3_NS
        if inloop[0] and cfg.get('k3_nob'):
            vm.issue(('B', stage), 0)
            return
        a(f's_add_u32 m0, s{sDst}, {slot*K3_STAGE + u*1024}')
        a(f'buffer_load_dwordx4 v{vDma+u}, s[{sB}:{sB+3}], s{sBo} offen lds')
        vm.issue(('B', stage))

    def dma_adv():
        a(f's_add_u32 s{sBo}, s{sBo}, {64*2048}')
        a(f's_add_u32 s{sStage}, s{sStage}, 1')
        a(f's_cmp_eq_u32 s{sStage}, 56')
        a(f's_cselect_b32 s{sB}, s42, s{sB}')
        a(f's_cselect_b32 s{sB+1}, s43, s{sB+1}')
        a(f's_cselect_b32 s{sB+2}, {1024*2048}, s{sB+2}')
        a(f's_cselect_b32 s{sBo}, 0, s{sBo}')

    def aload(step):
        e = step % 32
        if inloop[0] and cfg.get('k3_noa'):
            vm.issue(('A', step), 0)
            return
        a(f'buffer_load_dwordx4 {vr(AR+4*e,4)}, v{vL16}, s[{sA}:{sA+3}], s{sAo} offen offset:{(step&3)*1024}')
        vm.issue(('A', step))
        if (step & 3) == 3:
            a(f's_add_u32 s{sAo}, s{sAo}, 4096')

    def bread(step, bs=(0, 1)):
        stage = step >> 2
        slot = stage % K3_NS
        e = step % 4
        for b in bs:
            for h in range(2):
                off = slot * K3_STAGE + ((step & 3) * 16 + 8 * h) * 128
                a(f'ds_read_b64_tr_b16 {vr(BF+e*8+b*4+2*h,2)}, v{vRd+b} offset:{off}')

    a(f'v_and_b32 v8, 31, v{vLane}')
    a('v_lshlrev_b32 v8, 11, v8')
    a(f'v_lshrrev_b32 v9, 5, v{vLane}')
    a('v_lshl_add_u32 v8, v9, 6, v8')
    a('s_lshl_b32 s52, s50, 16')
    a('s_add_u32 s52, s52, s51')
    a(f'v_add_u32 v{vXo}, s52, v8')
    for i in range(4):
        a(f'buffer_load_dwordx4 {vr(XR+4*i,4)}, v{vXo}, s[{sX}:{sX+3}], 0 offen offset:{16*i}')
    for s in range(-32, 0):
        if (s + 3) % 4 == 0:
            p = (s + 3) // 4
            if p == 0:
                a(f'v_lshrrev_b32 v8, 5, v{vLane}')
                a(f'v_bfe_u32 v9, v{vLane}, 2, 2')
                a('v_lshl_add_u32 v8, v8, 2, v9')
                a('v_lshlrev_b32 v8, 7, v8')
                a(f'v_and_b32 v10, 1, v{vLane}')
                a('v_lshl_add_u32 v8, v10, 6, v8')
                a(f'v_bfe_u32 v10, v{vLane}, 4, 1')
                a('v_lshl_add_u32 v8, v10, 4, v8')
                a(f'v_bfe_u32 v10, v{vLane}, 1, 1')
                a('v_lshl_add_u32 v8, v10, 3, v8')
                a('v_lshrrev_b32 v9, 1, v9')
                a(f'v_lshl_add_u32 v{vRd}, v9, 5, v8')
                a(f'v_xor_b32 v{vRd+1}, 32, v{vRd}')
                for i in range(32):
                    a(f'v_mov_b32 v{ACC+i}, 0')
                a(f's_waitcnt vmcnt({vm.need([("B", 0)])})')
                a('s_barrier')
        if (s + 3) // 4 + 6 >= 0:
            if (s + 3) % 4 in (0, 1):
                dma_u((s + 3) // 4 + 6, (s + 3) % 4)
            if (s + 3) % 4 == 2:
                dma_adv()
        if s >= -3:
            bread(s + 3)
        aload(s + 32)
    a(f's_mov_b32 s{sCnt}, 0')
    stamp(a, cfg, 2)
    inloop[0] = True
    waits = {}

    def step(s):
        e = s % 32
        if (s + 3) % 4 == 0:
            p = (s + 3) // 4
            n = min(vm.need([('B', p)]), vm.need([('A', s)]))
            waits.setdefault((e, 'B'), []).append(n)
            a(f's_waitcnt vmcnt({n}) lgkmcnt(8)')
            a('s_barrier')
        else:
            n = vm.need([('A', s)])
            waits.setdefault((e, 'A'), []).append(n)
            a(f's_waitcnt vmcnt({n}) lgkmcnt(8)')
        for b in range(2):
            d = vr(ACC + 16 * b, 16)
            a(f'{MFMA} {d}, {vr(BF+(s%4)*8+b*4,4)}, {vr(AR+4*e,4)}, {d}')
            bread(s + 3, (b,))
            if b == 0 and (s + 3) % 4 in (0, 1):
                dma_u((s + 3) // 4 + 6, (s + 3) % 4)
            if b == 0 and (s + 3) % 4 == 2:
                dma_adv()
        aload(s + 32)

    abl = cfg.get('k3_noa') or cfg.get('k3_nob')
    s0 = 0
    if abl:
        sl, sh = a.lines, a.hist
        a.lines = []
        for s in range(32):
            step(s)
        a.lines, a.hist = sl, sh
        waits.clear()
        s0 = 32
    a.raw('.p2align 6')
    a.label(f'{L}_loop')
    for s in range(s0, s0 + 32):
        step(s)
    a(f's_add_u32 s{sCnt}, s{sCnt}, 1')
    a(f's_cmp_lg_u32 s{sCnt}, 7')
    a(f's_cbranch_scc1 {L}_noswitch')
    a.nop(16)
    a(f's_mov_b32 s53, {LOG2E | 0x80000000}')
    a('s_mov_b32 s54, 0xffff0000')
    for i in range(16):
        a(f'v_cvt_pk_bf16_f32 v{GS+i}, v{ACC+2*i}, v{ACC+2*i+1}')
    for i in range(16):
        a(f'v_lshlrev_b32 v{ACC+2*i}, 16, v{GS+i}')
        a(f'v_and_b32 v{ACC+2*i+1}, s54, v{GS+i}')
    for half in range(4):
        o = ACC + 8 * half
        for i in range(8):
            a(f'v_mul_f32 v{8+i}, s53, v{o+i}')
        for i in range(8):
            a(f'v_exp_f32 v{8+i}, v{8+i}')
        for i in range(8):
            a(f'v_add_f32 v{8+i}, 1.0, v{8+i}')
        for i in range(8):
            a(f'v_rcp_f32 v{8+i}, v{8+i}')
        for i in range(8):
            a(f'v_mul_f32 v{o+i}, v{o+i}, v{8+i}')
    for i in range(16):
        a(f'v_cvt_pk_bf16_f32 v{GS+i}, v{ACC+2*i}, v{ACC+2*i+1}')
    for i in range(32):
        a(f'v_mov_b32 v{ACC+i}, 0')
    a.nop(2)
    a.label(f'{L}_noswitch')
    a(f's_cmp_lt_u32 s{sCnt}, 9')
    a(f's_cbranch_scc1 {L}_loop')
    saved_lines, saved_hist = a.lines, a.hist
    a.lines = []
    for s in range(s0 + 32, s0 + 64):
        step(s)
    a.lines, a.hist = saved_lines, saved_hist
    for k, v in waits.items():
        assert v[0] <= v[1], (k, v)
    stamp(a, cfg, 3)
    a.nop(16)
    T = AR
    a('s_waitcnt vmcnt(0)')
    for i in range(16):
        a(f'v_cvt_pk_bf16_f32 v{T+i}, v{ACC+2*i}, v{ACC+2*i+1}')
    for i in range(16):
        a(f'v_lshlrev_b32 v{ACC+2*i}, 16, v{T+i}')
        a(f'v_and_b32 v{ACC+2*i+1}, s54, v{T+i}')
        a(f'v_lshlrev_b32 v{T+32+2*i}, 16, v{GS+i}')
        a(f'v_and_b32 v{T+32+2*i+1}, s54, v{GS+i}')
    for i in range(0, 32, 2):
        a(f'v_pk_mul_f32 v[{ACC+i}:{ACC+i+1}], v[{ACC+i}:{ACC+i+1}], v[{T+32+i}:{T+33+i}]')
    for i in range(16):
        a(f'v_cvt_pk_bf16_f32 v{T+i}, v{ACC+2*i}, v{ACC+2*i+1}')
    for i in range(16):
        a(f'v_lshlrev_b32 v{ACC+2*i}, 16, v{T+i}')
        a(f'v_and_b32 v{ACC+2*i+1}, s54, v{T+i}')
        a(f'v_lshlrev_b32 v{T+32+2*i}, 16, v{XR+i}')
        a(f'v_and_b32 v{T+32+2*i+1}, s54, v{XR+i}')
    for i in range(0, 32, 2):
        a(f'v_pk_add_f32 v[{ACC+i}:{ACC+i+1}], v[{ACC+i}:{ACC+i+1}], v[{T+32+i}:{T+33+i}]')
    for i in range(16):
        a(f'v_cvt_pk_bf16_f32 v{T+i}, v{ACC+2*i}, v{ACC+2*i+1}')
    for i in range(4):
        a(f'buffer_store_dwordx4 {vr(T+4*i,4)}, v{vXo}, s[{sO}:{sO+3}], 0 offen offset:{16*i}')
    if cfg.get('prof'):
        a('s_waitcnt vmcnt(0)')
    stamp(a, cfg, 4)
    stamp(a, cfg, 5)
    stamp_store(a, cfg, 3)
    a.label(f'{L}_end')
    a('s_endpgm')
    return L, kernel_desc(L, 240, 102, 240), (256, 320 if PFD else 256, K3_LDS)


K3B_CH = 16384
K3B_LDS = 4 * K3B_CH
SPIN_MAX = 200000


def gen_k3b(a, cfg):
    L = 'k3_gemm2_kernel'
    kernel_head(a, L)
    sA, sW, sX, sO = 8, 12, 16, 20
    sWave, sMt, sCt, sP, sAo, sBo, sCh, sCnt, sDst, sB2, sEo, sEi, sFl = range(24, 37)
    vLane, vL16, vR1, vR2, vXo, vFl = 1, 2, 3, 7, 9, 10
    ACC, BF2, AR, BF1 = 16, 80, 112, 176
    EXR, XR, GS, TM = 176, 208, 224, 240
    a('s_cmp_ge_u32 s2, 512')
    a(f's_cbranch_scc1 {L}_end')
    a(f's_load_dwordx2 s[40:41], s[0:1], {KA_X}')
    a(f's_load_dwordx2 s[42:43], s[0:1], {KA_WPHI}')
    a(f's_load_dwordx2 s[46:47], s[0:1], {KA_OUT}')
    a(f's_load_dwordx2 s[48:49], s[0:1], {KA_WS}')
    a('v_lshrrev_b32 v8, 6, v0')
    a(f'v_and_b32 v{vLane}, 63, v0')
    a(f'v_readfirstlane_b32 s{sWave}, v8')
    a(f'v_lshlrev_b32 v{vL16}, 4, v{vLane}')
    a('s_cmp_ge_u32 s2, 256')
    a(f's_cbranch_scc1 {L}_main')
    a('s_and_b32 s50, s2, 7')
    a('s_lshl_b32 s50, s50, 2')
    a('s_bfe_u32 s51, s2, 0x20003')
    a('s_add_u32 s25, s50, s51')
    a('s_lshr_b32 s26, s2, 5')
    a('s_waitcnt lgkmcnt(0)')
    srd(a, sW, 's48', 's49', WS_USED)
    ophase(a, 48, 42, 25, 26, sWave, vLane, vL16, 0, sW, 16, 52, 8, sc=' sc1')
    a('s_waitcnt vmcnt(0)')
    a('s_barrier')
    a(f's_cmp_lg_u32 s{sWave}, 0')
    a(f's_cbranch_scc1 {L}_end')
    a('s_lshl_b32 s50, s26, 7')
    a(f's_add_u32 s50, s50, {CNT_OFF}')
    a('v_mov_b32 v3, 1')
    a('v_mov_b32 v4, 0')
    a('s_mov_b64 exec, 1')
    a(f'buffer_atomic_add v3, v4, s[{sW}:{sW+3}], s50 offen sc1')
    a('s_endpgm')
    a.label(f'{L}_main')
    a.reset()
    a('s_sub_u32 s2, s2, 256')
    stamp(a, cfg, 0)
    stamp(a, cfg, 1)
    a(f's_and_b32 s{sP}, s2, 1')
    a('s_bfe_u32 s50, s2, 0x20001')
    a('s_lshl_b32 s50, s50, 2')
    a('s_bfe_u32 s51, s2, 0x20003')
    a(f's_add_u32 s{sMt}, s50, s51')
    a(f's_lshr_b32 s{sCt}, s2, 5')
    a(f's_lshl_b32 s50, s{sMt}, 2')
    a(f's_add_u32 s50, s50, s{sWave}')
    a(f's_mul_i32 s51, s50, {HO_RB}')
    a(f's_add_u32 s51, s51, {HO_OFF}')
    a(f's_mul_i32 s{sAo}, s{sP}, {112*1024}')
    a(f's_mul_i32 s{sBo}, s{sCt}, {3584*256}')
    a(f's_mul_i32 s52, s{sP}, {1792*256}')
    a(f's_add_u32 s{sBo}, s{sBo}, s52')
    a(f's_lshl_b32 s{sDst}, s{sWave}, 12')
    a(f's_add_u32 s{sBo}, s{sBo}, s{sDst}')
    a(f's_add_u32 s{sBo}, s{sBo}, {WDT_OFF}')
    a(f's_mov_b32 s{sCh}, 0')
    a('s_waitcnt lgkmcnt(0)')
    srd_off(a, sA, 's48', 's49', 's51', HO_RB)
    srd(a, sW, 's48', 's49', WS_USED)

    vm = VmQ()

    def dma_q(chunk, u):
        slot = chunk % 4
        a(f's_add_u32 m0, s{sDst}, {slot*K3B_CH}')
        a(f'buffer_load_dwordx4 v{vL16}, s[{sW}:{sW+3}], s{sBo} offen offset:{u*1024} lds')
        vm.issue(('B', chunk))

    def dma_adv():
        a(f's_add_u32 s{sBo}, s{sBo}, {K3B_CH}')
        a(f's_add_u32 s{sCh}, s{sCh}, 1')
        a(f's_cmp_eq_u32 s{sCh}, 28')
        a(f's_cselect_b32 s{sBo}, s{sB2}, s{sBo}')
        a(f's_cmp_eq_u32 s{sCh}, 36')
        a(f's_cselect_b32 s{sBo}, {WS_USED}, s{sBo}')

    def aload(step):
        e = step % 16
        a(f'buffer_load_dwordx4 {vr(AR+4*e,4)}, v{vL16}, s[{sA}:{sA+3}], s{sAo} offen offset:{(step&3)*1024} sc1')
        vm.issue(('A', step))
        if (step & 3) == 3:
            a(f's_add_u32 s{sAo}, s{sAo}, 4096')

    def bread1(step, blk):
        slot = (step >> 2) % 4
        e = step % 4
        for h in range(2):
            off = slot * K3B_CH + ((step & 3) * 16 + 8 * h) * 256
            a(f'ds_read_b64_tr_b16 {vr(BF1+e*16+blk*4+2*h,2)}, v{vR1+blk} offset:{off}')

    def bread2(step, b):
        slot = (step >> 3) % 4
        e = step % 4
        for h in range(2):
            off = slot * K3B_CH + ((step & 7) * 16 + 8 * h) * 128
            a(f'ds_read_b64_tr_b16 {vr(BF2+e*8+b*4+2*h,2)}, v{vR2+b} offset:{off}')

    a(f's_lshl_b32 s53, s{sCt}, 1')
    a(f's_add_u32 s53, s53, s{sP}')
    a(f's_lshl_b32 s{sB2}, s53, 17')
    a(f's_add_u32 s{sB2}, s{sB2}, s{sDst}')
    a(f's_add_u32 s{sB2}, s{sB2}, {WOT_OFF}')
    for s_ in range(-16, -2):
        c = (s_ + 2) // 4 + 3
        if s_ % 4 in (2, 3) and c >= 0:
            dma_q(c, 2 * (s_ % 4 - 2))
            dma_q(c, 2 * (s_ % 4 - 2) + 1)
            if s_ % 4 == 3:
                dma_adv()
        aload(s_ + 16)
    srd(a, sX, 's40', 's41', 0x400000)
    srd(a, sO, 's46', 's47', 0x400000)
    a('s_lshl_b32 s54, s2, 2')
    a(f's_add_u32 s54, s54, s{sWave}')
    a(f's_lshl_b32 s{sEo}, s54, 13')
    a(f's_add_u32 s{sEo}, s{sEo}, {EX_OFF}')
    a('s_xor_b32 s54, s54, 4')
    a(f's_lshl_b32 s{sEi}, s54, 13')
    a(f's_add_u32 s{sEi}, s{sEi}, {EX_OFF}')
    a(f's_lshr_b32 s{sFl}, s{sMt}, 1')
    a(f's_lshl_b32 s{sFl}, s{sFl}, 7')
    a(f's_add_u32 s{sFl}, s{sFl}, {CNT_OFF}')
    a(f'v_and_b32 v11, 31, v{vLane}')
    a('v_lshlrev_b32 v11, 11, v11')
    a(f'v_lshrrev_b32 v12, 5, v{vLane}')
    a('v_lshl_add_u32 v11, v12, 6, v11')
    a('s_lshl_b32 s52, s50, 16')
    a('s_lshl_b32 s54, s53, 7')
    a('s_add_u32 s52, s52, s54')
    a(f'v_add_u32 v{vXo}, s52, v11')
    a(f'v_bfe_u32 v13, v{vLane}, 2, 2')
    a('v_lshl_add_u32 v12, v12, 2, v13')
    a(f'v_and_b32 v14, 1, v{vLane}')
    a('v_lshlrev_b32 v11, 6, v14')
    a(f'v_bfe_u32 v14, v{vLane}, 4, 1')
    a('v_lshl_add_u32 v11, v14, 4, v11')
    a(f'v_bfe_u32 v14, v{vLane}, 1, 1')
    a('v_lshl_add_u32 v11, v14, 3, v11')
    a('v_lshrrev_b32 v14, 1, v13')
    a('v_lshl_add_u32 v15, v12, 7, v11')
    a(f'v_lshl_add_u32 v{vR2}, v14, 5, v15')
    a(f'v_xor_b32 v{vR2+1}, 32, v{vR2}')
    a('v_lshl_add_u32 v15, v12, 8, v11')
    a('v_lshl_add_u32 v15, v14, 7, v15')
    a('v_and_b32 v14, 1, v13')
    a('v_lshl_add_u32 v15, v14, 5, v15')
    a(f's_lshl_b32 s54, s{sP}, 7')
    a(f'v_xor_b32 v{vR1}, s54, v15')
    a(f'v_xor_b32 v{vR1+1}, 32, v{vR1}')
    a(f'v_xor_b32 v{vR1+2}, 0x80, v{vR1}')
    a(f'v_xor_b32 v{vR1+3}, 0xa0, v{vR1}')
    a('v_mov_b32 v15, 0')
    for i in range(64):
        a(f'v_mov_b32 v{ACC+i}, 0')
    a(f's_waitcnt vmcnt({vm.need([("B", 0)])})')
    a('s_barrier')
    for s_ in (-2, -1):
        for blk in range(4):
            bread1(s_ + 2, blk)
        dma_q(3, 2 * (s_ % 4 - 2))
        dma_q(3, 2 * (s_ % 4 - 2) + 1)
        if s_ % 4 == 3:
            dma_adv()
        aload(s_ + 16)
    a(f's_mov_b32 s{sCnt}, 0')
    stamp(a, cfg, 2)
    stampv(a, cfg, 14, 0)
    waits = {}

    def w(key, n):
        waits.setdefault(key, []).append(n)
        return n

    def step1(s):
        e = s % 16
        bar = s % 4 == 2
        c = (s + 2) // 4 + 3
        for blk in range(4):
            if blk == 0:
                a(f's_waitcnt vmcnt({w((e, "A"), vm.need([("A", s)]))}) lgkmcnt(8)')
            d = vr(ACC + 16 * blk, 16)
            a(f'{MFMA} {d}, {vr(BF1+(s%4)*16+blk*4,4)}, {vr(AR+4*e,4)}, {d}')
            if bar:
                if blk == 1:
                    a(f's_waitcnt vmcnt({w((e, "B"), vm.need([("B", (s+2)//4)]))}) lgkmcnt(0)')
                    a('s_barrier')
                    bread1(s + 2, 0)
                if blk == 2:
                    bread1(s + 2, 1)
                    bread1(s + 2, 2)
                    dma_q(c, 0)
                if blk == 3:
                    bread1(s + 2, 3)
                    dma_q(c, 1)
            else:
                bread1(s + 2, blk)
                if s % 4 == 3 and blk in (0, 2):
                    dma_q(c, 2 + blk // 2)
                if s % 4 == 0 and blk == 0 and False:
                    pass
                if s % 4 == 3 and blk == 3:
                    dma_adv()
            if blk == 0 and e == 1:
                a(f'buffer_load_dword v{vFl}, v15, s[{sW}:{sW+3}], s{sFl} offen sc1')
                vm.issue(('F', s))
        aload(s + 16)

    a.raw('.p2align 6')
    a.label(f'{L}_loop1')
    for s_ in range(16):
        step1(s_)
    a(f's_add_u32 s{sCnt}, s{sCnt}, 1')
    if cfg.get('prof') == 3:
        a(f's_mov_b32 m0, s{sCnt}')
        stampv(a, cfg, 14, 'm0')
    a(f's_cmp_lg_u32 s{sCnt}, 6')
    a(f's_cbranch_scc1 {L}_l1next')
    a(f's_mov_b32 s{sAo}, {224*1024}')
    a(f's_waitcnt vmcnt({vm.need([("F", 1)])})')
    a('s_mov_b32 s55, 0')
    a.label(f'{L}_poll')
    a(f'v_readfirstlane_b32 s54, v{vFl}')
    a('s_cmp_ge_u32 s54, 32')
    a(f's_cbranch_scc1 {L}_l1next')
    a('s_add_u32 s55, s55, 1')
    a(f's_cmp_ge_u32 s55, {SPIN_MAX}')
    a(f's_cbranch_scc1 {L}_l1next')
    a('s_sleep 4')
    a(f'buffer_load_dword v{vFl}, v15, s[{sW}:{sW+3}], s{sFl} offen sc1')
    a('s_waitcnt vmcnt(0)')
    a(f's_branch {L}_poll')
    a.label(f'{L}_l1next')
    a(f's_cmp_lt_u32 s{sCnt}, 7')
    a(f's_cbranch_scc1 {L}_loop1')
    sl, sh = a.lines, a.hist
    a.lines = []
    for s_ in range(16, 32):
        step1(s_)
    a.lines, a.hist = sl, sh
    for k, v in waits.items():
        assert v[0] <= v[1], (k, v)
    vm.q = [((('A2', t[1] - 32) if t[0] == 'A' else ('B', t[1] + 20) if t[0] == 'B' else t), wt) for (t, wt) in vm.q]
    a('s_waitcnt lgkmcnt(0)')
    for s_ in range(3):
        bread2(s_, 0)
        bread2(s_, 1)
    a.nop(12)
    a('s_mov_b32 s54, 0xfffffffe')
    a(f's_add_u32 s55, s{sEo}, 4096')
    for q in range(8):
        for i in range(4):
            r = ACC + 32 + 4 * q + i
            a(f'v_min_u32 v{r}, s54, v{r}')
        a(f'buffer_store_dwordx4 {vr(ACC+32+4*q,4)}, v{vL16}, s[{sW}:{sW+3}], s{sEo if q < 4 else 55} offen offset:{(q&3)*1024} sc1')
        vm.issue(('P', q))
    for i in range(4):
        a(f'buffer_load_dwordx4 {vr(XR+4*i,4)}, v{vXo}, s[{sX}:{sX+3}], 0 offen offset:{16*i}')
        vm.issue(('X', i))
    for i in range(32):
        a(f'v_mov_b32 v{ACC+32+i}, 0')
    a(f's_mov_b32 s{sCnt}, 0')
    a(f's_add_u32 s55, s{sEi}, 4096')
    stampv(a, cfg, 14, 8)
    waits.clear()

    def aload2(step):
        e = step % 16
        a(f'buffer_load_dwordx4 {vr(AR+4*e,4)}, v{vL16}, s[{sA}:{sA+3}], s{sAo} offen offset:{(step&3)*1024} sc1')
        vm.issue(('A2', step))
        if (step & 3) == 3:
            a(f's_add_u32 s{sAo}, s{sAo}, 4096')

    def exload(q):
        a(f'buffer_load_dwordx4 {vr(EXR+4*q,4)}, v{vL16}, s[{sW}:{sW+3}], s{sEi if q < 4 else 55} offen offset:{(q&3)*1024} sc1')

    def step2(s):
        e = s % 16
        k = s % 32
        bar = (s + 3) % 8 == 0
        c = 28 + (s + 3) // 8
        a(f's_waitcnt vmcnt({w((k, "A"), vm.need([("A2", s)]))}) lgkmcnt(8)')
        for b in range(2):
            d = vr(ACC + 32 + 16 * b, 16)
            a(f'{MFMA} {d}, {vr(BF2+(s%4)*8+b*4,4)}, {vr(AR+4*e,4)}, {d}')
            if bar:
                if b == 1:
                    a(f's_waitcnt vmcnt({w((k, "B"), vm.need([("B", c)]))}) lgkmcnt(0)')
                    a('s_barrier')
                    bread2(s + 3, 0)
                    bread2(s + 3, 1)
            else:
                bread2(s + 3, b)
                u = (s + 3) % 8 - 1
                if b == 0 and 0 <= u < 4 and not (s < 5):
                    dma_q(c + 3, u)
                if b == 0 and u == 4 and not (s < 5):
                    dma_adv()
            if b == 0 and 12 <= k < 20:
                exload(k - 12)
                vm.issue(('E', s))
        aload2(s + 16)

    for s_ in range(32):
        step2(s_)
    stampv(a, cfg, 14, 9)
    a(f's_waitcnt vmcnt({vm.need([("E", 19)])})')
    a('s_mov_b32 s56, 0')
    a.label(f'{L}_chk')
    a(f'v_max3_u32 v11, v{EXR}, v{EXR+1}, v{EXR+2}')
    for i in range(3, 31, 2):
        a(f'v_max3_u32 v11, v11, v{EXR+i}, v{EXR+i+1}')
    a(f'v_max_u32 v11, v11, v{EXR+31}')
    a('v_cmp_eq_u32 vcc, -1, v11')
    a('s_nop 4')
    a(f's_cbranch_vccz {L}_got')
    a('s_add_u32 s56, s56, 1')
    a(f's_cmp_ge_u32 s56, {SPIN_MAX}')
    a(f's_cbranch_scc1 {L}_got')
    a('s_sleep 4')
    for q in range(8):
        exload(q)
    a('s_waitcnt vmcnt(0)')
    a(f's_branch {L}_chk')
    a.label(f'{L}_got')
    stampv(a, cfg, 14, 10)
    a(f's_mov_b32 s53, {LOG2E | 0x80000000}')
    a('s_mov_b32 s54, 0xffff0000')
    for i in range(0, 32, 2):
        a(f'v_pk_add_f32 v[{ACC+i}:{ACC+i+1}], v[{ACC+i}:{ACC+i+1}], v[{EXR+i}:{EXR+i+1}]')
    for i in range(16):
        a(f'v_cvt_pk_bf16_f32 v{GS+i}, v{ACC+2*i}, v{ACC+2*i+1}')
    for i in range(16):
        a(f'v_lshlrev_b32 v{ACC+2*i}, 16, v{GS+i}')
        a(f'v_and_b32 v{ACC+2*i+1}, s54, v{GS+i}')
    for i in range(32):
        a(f'v_mul_f32 v{EXR+i}, s53, v{ACC+i}')
    for i in range(32):
        a(f'v_exp_f32 v{EXR+i}, v{EXR+i}')
    for i in range(32):
        a(f'v_add_f32 v{EXR+i}, 1.0, v{EXR+i}')
    for i in range(32):
        a(f'v_rcp_f32 v{EXR+i}, v{EXR+i}')
    for i in range(0, 32, 2):
        a(f'v_pk_mul_f32 v[{ACC+i}:{ACC+i+1}], v[{ACC+i}:{ACC+i+1}], v[{EXR+i}:{EXR+i+1}]')
    for i in range(16):
        a(f'v_cvt_pk_bf16_f32 v{GS+i}, v{ACC+2*i}, v{ACC+2*i+1}')
    for i in range(16):
        a(f'v_lshlrev_b32 v{ACC+2*i}, 16, v{GS+i}')
        a(f'v_and_b32 v{ACC+2*i+1}, s54, v{GS+i}')
        a(f'v_lshlrev_b32 v{EXR+2*i}, 16, v{XR+i}')
        a(f'v_and_b32 v{EXR+2*i+1}, s54, v{XR+i}')
    stampv(a, cfg, 14, 11)

    def step2b(s):
        e = s % 16
        bar = (s + 3) % 8 == 0
        c = 28 + (s + 3) // 8
        last_read = s + 3 < 64
        a(f's_waitcnt vmcnt({vm.need([("A2", s)])}) lgkmcnt({min(8, 4*(63-s))})')
        for b in range(2):
            d = vr(ACC + 32 + 16 * b, 16)
            a(f'{MFMA} {d}, {vr(BF2+(s%4)*8+b*4,4)}, {vr(AR+4*e,4)}, {d}')
            if not last_read:
                continue
            if bar:
                if b == 1:
                    a(f's_waitcnt vmcnt({vm.need([("B", c)])}) lgkmcnt(0)')
                    a('s_barrier')
                    bread2(s + 3, 0)
                    bread2(s + 3, 1)
            else:
                bread2(s + 3, b)
                u = (s + 3) % 8 - 1
                if b == 0 and 0 <= u < 4 and c + 3 < 36:
                    dma_q(c + 3, u)
                if b == 0 and u == 4 and c + 3 < 36:
                    dma_adv()
        if s + 16 < 64:
            aload2(s + 16)

    for s_ in range(32, 64):
        step2b(s_)
    stamp(a, cfg, 3)
    stampv(a, cfg, 14, 12)
    S = ACC + 32
    T = AR
    for i in range(16):
        a(f'v_cvt_pk_bf16_f32 v{T+i}, v{S+2*i}, v{S+2*i+1}')
    for i in range(16):
        a(f'v_lshlrev_b32 v{S+2*i}, 16, v{T+i}')
        a(f'v_and_b32 v{S+2*i+1}, s54, v{T+i}')
    for i in range(0, 32, 2):
        a(f'v_pk_mul_f32 v[{S+i}:{S+i+1}], v[{S+i}:{S+i+1}], v[{ACC+i}:{ACC+i+1}]')
    for i in range(16):
        a(f'v_cvt_pk_bf16_f32 v{T+i}, v{S+2*i}, v{S+2*i+1}')
    for i in range(16):
        a(f'v_lshlrev_b32 v{S+2*i}, 16, v{T+i}')
        a(f'v_and_b32 v{S+2*i+1}, s54, v{T+i}')
    for i in range(0, 32, 2):
        a(f'v_pk_add_f32 v[{S+i}:{S+i+1}], v[{S+i}:{S+i+1}], v[{EXR+i}:{EXR+i+1}]')
    for q in range(4):
        for i in range(4 * q, 4 * q + 4):
            a(f'v_cvt_pk_bf16_f32 v{T+i}, v{S+2*i}, v{S+2*i+1}')
        a(f'buffer_store_dwordx4 {vr(T+4*q,4)}, v{vXo}, s[{sO}:{sO+3}], 0 offen offset:{16*q}')
    if cfg.get('prof'):
        a('s_waitcnt vmcnt(0)')
    stamp(a, cfg, 4)
    stamp(a, cfg, 5)
    stampv(a, cfg, 14, 13)
    if cfg.get('prof') == 3:
        a('s_getreg_b32 s98, hwreg(HW_REG_HW_ID)')
        a('v_writelane_b32 v14, s98, 20')
        a('s_getreg_b32 s98, hwreg(HW_REG_XCC_ID)')
        a('v_writelane_b32 v14, s98, 21')
    stampv_store(a, cfg, 14, 13)
    stamp_store(a, cfg, 3)
    a.label(f'{L}_end')
    a('s_endpgm')
    return L, kernel_desc(L, 240, 102, 240), (512, 256, K3B_LDS)


HEADER = """; Kernarg layout for this problem (88 bytes, ptrs only, base s[0:1]):
"""


def build(cfg):
    a = Asm()
    if cfg.get('old'):
        ks = [gen_k0(a, cfg), gen_k1(a, cfg), gen_k2(a), gen_k3(a, cfg)]
    else:
        ks = [gen_k0(a, cfg), gen_k1(a, cfg), gen_k3b(a, cfg)]
    out = HEADER
    for (lab, _, (g, b, lds)) in ks:
        out += f'; @launch kernel={lab} grid=({g},1,1) block=({b},1,1) lds={lds}\n'
    out += '.amdgcn_target "amdgcn-amd-amdhsa--gfx950"\n.text\n'
    out += a.text()
    out += 'code_end:\n'
    out += '.section .rodata,"a"\n'
    for (_, desc, _) in ks:
        out += '.p2align 6\n' + desc
    return out


if __name__ == '__main__':
    cfg = {}
    outp = sys.argv[1] if len(sys.argv) > 1 else f'cdna_kernels/{NAME}.s'
    for kv in sys.argv[2:]:
        k, v = kv.split('=')
        cfg[k] = int(v)
    open(outp, 'w').write(build(cfg))
    print('wrote', outp)
```

```python
import sys
import os
sys.path.insert(0, os.path.dirname(os.path.abspath(__file__)))
from asmlib import Asm, vr, ar, sr
from gen import (NAME, srd, srd_off, stamp, stampv, stampv_store, stamp_store, kernel_head, kernel_desc, VmQ, HEADER,
                 KA_X, KA_WQKV, KA_WPHI, KA_WO, KA_WG, KA_WU, KA_WD, KA_OUT, KA_DBG, KA_WS, LOG2E,
                 XN_OFF, HO_OFF, HO_RB, Q_OFF, KVP_OFF, ZP_OFF, WDT_OFF, WOT_OFF, EX_OFF, CNT_OFF, WS_USED)

M32 = 'v_mfma_f32_32x32x16_bf16'
M16 = 'v_mfma_f32_16x16x32_bf16'
SPIN_MAX = 200000
ID_OFF = EX_OFF + 0x400000


def gen_k0(a, cfg):
    L = 'k0_ln_kernel'
    kernel_head(a, L)
    a('s_cmp_ge_u32 s2, 256')
    a(f's_cbranch_scc1 {L}_end')
    a(f's_load_dwordx4 s[24:27], s[0:1], {KA_X}')
    a(f's_load_dwordx2 s[6:7], s[0:1], {KA_WS}')
    a(f's_load_dwordx4 s[32:35], s[0:1], {KA_WG}')
    a('v_and_b32 v1, 7, v0')
    a('v_lshrrev_b32 v2, 3, v0')
    a('v_lshlrev_b32 v3, 11, v1')
    a('v_lshl_add_u32 v3, v2, 4, v3')
    a('s_lshl_b32 s3, s2, 14')
    a('v_lshrrev_b32 v5, 6, v0')
    a('v_readfirstlane_b32 s36, v5')
    a('s_lshr_b32 s16, s2, 3')
    a('s_lshl_b32 s16, s16, 17')
    a('s_bfe_u32 s17, s2, 0x20001')
    a('s_lshl_b32 s17, s17, 10')
    a('s_or_b32 s16, s16, s17')
    a('s_and_b32 s17, s2, 1')
    a('s_lshl_b32 s17, s17, 7')
    a('s_or_b32 s16, s16, s17')
    a('s_add_u32 s17, s16, 0x10000')
    a('v_lshrrev_b32 v4, 2, v2')
    a('v_lshlrev_b32 v4, 12, v4')
    a('v_and_b32 v6, 3, v2')
    a('v_lshl_add_u32 v4, v6, 8, v4')
    a('v_lshl_add_u32 v4, v1, 4, v4')
    a('v_lshlrev_b32 v6, 5, v1')
    a('v_lshl_add_u32 v5, v5, 2, v6')
    a('s_mov_b32 s18, 0xffff0000')
    a('s_waitcnt lgkmcnt(0)')
    srd(a, 8, 's24', 's25', 0x400000)
    a('buffer_load_dwordx4 v[8:11], v3, s[8:11], s3 offen')
    a('buffer_load_dwordx4 v[12:15], v3, s[8:11], s3 offen offset:1024')
    npf = 0
    R0 = cfg.get('pf_rows', 128)
    if R0:
        a('s_cmp_eq_u32 s36, 1')
        a('s_cselect_b32 s20, s32, s34')
        a('s_cselect_b32 s21, s33, s35')
        a(f's_movk_i32 s37, {R0*28}')
        a('s_cmp_eq_u32 s36, 0')
        a('s_cselect_b32 s20, s26, s20')
        a('s_cselect_b32 s21, s27, s21')
        a(f's_cselect_b32 s37, {R0*24}, s37')
        a('s_cmp_gt_u32 s36, 2')
        a('s_cselect_b32 s37, 0, s37')
        a('s_mul_i32 s38, s37, s2')
        a('s_add_u32 s22, s38, s37')
        a('s_and_b32 s21, s21, 0xffff')
        a('s_mov_b32 s23, 0x20000')
        a('v_and_b32 v7, 63, v0')
        a('v_lshlrev_b32 v7, 7, v7')
        a('buffer_load_dword v63, v7, s[20:23], s38 offen')
        npf = 1
    a('s_cmp_lg_u32 s2, 0')
    a(f's_cbranch_scc1 {L}_nz')
    srd_off(a, 12, 's6', 's7', CNT_OFF, 1024)
    for i in range(4):
        a(f'v_mov_b32 v{16+i}, 0')
    a('v_lshlrev_b32 v7, 4, v0')
    a('buffer_store_dwordx4 v[16:19], v7, s[12:15], 0 offen')
    a('s_waitcnt vmcnt(0)')
    a.label(f'{L}_nz')
    srd(a, 12, 's6', 's7', 0x400000)
    a(f's_waitcnt vmcnt({npf})')
    X = 16
    for i in range(8):
        a(f'v_lshlrev_b32 v{X+2*i}, 16, v{8+i}')
        a(f'v_and_b32 v{X+2*i+1}, s18, v{8+i}')

    def reduce_all(acc, tmp, ldsoff, filler=None):
        a(f'v_add_f32_dpp v{acc}, v{acc}, v{acc} row_ror:8 row_mask:0xf bank_mask:0xf')
        a(f'v_mov_b32 v{tmp}, v{acc}')
        a(f'v_permlane16_swap_b32 v{acc}, v{tmp}')
        a(f'v_add_f32 v{acc}, v{acc}, v{tmp}')
        a(f'v_mov_b32 v{tmp}, v{acc}')
        a(f'v_permlane32_swap_b32 v{acc}, v{tmp}')
        a(f'v_add_f32 v{acc}, v{acc}, v{tmp}')
        a('s_mov_b64 exec, 0xff')
        a(f'ds_write_b32 v5, v{acc} offset:{ldsoff}')
        a('s_mov_b64 exec, -1')
        if filler:
            filler()
        a('s_waitcnt lgkmcnt(0)')
        a('s_barrier')
        a(f'ds_read_b128 v[48:51], v6 offset:{ldsoff}')
        a(f'ds_read_b128 v[52:55], v6 offset:{ldsoff+16}')
        a('s_waitcnt lgkmcnt(0)')
        a('v_pk_add_f32 v[48:49], v[48:49], v[50:51]')
        a('v_pk_add_f32 v[52:53], v[52:53], v[54:55]')
        a('v_pk_add_f32 v[48:49], v[48:49], v[52:53]')
        a(f'v_add_f32 v{acc}, v48, v49')

    a(f'v_pk_add_f32 v[32:33], v[{X}:{X+1}], v[{X+2}:{X+3}]')
    a(f'v_pk_add_f32 v[34:35], v[{X+4}:{X+5}], v[{X+6}:{X+7}]')
    a(f'v_pk_add_f32 v[36:37], v[{X+8}:{X+9}], v[{X+10}:{X+11}]')
    a(f'v_pk_add_f32 v[38:39], v[{X+12}:{X+13}], v[{X+14}:{X+15}]')
    a('v_pk_add_f32 v[32:33], v[32:33], v[34:35]')
    a('v_pk_add_f32 v[36:37], v[36:37], v[38:39]')
    a('v_pk_add_f32 v[32:33], v[32:33], v[36:37]')
    a('v_add_f32 v56, v32, v33')
    reduce_all(56, 57, 0)
    a('v_mul_f32 v56, 0x3a800000, v56')
    for i in range(16):
        a(f'v_sub_f32 v{32+i}, v{X+i}, v56')
    a('v_pk_mul_f32 v[58:59], v[32:33], v[32:33]')
    a('v_pk_mul_f32 v[60:61], v[34:35], v[34:35]')
    for i in range(2, 8):
        d = 58 + 2 * (i & 1)
        a(f'v_pk_fma_f32 v[{d}:{d+1}], v[{32+2*i}:{33+2*i}], v[{32+2*i}:{33+2*i}], v[{d}:{d+1}]')
    a('v_pk_add_f32 v[58:59], v[58:59], v[60:61]')
    a('v_add_f32 v58, v58, v59')

    def fill():
        a('v_cvt_pk_bf16_f32 v62, v56, v56')
        a('v_lshlrev_b32 v62, 16, v62')
        for i in range(16):
            a(f'v_sub_f32 v{32+i}, v{X+i}, v62')
        for i in range(8):
            a(f'v_cvt_pk_bf16_f32 v{8+i}, v{32+2*i}, v{33+2*i}')
        for i in range(8):
            a(f'v_lshlrev_b32 v{X+2*i}, 16, v{8+i}')
            a(f'v_and_b32 v{X+2*i+1}, s18, v{8+i}')
    reduce_all(58, 57, 256, fill)
    a('v_mul_f32 v58, 0x3a800000, v58')
    a('v_cvt_pk_bf16_f32 v58, v58, v58')
    a('v_lshlrev_b32 v58, 16, v58')
    a('v_add_f32 v58, 0x3727c5ac, v58')
    a('v_cvt_pk_bf16_f32 v58, v58, v58')
    a('v_lshlrev_b32 v58, 16, v58')
    a('v_sqrt_f32 v58, v58')
    a('v_cvt_pk_bf16_f32 v58, v58, v58')
    a('v_lshlrev_b32 v58, 16, v58')
    a('v_rcp_f32 v58, v58')
    for i in range(0, 16, 2):
        a(f'v_pk_mul_f32 v[{X+i}:{X+i+1}], v[{X+i}:{X+i+1}], v[58:59] op_sel_hi:[1,0]')
    for i in range(8):
        a(f'v_cvt_pk_bf16_f32 v{8+i}, v{X+2*i}, v{X+2*i+1}')
        if i == 3:
            a('buffer_store_dwordx4 v[8:11], v4, s[12:15], s16 offen')
    a('buffer_store_dwordx4 v[12:15], v4, s[12:15], s17 offen')
    a.label(f'{L}_end')
    a('s_endpgm')
    return L, kernel_desc(L, 64, 48, 64), (256, 512, 512)


def softmax_pm(a, blocks, sL, sMask):
    sL0 = 's' + sL[2:].split(':')[0]

    def each(f):
        for b in blocks:
            f(b)
    for i in range(8):
        each(lambda b: a(f"v_cvt_pk_bf16_f32 v{b['T']+i}, v{b['P']+2*i}, v{b['P']+2*i+1}"))
    for i in range(8):
        each(lambda b: (a(f"v_lshlrev_b32 v{b['P']+2*i}, 16, v{b['T']+i}"),
                        a(f"v_and_b32 v{b['P']+2*i+1}, {sMask}, v{b['T']+i}")))
    each(lambda b: (a(f"v_max3_f32 v{b['T']}, v{b['P']}, v{b['P']+1}, v{b['P']+2}"),
                    a(f"v_min3_f32 v{b['T']+2}, v{b['P']}, v{b['P']+1}, v{b['P']+2}")))
    for i in range(3, 15, 2):
        each(lambda b: (a(f"v_max3_f32 v{b['T']}, v{b['T']}, v{b['P']+i}, v{b['P']+i+1}"),
                        a(f"v_min3_f32 v{b['T']+2}, v{b['T']+2}, v{b['P']+i}, v{b['P']+i+1}")))
    each(lambda b: (a(f"v_max_f32 v{b['T']}, v{b['T']}, v{b['P']+15}"),
                    a(f"v_min_f32 v{b['T']+2}, v{b['T']+2}, v{b['P']+15}")))
    each(lambda b: (a(f"v_mov_b32 v{b['T']+1}, v{b['T']}"),
                    a(f"v_mov_b32 v{b['T']+3}, v{b['T']+2}")))
    each(lambda b: (a(f"v_permlane32_swap_b32 v{b['T']}, v{b['T']+1}"),
                    a(f"v_permlane32_swap_b32 v{b['T']+2}, v{b['T']+3}")))
    each(lambda b: (a(f"v_max_f32 v{b['T']}, v{b['T']}, v{b['T']+1}"),
                    a(f"v_min_f32 v{b['T']+2}, v{b['T']+2}, v{b['T']+3}")))
    each(lambda b: (a(f"v_mul_f32 v{b['T']}, {sL0}, v{b['T']}"),
                    a(f"v_mul_f32 v{b['T']+2}, {sL0}, v{b['T']+2}")))
    for i in range(0, 16, 2):
        each(lambda b: (
            a(f"v_pk_fma_f32 v[{b['E']+i}:{b['E']+i+1}], v[{b['P']+i}:{b['P']+i+1}], {sL}, v[{b['T']+2}:{b['T']+3}] op_sel_hi:[1,1,0] neg_lo:[1,0,0] neg_hi:[1,0,0]"),
            a(f"v_pk_fma_f32 v[{b['P']+i}:{b['P']+i+1}], v[{b['P']+i}:{b['P']+i+1}], {sL}, v[{b['T']}:{b['T']+1}] op_sel_hi:[1,1,0] neg_lo:[0,0,1] neg_hi:[0,0,1]")))
    for i in range(16):
        each(lambda b: (a(f"v_exp_f32 v{b['P']+i}, v{b['P']+i}"),
                        a(f"v_exp_f32 v{b['E']+i}, v{b['E']+i}")))
    each(lambda b: (a(f"v_pk_add_f32 v[{b['T']}:{b['T']+1}], v[{b['P']}:{b['P']+1}], v[{b['P']+2}:{b['P']+3}]"),
                    a(f"v_pk_add_f32 v[{b['T']+2}:{b['T']+3}], v[{b['E']}:{b['E']+1}], v[{b['E']+2}:{b['E']+3}]")))
    for i in range(4, 16, 2):
        each(lambda b: (a(f"v_pk_add_f32 v[{b['T']}:{b['T']+1}], v[{b['T']}:{b['T']+1}], v[{b['P']+i}:{b['P']+i+1}]"),
                        a(f"v_pk_add_f32 v[{b['T']+2}:{b['T']+3}], v[{b['T']+2}:{b['T']+3}], v[{b['E']+i}:{b['E']+i+1}]")))
    each(lambda b: (a(f"v_add_f32 v{b['T']}, v{b['T']}, v{b['T']+1}"),
                    a(f"v_add_f32 v{b['T']+2}, v{b['T']+2}, v{b['T']+3}")))
    each(lambda b: (a(f"v_mov_b32 v{b['T']+1}, v{b['T']}"),
                    a(f"v_mov_b32 v{b['T']+3}, v{b['T']+2}")))
    each(lambda b: (a(f"v_permlane32_swap_b32 v{b['T']}, v{b['T']+1}"),
                    a(f"v_permlane32_swap_b32 v{b['T']+2}, v{b['T']+3}")))
    each(lambda b: (a(f"v_add_f32 v{b['T']}, v{b['T']}, v{b['T']+1}"),
                    a(f"v_add_f32 v{b['T']+2}, v{b['T']+2}, v{b['T']+3}")))
    each(lambda b: (a(f"v_rcp_f32 v{b['T']}, v{b['T']}"),
                    a(f"v_rcp_f32 v{b['T']+2}, v{b['T']+2}")))
    for i in range(0, 16, 2):
        each(lambda b: (a(f"v_pk_mul_f32 v[{b['P']+i}:{b['P']+i+1}], v[{b['P']+i}:{b['P']+i+1}], v[{b['T']}:{b['T']+1}] op_sel_hi:[1,0]"),
                        a(f"v_pk_mul_f32 v[{b['E']+i}:{b['E']+i+1}], v[{b['E']+i}:{b['E']+i+1}], v[{b['T']+2}:{b['T']+3}] op_sel_hi:[1,0]")))
    for i in range(8):
        each(lambda b: (a(f"v_cvt_pk_bf16_f32 v{b['O']+i}, v{b['P']+2*i}, v{b['P']+2*i+1}"),
                        a(f"v_cvt_pk_bf16_f32 v{b['O']+8+i}, v{b['E']+2*i}, v{b['E']+2*i+1}")))


def wphi_addr(a, vd, vt, vLane, base):
    a(f'v_lshrrev_b32 v{vd}, 5, v{vLane}')
    a(f'v_bfe_u32 v{vt}, v{vLane}, 2, 2')
    a(f'v_lshl_add_u32 v{vd}, v{vd}, 3, v{vt}')
    a(f'v_lshlrev_b32 v{vd}, 6, v{vd}')
    a(f'v_bfe_u32 v{vt}, v{vLane}, 4, 1')
    a(f'v_lshl_add_u32 v{vd}, v{vt}, 5, v{vd}')
    a(f'v_and_b32 v{vt}, 3, v{vLane}')
    a(f'v_lshl_add_u32 v{vd}, v{vt}, 3, v{vd}')
    if base:
        a(f'v_add_u32 v{vd}, {base}, v{vd}')


C_QKV, C_G, C_U, C_SZ = 0, 6144, 13312, 20480
K1_STAGE = 2 * C_SZ
K1_WPHI = 3 * K1_STAGE
K1_RED = K1_WPHI + 2048
K1_ZR = K1_RED + 4 * 8192
K1_LDS = K1_ZR + 4 * 512
ADDR_SPLIT = 3 * C_SZ


def gen_k1(a, cfg):
    L = 'k1_gemm1_kernel'
    kernel_head(a, L)
    sA, sB0, sW, sP, sT = 8, 12, 32, 36, 40
    sOff, sStep, sDst = 44, 49, 54
    sAo, sAo2, sCnt, sWave, sHead, sMt, sU, sWid, sTo, sTs = range(59, 69)
    vLane, vDma, vA, vGU, vQE, vQO, vCd, vWo, vTo, vTd = 1, 2, 7, 8, 10, 12, 14, 15, 16, 17
    ACC_V = 32
    aX, aW, aI, aOnes, aWp, aC = 96, 192, 224, 232, 236, 244
    T0 = 20

    def acc(cb, tb):
        if cb < 6:
            return ('a', (cb * 4 + tb) * 4)
        isu = cb >= 13
        j = cb - (13 if isu else 6)
        return ('v', ACC_V + (j * 2 + (tb >> 1)) * 16 + (8 if isu else 0) + (tb & 1) * 4)

    def accs(cb, tb):
        k, b = acc(cb, tb)
        return vr(b, 4, k)

    a('s_cmp_ge_u32 s2, 256')
    a(f's_cbranch_scc1 {L}_end')
    stamp(a, cfg, 0)
    stamp(a, cfg, 1)
    stampv(a, cfg, 19, 0, 4)
    a(f's_load_dwordx2 s[82:83], s[0:1], {KA_WS}')
    a(f's_load_dwordx2 s[70:71], s[0:1], {KA_WQKV}')
    a(f's_load_dwordx4 s[72:75], s[0:1], {KA_WPHI}')
    a(f's_load_dwordx4 s[76:79], s[0:1], {KA_WG}')
    a(f's_load_dwordx2 s[80:81], s[0:1], {KA_WD}')
    a(f'v_lshrrev_b32 v{T0}, 6, v0')
    a(f'v_and_b32 v{vLane}, 63, v0')
    a(f'v_readfirstlane_b32 s{sWave}, v{T0}')
    a('s_and_b32 s3, s2, 7')
    a('s_lshl_b32 s3, s3, 2')
    a('s_bfe_u32 s4, s2, 0x20003')
    a(f's_add_u32 s{sHead}, s3, s4')
    a(f's_lshr_b32 s{sMt}, s2, 5')
    a(f'v_lshlrev_b32 v{vA}, 4, v{vLane}')
    a(f's_mul_i32 s3, s{sWave}, 5')
    a(f's_lshl_b32 s84, s{sHead}, 6')
    a(f's_mul_i32 s85, s{sHead}, 224')
    for t in range(5):
        d = sB0 + 4 * t
        a(f's_add_u32 s4, s3, {t}')
        a('s_cmp_ge_u32 s4, 13')
        a('s_cselect_b32 s5, 13, 6')
        a('s_cmp_lt_u32 s4, 6')
        a('s_cselect_b32 s5, 0, s5')
        a(f's_cselect_b32 s{d}, 12, 14')
        a(f's_cselect_b32 s{d+1}, s84, s85')
        a(f's_cselect_b32 s6, 1984, 0')
        a(f's_cselect_b32 s7, 2, 0')
        a(f's_movk_i32 s{d+3}, 4682')
        a(f's_cselect_b32 s{d+3}, 5462, s{d+3}')
        a(f's_lshl_b32 s{sDst+t}, s4, 10')
        a('s_sub_u32 s5, s4, s5')
        a('s_lshl_b32 s5, s5, 6')
        a(f's_lshl_b32 s{d+2}, s{d}, 9')
        a(f's_lshl_b32 s{sStep+t}, s{d}, 14')
        a(f'v_add_u32 v{T0}, s5, v{vLane}')
        a(f'v_mul_u32_u24 v{T0+1}, s{d+3}, v{T0}')
        a(f'v_lshrrev_b32 v{T0+1}, 16, v{T0+1}')
        a(f'v_mul_u32_u24 v{T0+2}, s{d}, v{T0+1}')
        a(f'v_sub_u32 v{T0+2}, v{T0}, v{T0+2}')
        a(f'v_lshrrev_b32 v{T0+3}, 1, v{T0+1}')
        a(f'v_and_b32 v{T0+4}, s7, v{T0+3}')
        a(f'v_xor_b32 v{T0+2}, v{T0+2}, v{T0+4}')
        a(f'v_and_b32 v{T0+3}, 4, v{T0+3}')
        a(f'v_and_b32 v{T0+4}, 4, v{T0+1}')
        a(f'v_lshl_or_b32 v{T0+3}, v{T0+4}, 1, v{T0+3}')
        a(f'v_and_or_b32 v{T0+1}, v{T0+1}, 19, v{T0+3}')
        a(f'v_mul_u32_u24 v{T0+1}, s{d+2}, v{T0+1}')
        a(f'v_lshl_add_u32 v{T0+1}, v{T0+2}, 4, v{T0+1}')
        a(f'v_lshrrev_b32 v{T0+2}, 2, v{T0+2}')
        a(f'v_mul_u32_u24 v{T0+2}, s6, v{T0+2}')
        a(f'v_add3_u32 v{vDma+t}, v{T0+1}, v{T0+2}, s{d+1}')
        a(f's_lshl_b32 s{d+2}, s{d+2}, 10')
        a(f's_mov_b32 s{sOff+t}, 0')
    a(f's_lshl_b32 s4, s{sMt}, 2')
    a(f's_add_u32 s4, s4, s{sWave}')
    a('s_lshl_b32 s4, s4, 17')
    a(f's_mov_b32 s{sAo}, 0')
    a(f's_movk_i32 s{sAo2}, 4096')
    a('s_waitcnt lgkmcnt(0)')
    stampv(a, cfg, 19, 1, 4)
    for t in range(5):
        d = sB0 + 4 * t
        a(f's_cmp_ge_u32 s3, {13-t}')
        a(f's_cselect_b32 s{d}, s78, s76')
        a(f's_cselect_b32 s{d+1}, s79, s77')
        a(f's_cmp_lt_u32 s3, {6-t}')
        a(f's_cselect_b32 s{d}, s70, s{d}')
        a(f's_cselect_b32 s{d+1}, s71, s{d+1}')
        a(f's_and_b32 s{d+1}, s{d+1}, 0xffff')
        a(f's_mov_b32 s{d+3}, 0x20000')
    srd_off(a, sA, 's82', 's83', 's4', 131072)

    vm = VmQ()
    inloop = [False]

    def slot_of(u):
        return (u + 2) % 3

    def dma(u, i, parts=(0, 1, 2)):
        if inloop[0] and cfg.get('k1_nodma'):
            if 1 in parts:
                vm.issue(('B', u), 0)
            return
        t, ch = i % 5, i // 5
        d = sB0 + 4 * t
        if 0 in parts:
            a(f's_add_u32 m0, s{sDst+t}, {slot_of(u)*K1_STAGE + ch*C_SZ}')
        if 1 in parts:
            a(f'buffer_load_dwordx4 v{vDma+t}, s[{d}:{d+3}], s{sOff+t} offen lds')
            vm.issue(('B', u))
        if 2 in parts:
            a(f's_add_u32 s{sOff+t}, s{sOff+t}, s{sStep+t}')

    def aload(u, i):
        if inloop[0] and cfg.get('k1_noa'):
            vm.issue(('A', u), 0)
            return
        t, tb = i >> 2, i & 3
        a(f'buffer_load_dwordx4 {ar(aX+slot_of(u)*32+i*4, 4)}, v{vA}, s[{sA}:{sA+3}], s{sAo2 if t else sAo} offen offset:{tb*1024}')
        vm.issue(('A', u))
        if tb == 3:
            r = sAo2 if t else sAo
            a(f's_add_u32 s{r}, s{r}, 8192')

    def bread(u, cb, i):
        if inloop[0] and cfg.get('k1_nods'):
            return
        t, h = i >> 1, i & 1
        off = slot_of(u) * K1_STAGE + t * C_SZ
        hi = 1 if off >= ADDR_SPLIT else 0
        off -= hi * ADDR_SPLIT
        if cb < 6:
            off += C_QKV + 8 * h * 192 + 32 * cb
            addr = (vQO if cb & 1 else vQE) + hi
        elif cb < 13:
            off += C_G + 8 * h * 224 + 32 * (cb - 6)
            addr = vGU + hi
        else:
            off += C_U + 8 * h * 224 + 32 * (cb - 13)
            addr = vGU + hi
        a(f'ds_read_b64_tr_b16 {ar(aW+(cb%4)*8+2*i, 2)}, v{addr} offset:{off}')

    for i in range(10):
        dma(0, i)
    for i in range(8):
        aload(0, i)
    stampv(a, cfg, 19, 2, 4)
    for i in range(4):
        a(f'v_mov_b32 v{T0+i}, 0')
    for b in range(6):
        a(f'{M32} {ar(b*16,16)}, {vr(T0,4)}, {vr(T0,4)}, 0')
    zero_list = [f'{M32} {vr(ACC_V+b*16,16)}, {vr(T0,4)}, {vr(T0,4)}, 0' for b in range(14)]
    a.sprinkle(zero_list, 6)
    U = T0 + 4
    srd(a, sP, 's72', 's73', 65536)
    a(f's_and_b32 s4, s{sWave}, 1')
    a('s_lshl_b32 s4, s4, 10')
    a(f's_lshl_b32 s5, s{sHead}, 11')
    a('s_add_u32 s5, s5, s4')
    a(f's_add_u32 m0, s4, {K1_WPHI}')
    a(f'buffer_load_dwordx4 v{vA}, s[{sP}:{sP+3}], s5 offen lds')
    a(f'v_lshrrev_b32 v{U}, 5, v{vLane}')
    a(f'v_bfe_u32 v{U+1}, v{vLane}, 2, 3')
    a(f'v_lshl_add_u32 v{U}, v{U}, 4, v{U+1}')
    a(f'v_and_b32 v{U+2}, 3, v{vLane}')
    a(f'v_lshlrev_b32 v{U+2}, 3, v{U+2}')
    a(f'v_mul_u32_u24 v{U+3}, 224, v{U}')
    a(f'v_add_u32 v{vGU}, v{U+3}, v{U+2}')
    a(f'v_add_u32 v{vGU+1}, {ADDR_SPLIT}, v{vGU}')
    a(f'v_mul_u32_u24 v{U+3}, 192, v{U}')
    a(f'v_add_u32 v{U+3}, v{U+3}, v{U+2}')
    a(f'v_and_b32 v{U+1}, 16, v{vLane}')
    a(f'v_lshlrev_b32 v{U+1}, 1, v{U+1}')
    a(f'v_add_u32 v{vQE}, v{U+3}, v{U+1}')
    a(f'v_sub_u32 v{vQO}, v{U+3}, v{U+1}')
    a(f'v_add_u32 v{vQE+1}, {ADDR_SPLIT}, v{vQE}')
    a(f'v_add_u32 v{vQO+1}, {ADDR_SPLIT}, v{vQO}')
    srd(a, sW, 's82', 's83', WS_USED)
    srd(a, sP, 's80', 's81', 3584 * 2048)
    a(f's_lshl_b32 s{sWid}, s2, 2')
    a(f's_add_u32 s{sWid}, s{sWid}, s{sWave}')
    a(f's_lshr_b32 s4, s{sWid}, 1')
    a(f's_and_b32 s5, s{sWid}, 1')
    a('s_and_b32 s6, s4, 1')
    a('s_lshl_b32 s6, s6, 1')
    a('s_and_b32 s7, s4, 2')
    a('s_lshl_b32 s84, s7, 2')
    a('s_or_b32 s6, s6, s84')
    a(f'v_and_b32 v{U}, 15, v{vLane}')
    a(f'v_xor_b32 v{U}, s6, v{U}')
    a(f'v_lshrrev_b32 v{U+1}, 4, v{vLane}')
    a('s_lshl_b32 s84, s5, 2')
    a(f'v_add_u32 v{U+1}, s84, v{U+1}')
    a(f'v_mul_u32_u24 v{U+1}, {3584*256}, v{U+1}')
    a(f'v_lshl_add_u32 v{U+1}, v{U}, 4, v{U+1}')
    a('s_lshl_b32 s84, s4, 8')
    a(f'v_add_u32 v{vCd}, s84, v{U+1}')
    a(f'v_and_b32 v{U}, 7, v{vLane}')
    a(f'v_xor_b32 v{U}, s7, v{U}')
    a(f'v_lshrrev_b32 v{U+1}, 3, v{vLane}')
    a('s_lshl_b32 s84, s5, 3')
    a(f'v_add_u32 v{U+1}, s84, v{U+1}')
    a(f'v_lshlrev_b32 v{U+1}, 17, v{U+1}')
    a(f'v_lshl_add_u32 v{U+1}, v{U}, 4, v{U+1}')
    a('s_lshl_b32 s84, s4, 7')
    a(f'v_add_u32 v{vWo}, s84, v{U+1}')
    a(f's_lshl_b32 s{sWid}, s{sWid}, 10')
    a(f's_cmp_eq_u32 s{sWave}, 1')
    a(f's_cselect_b32 s{sT}, s76, s78')
    a(f's_cselect_b32 s{sT+1}, s77, s79')
    a('s_movk_i32 s4, 3584')
    a(f's_mov_b32 s{sT+2}, {7168*1024}')
    a(f's_cmp_eq_u32 s{sWave}, 0')
    a(f's_cselect_b32 s{sT}, s70, s{sT}')
    a(f's_cselect_b32 s{sT+1}, s71, s{sT+1}')
    a('s_cselect_b32 s4, 3072, s4')
    a(f's_cselect_b32 s{sT+2}, {6144*1024}, s{sT+2}')
    a(f's_mul_i32 s5, s4, {2*cfg.get("t_start", 128)}')
    a(f's_cmp_eq_u32 s{sWave}, 3')
    a(f's_cselect_b32 s{sT}, s80, s{sT}')
    a(f's_cselect_b32 s{sT+1}, s81, s{sT+1}')
    a('s_cselect_b32 s4, 7168, s4')
    a('s_cselect_b32 s5, 0, s5')
    a(f's_and_b32 s{sT+1}, s{sT+1}, 0xffff')
    a(f's_mov_b32 s{sT+3}, 0x20000')
    a(f's_mul_i32 s{sTo}, s4, s2')
    a(f's_add_u32 s{sTo}, s{sTo}, s5')
    a(f's_lshl_b32 s{sTs}, s4, 8')
    a(f'v_lshlrev_b32 v{vTo}, 7, v{vLane}')
    a(f'v_mov_b32 v{U}, 0x1000000')
    a(f'v_cmp_gt_u32 vcc, s4, v{vTo}')
    a(f'v_cndmask_b32 v{vTo}, v{U}, v{vTo}, vcc')
    for _ in range(cfg.get('t_pro', 1)):
        a(f'buffer_load_dword v{vTd}, v{vTo}, s[{sT}:{sT+3}], s{sTo} offen')
        a(f's_add_u32 s{sTo}, s{sTo}, s{sTs}')
    a(f'v_and_b32 v{U}, 31, v{vLane}')
    a(f'v_lshrrev_b32 v{U+1}, 5, v{vLane}')
    a(f'v_lshlrev_b32 v{U+1}, 2, v{U+1}')
    a(f'v_sub_u32 v{U}, v{U}, v{U+1}')
    a(f'v_mov_b32 v{U+2}, 0x3f80')
    a(f'v_mov_b32 v{U+3}, 0x3f800000')
    for t in range(2):
        for rho in range(4):
            c = 16 * t + 8 * (rho >> 1) + 2 * (rho & 1)
            a(f'v_cmp_eq_u32 vcc, {c}, v{U}')
            a(f'v_cmp_eq_u32 s[4:5], {c+1}, v{U}')
            a(f'v_cndmask_b32 v{U+4}, 0, v{U+2}, vcc')
            a(f'v_cndmask_b32 v{U+4}, v{U+4}, v{U+3}, s[4:5]')
            a(f'v_accvgpr_write_b32 a{aI+4*t+rho}, v{U+4}')
    a(f'v_mov_b32 v{U+4}, 0x3f803f80')
    for i in range(4):
        a(f'v_accvgpr_write_b32 a{aOnes+i}, v{U+4}')
    a.flush()
    a(f's_mov_b32 s{sCnt}, 0')
    a(f's_mov_b32 s{sU}, 0')
    stampv(a, cfg, 19, 3, 4)
    for i in range(10):
        dma(1, i)
    for i in range(4):
        a(f'v_mov_b32 v{U+i}, -1')
    a(f's_lshl_b32 s4, s{sWid}, 2')
    a(f's_add_u32 s4, s4, {EX_OFF}')
    for q in range(4):
        a(f'buffer_store_dwordx4 {vr(U,4)}, v{vA}, s[{sW}:{sW+3}], s4 offen offset:{q*1024}')
        vm.issue(('S', -1))
    a('s_lshl_b32 s4, s2, 7')
    a(f's_add_u32 s4, s4, {ID_OFF}')
    a(f'v_mov_b32 v{U+4}, 0')
    a(f'buffer_store_dword v{U}, v{U+4}, s[{sW}:{sW+3}], s4 offen')
    vm.issue(('S', -1))
    stampv(a, cfg, 19, 4, 4)
    a(f's_waitcnt vmcnt({vm.need([("B", 0)])})')
    a('s_barrier')
    stampv(a, cfg, 19, 5, 4)
    for cb in range(3):
        for i in range(4):
            bread(0, cb, i)
    for i in range(8):
        aload(1, i)
    stampv(a, cfg, 19, 6, 4)
    stamp(a, cfg, 2)
    stampv(a, cfg, 19, 7, 4)
    a(f's_branch {L}_part2')
    inloop[0] = True
    waits = {}

    def w(key, n):
        waits.setdefault(key, []).append(n)
        return min(waits[key])

    def side(u, k):
        if k == 0:
            if cfg.get('k1_notouch'):
                return
            a(f'buffer_load_dword v{vTd}, v{vTo}, s[{sT}:{sT+3}], s{sTo} offen')
            a(f's_add_u32 s{sTo}, s{sTo}, s{sTs}')
            vm.issue(('T', u))
        elif k == 1:
            if cfg.get('k1_nocopy'):
                return
            a(f's_sub_u32 s4, s{sU}, 5')
            a('s_lshl_b32 s5, s4, 17')
            a(f's_add_u32 s5, s5, {WDT_OFF}')
            a('s_cmp_lt_u32 s4, 7')
            a(f's_cselect_b32 s5, s5, {WS_USED}')
        elif k == 2:
            if cfg.get('k1_nocopy'):
                return
            if any(t == ('C', u - 1) for (t, _) in vm.q):
                n = w((u % 3, 'C'), vm.need([('C', u - 1)]))
            else:
                n = min(waits.get((u % 3, 'C'), [63]))
            a(f's_waitcnt vmcnt({n})')
            a(f'buffer_store_dwordx4 {ar(aC,4)}, v{vCd}, s[{sW}:{sW+3}], s5 offen')
            vm.issue(('S', u))
        elif k == 3:
            if cfg.get('k1_nocopy'):
                return
            a(f's_sub_u32 s4, s{sU}, 4')
            a('s_lshl_b32 s5, s4, 20')
            a(f's_add_u32 s5, s5, s{sWid}')
            a('s_cmp_lt_u32 s4, 7')
            a(f's_cselect_b32 s5, s5, {3584*2048}')
        elif k == 4:
            a(f's_add_u32 s{sU}, s{sU}, 1')
            if cfg.get('k1_nocopy'):
                return
            a(f'buffer_load_dwordx4 {ar(aC,4)}, v{vA}, s[{sP}:{sP+3}], s5 offen')
            vm.issue(('C', u))

    def superstep(u):
        sl = slot_of(u)
        for cb in range(20):
            if cb == 0:
                a(f's_waitcnt vmcnt({w((u % 3, "A"), vm.need([("A", u)]))}) lgkmcnt(8)')
            elif cb != 18:
                a('s_waitcnt lgkmcnt(8)')
            nu, ncb = (u, cb + 3) if cb + 3 < 20 else (u + 1, cb + 3 - 20)
            for m in range(8):
                tb, t = m >> 1, m & 1
                xf = ar(aX + sl * 32 + (t * 4 + tb) * 4, 4)
                wf = ar(aW + (cb % 4) * 8 + t * 4, 4)
                d = accs(cb, tb)
                if cb in (4, 5):
                    a(f'{M16} {d}, {xf}, {wf}, {d}')
                else:
                    a(f'{M16} {d}, {wf}, {xf}, {d}')
                if cb == 17:
                    if m == 3:
                        a(f's_waitcnt vmcnt({w((u % 3, "B"), vm.need([("B", u + 1)]))}) lgkmcnt(0)')
                        if not cfg.get('k1_nobar'):
                            a('s_barrier')
                    if m >= 4:
                        bread(nu, ncb, m - 4)
                else:
                    if m in (0, 1, 2, 3):
                        bread(nu, ncb, m)
                if cb < 10 and m in (4, 5, 6):
                    dma(u + 2, cb, (m - 4,))
                if m == 5:
                    if cb < 10:
                        pass
                    elif cb < 17:
                        aload(u + 2, cb - 10)
                    elif cb == 18:
                        side(u, 2)
                    elif cb == 19:
                        side(u, 4)
                if cb == 17 and m == 0:
                    aload(u + 2, 7)
                if cb == 18 and m == 4:
                    side(u, 1)
                if cb == 19 and m == 4:
                    side(u, 3)
                if cb == 18 and m == 7:
                    side(u, 0)

    q0 = list(vm.q)
    sl_, sh_ = a.lines, a.hist
    a.lines = []
    for u in range(0, 7):
        superstep(u)
    a.lines = []
    vm.q = list(q0)
    superstep(0)
    a.lines, a.hist = sl_, []
    a.raw('.p2align 6')
    a.label(f'{L}_loop')
    superstep(1)
    superstep(2)
    a.label(f'{L}_part2')
    superstep(3)
    a(f's_add_u32 s{sCnt}, s{sCnt}, 1')
    a(f's_cmp_lg_u32 s{sCnt}, 5')
    a(f's_cbranch_scc1 {L}_nowo')
    srd(a, sP, 's74', 's75', 1024 * 2048)
    a(f's_add_u32 s4, s{sWid}, {1024*1024}')
    a(f'buffer_load_dwordx4 v[24:27], v{vA}, s[{sP}:{sP+3}], s{sWid} offen')
    a(f'buffer_load_dwordx4 v[28:31], v{vA}, s[{sP}:{sP+3}], s4 offen')
    a.label(f'{L}_nowo')
    a(f's_cmp_lt_u32 s{sCnt}, 6')
    a(f's_cbranch_scc1 {L}_loop')
    inloop[0] = False

    stamp(a, cfg, 3)
    stampv(a, cfg, 19, 8, 4)
    a(f's_mov_b32 s3, {WOT_OFF}')
    a(f's_mov_b32 s4, {WOT_OFF + 512*128}')
    a(f'buffer_store_dwordx4 v[24:27], v{vWo}, s[{sW}:{sW+3}], s3 offen')
    a(f'buffer_store_dwordx4 v[28:31], v{vWo}, s[{sW}:{sW+3}], s4 offen')
    wphi_addr(a, 20, 21, vLane, K1_WPHI)
    for t in range(2):
        for h in range(2):
            a(f'ds_read_b64_tr_b16 {ar(aWp+4*t+2*h, 2)}, v20 offset:{(16*t+4*h)*64}')
    a(f's_lshl_b32 s3, s{sMt}, 3')
    a(f's_lshl_b32 s4, s{sWave}, 1')
    a('s_add_u32 s3, s3, s4')
    a(f's_mul_i32 s4, s3, {HO_RB}')
    a(f's_mul_i32 s5, s{sHead}, {7*1024}')
    a('s_add_u32 s4, s4, s5')
    a(f's_add_u32 s4, s4, {HO_OFF}')
    a('s_add_u32 s5, s4, 4096')
    a(f's_add_u32 s6, s4, {HO_RB}')
    a(f's_add_u32 s7, s5, {HO_RB}')
    a('s_lshl_b32 s84, s3, 16')
    a(f's_lshl_b32 s85, s{sHead}, 11')
    a('s_add_u32 s84, s84, s85')
    a(f's_add_u32 s84, s84, {Q_OFF}')
    a('s_add_u32 s85, s84, 65536')
    a(f's_mov_b32 s44, {LOG2E}')
    a(f's_mov_b32 s45, {LOG2E}')
    a('s_mov_b32 s46, 0xffff0000')
    HPOL = {0: '', 1: ' nt', 2: ' sc1', 3: ' sc0 sc1'}[cfg.get('hpol', 0)]
    stores = []
    for n in range(14):
        j, rb = n >> 1, n & 1
        G = ACC_V + n * 16
        D = ACC_V + n * 4
        if cfg.get('h_round'):
            pass
        for i in range(0, 8, 2):
            a(f'v_pk_mul_f32 v[{G+i}:{G+i+1}], v[{G+i}:{G+i+1}], v[{G+8+i}:{G+9+i}]')
        for i in range(4):
            a(f'v_cvt_pk_bf16_f32 v{D+i}, v{G+2*i}, v{G+2*i+1}')
        if n:
            P = D - 4
            a(f'v_permlane16_swap_b32 v{P}, v{P+2}')
            a(f'v_permlane16_swap_b32 v{P+1}, v{P+3}')
            if n % 3 == 0 and stores:
                a(stores.pop(0))
        stores.append(f'buffer_store_dwordx4 v[{D}:{D+3}], v{vA}, s[{sW}:{sW+3}], s{4 + 2*rb + (j >> 2)} offen offset:{(j&3)*1024}{HPOL}')
    P = ACC_V + 13 * 4
    a(f'v_permlane16_swap_b32 v{P}, v{P+2}')
    a(f'v_permlane16_swap_b32 v{P+1}, v{P+3}')
    stampv(a, cfg, 19, 9, 4)
    a.sprinkle(stores, 28)

    def base(rb):
        return 96 + rb * 80
    KVp, KVm, Zp, Zm = 0, 16, 32, 48

    def conv_T(cb0, rb, tmp, dst):
        for db in range(2):
            for tl in range(2):
                s_ = acc(cb0 + db, rb * 2 + tl)[1]
                for i in range(4):
                    a(f'v_accvgpr_read_b32 v{tmp+db*8+tl*4+i}, a{s_+i}')
        for i in range(8):
            a(f'v_cvt_pk_bf16_f32 v{dst+i}, v{tmp+2*i}, v{tmp+2*i+1}')

    def swaps16(dst):
        for f in range(2):
            a(f'v_permlane16_swap_b32 v{dst+4*f}, v{dst+4*f+2}')
            a(f'v_permlane16_swap_b32 v{dst+4*f+1}, v{dst+4*f+3}')

    for rb in range(2):
        conv_T(2, rb, base(rb) + 16, base(rb) + 32)
    for rb in range(2):
        swaps16(base(rb) + 32)
    a('s_waitcnt lgkmcnt(0)')
    for t in range(2):
        for rb in range(2):
            b = base(rb)
            a(f'{M32} {vr(b,16)}, {ar(aWp+4*t,4)}, {vr(b+32+4*t,4)}, {vr(b,16) if t else 0}')
    for rb in range(2):
        conv_T(0, rb, base(rb) + 16, base(rb) + 64)
    for rb in range(2):
        swaps16(base(rb) + 64)
    a.sprinkle([f'buffer_store_dwordx4 {vr(base(rb)+64+4*t,4)}, v{vA}, s[{sW}:{sW+3}], s{84+rb} offen offset:{t*1024}'
                for rb in range(2) for t in range(2)], 28)
    for rb in range(2):
        b = base(rb)
        for tl in range(2):
            for db in range(2):
                s_ = acc(4 + db, rb * 2 + tl)[1]
                for i in range(4):
                    a(f'v_accvgpr_read_b32 v{b+16+tl*8+db*4+i}, a{s_+i}')
        for i in range(8):
            a(f'v_cvt_pk_bf16_f32 v{b+56+i}, v{b+16+2*i}, v{b+16+2*i+1}')
    for rb in range(2):
        swaps16(base(rb) + 56)
    for rb in range(2):
        d = base(rb) + 56
        for f in range(2):
            a(f'v_permlane32_swap_b32 v{d+4*f}, v{d+4*f+2}')
            a(f'v_permlane32_swap_b32 v{d+4*f+1}, v{d+4*f+3}')
    stampv(a, cfg, 19, 10, 4)
    softmax_pm(a, [dict(P=base(rb), E=base(rb) + 16, T=base(rb) + 32, O=base(rb) + 40) for rb in range(2)], 's[44:45]', 's46')
    stampv(a, cfg, 19, 11, 4)
    for t in range(2):
        for rb in range(2):
            b = base(rb)
            for pm in range(2):
                d = vr(b + 16 * pm, 16)
                a(f'{M32} {d}, {vr(b+40+8*pm+4*t,4)}, {ar(aI+4*t,4)}, {d if t else 0}')
    a.flush()
    a(f's_lshl_b32 s3, s{sWave}, 13')
    a(f's_add_u32 s3, s3, {K1_RED}')
    a(f'v_add_u32 v20, s3, v{vA}')
    a(f's_lshl_b32 s3, s{sWave}, 9')
    a(f's_add_u32 s3, s3, {K1_ZR}')
    a(f'v_lshlrev_b32 v21, 2, v{vLane}')
    a('v_add_u32 v22, s3, v21')
    a(f's_lshl_b32 s3, s{sWave}, 11')
    a(f's_add_u32 s3, s3, {K1_RED}')
    a(f'v_add_u32 v23, s3, v{vA}')
    a(f'v_lshrrev_b32 v8, 5, v{vLane}')
    a('v_lshlrev_b32 v8, 8, v8')
    a(f'v_and_b32 v9, 31, v{vLane}')
    a('v_lshl_add_u32 v8, v9, 2, v8')
    a(f'v_add_u32 v8, {K1_ZR}, v8')
    a(f's_lshl_b32 s3, s{sHead}, 3')
    a(f's_add_u32 s3, s3, s{sMt}')
    a('s_lshl_b32 s47, s3, 13')
    a(f's_lshl_b32 s48, s{sWave}, 11')
    a('s_add_u32 s47, s47, s48')
    a(f's_add_u32 s47, s47, {KVP_OFF}')
    a('s_lshl_b32 s48, s3, 8')
    a(f's_add_u32 s48, s48, {ZP_OFF}')
    first = True
    for rb in range(2):
        b = base(rb)
        for pm in range(2):
            for i in range(8):
                a(f'v_cvt_pk_bf16_f32 v{b+40+8*pm+i}, v{b+16*pm+2*i}, v{b+16*pm+2*i+1}')
        for t in range(2):
            for pm in range(2):
                d = ar(KVm if pm else KVp, 16)
                a(f'{M32} {d}, {vr(b+40+8*pm+4*t,4)}, {vr(b+56+4*t,4)}, {0 if first else d}')
            for pm in range(2):
                d = ar(Zm if pm else Zp, 16)
                a(f'{M32} {d}, {ar(aOnes,4)}, {vr(b+40+8*pm+4*t,4)}, {0 if first else d}')
            first = False
    stampv(a, cfg, 19, 12, 4)
    for q in range(8):
        a(f'ds_write_b128 v20, {ar(KVp+4*q,4)} offset:{q*1024}')
    a(f'ds_write_b32 v22, a{Zp}')
    a(f'ds_write_b32 v22, a{Zm} offset:256')
    a('s_waitcnt lgkmcnt(0)')
    a('s_barrier')
    R = 96
    for w_ in range(4):
        for q in range(2):
            a(f'ds_read_b128 {vr(R+w_*8+q*4,4)}, v23 offset:{w_*8192+q*1024}')
    for w_ in range(4):
        a(f'ds_read_b32 v{R+32+w_}, v8 offset:{w_*512}')
    a('s_waitcnt lgkmcnt(8)')
    for i in range(0, 8, 2):
        a(f'v_pk_add_f32 v[{R+i}:{R+1+i}], v[{R+i}:{R+1+i}], v[{R+8+i}:{R+9+i}]')
    a('s_waitcnt lgkmcnt(4)')
    for i in range(0, 8, 2):
        a(f'v_pk_add_f32 v[{R+16+i}:{R+17+i}], v[{R+16+i}:{R+17+i}], v[{R+24+i}:{R+25+i}]')
    for i in range(0, 8, 2):
        a(f'v_pk_add_f32 v[{R+i}:{R+1+i}], v[{R+i}:{R+1+i}], v[{R+16+i}:{R+17+i}]')
    a(f'buffer_store_dwordx4 {vr(R,4)}, v{vA}, s[{sW}:{sW+3}], s47 offen')
    a(f'buffer_store_dwordx4 {vr(R+4,4)}, v{vA}, s[{sW}:{sW+3}], s47 offen offset:1024')
    stampv(a, cfg, 19, 13, 4)
    stampv_store(a, cfg, 19, 18, 4)
    a(f's_cmp_lg_u32 s{sWave}, 0')
    a(f's_cbranch_scc1 {L}_end')
    a('s_waitcnt lgkmcnt(0)')
    a(f'v_add_f32 v{R+32}, v{R+32}, v{R+33}')
    a(f'v_add_f32 v{R+34}, v{R+34}, v{R+35}')
    a(f'v_add_f32 v{R+32}, v{R+32}, v{R+34}')
    a(f'buffer_store_dword v{R+32}, v21, s[{sW}:{sW+3}], s48 offen')
    if cfg.get('prof'):
        a('s_waitcnt vmcnt(0)')
    stamp(a, cfg, 4)
    stamp(a, cfg, 5)
    stamp_store(a, cfg, 1)
    a.label(f'{L}_end')
    a('s_endpgm')
    return L, kernel_desc(L, 512, 102, 256), (256, 256, K1_LDS)


NOSENT = [0]


def ophase(a, sWphiLo, sHead, sMt, sWave, vLane, vL16, sW, sP, sT, vb, sc, sEx):
    L_KV, L_WP, L_Z = 0, 4096, 6144
    srd(a, sP, f's{sWphiLo}', f's{sWphiLo+1}', 65536)
    a(f's_and_b32 s{sT}, s{sWave}, 1')
    a(f's_lshl_b32 s{sT}, s{sT}, 10')
    a(f's_lshl_b32 s{sT+1}, s{sHead}, 11')
    a(f's_add_u32 s{sT+1}, s{sT+1}, s{sT}')
    a(f's_add_u32 m0, s{sT}, {L_WP}')
    a(f'buffer_load_dwordx4 v{vL16}, s[{sP}:{sP+3}], s{sT+1} offen lds')
    QF = vb + 80
    a(f's_lshl_b32 s{sT+2}, s{sMt}, 3')
    a(f's_lshl_b32 s{sT+1}, s{sWave}, 1')
    a(f's_add_u32 s{sT+2}, s{sT+2}, s{sT+1}')
    a(f's_lshl_b32 s{sT}, s{sT+2}, 16')
    a(f's_lshl_b32 s{sT+1}, s{sHead}, 11')
    a(f's_add_u32 s{sT}, s{sT}, s{sT+1}')
    a(f's_add_u32 s{sT}, s{sT}, {Q_OFF}')
    a(f's_add_u32 s{sT+3}, s{sT}, 65536')
    for rb in range(2):
        for t in range(2):
            a(f'buffer_load_dwordx4 {vr(QF+rb*8+t*4,4)}, v{vL16}, s[{sW}:{sW+3}], s{sT+3*rb} offen offset:{t*1024}')
    a(f's_mul_i32 s{sT+4}, s{sT+2}, {HO_RB}')
    a(f's_add_u32 s{sT+4}, s{sT+4}, s{sT+1}')
    a(f's_add_u32 s{sT+4}, s{sT+4}, {HO_OFF + 224*1024}')
    a(f's_add_u32 s{sT+5}, s{sT+4}, {HO_RB}')
    a(f's_lshl_b32 s{sT}, s{sHead}, 16')
    a(f's_lshl_b32 s{sT+1}, s{sWave}, 11')
    a(f's_add_u32 s{sT}, s{sT}, s{sT+1}')
    a(f's_add_u32 s{sT}, s{sT}, {KVP_OFF}')
    KL = vb
    for m in range(8):
        for q in range(2):
            a(f'buffer_load_dwordx4 {vr(KL+m*8+q*4,4)}, v{vL16}, s[{sW}:{sW+3}], s{sT} offen offset:{q*1024}')
        if m < 7:
            a(f's_add_u32 s{sT}, s{sT}, 8192')
    ZL = vb + 64
    vT = vb + 72
    a(f's_lshl_b32 s{sT}, s{sHead}, 11')
    a(f's_add_u32 s{sT}, s{sT}, {ZP_OFF}')
    a(f'v_lshlrev_b32 v{vT}, 2, v{vLane}')
    for m in range(8):
        a(f'buffer_load_dword v{ZL+m}, v{vT}, s[{sW}:{sW+3}], s{sT} offen offset:{m*256}')
    B0 = vb + 96
    WP = vb + 208
    a(f's_mov_b32 s{sT+6}, {LOG2E}')
    a(f's_mov_b32 s{sT+7}, {LOG2E}')
    a(f's_mov_b32 s{sT+8}, 0xffff0000')
    a(f's_lshl_b32 s{sT}, s{sWave}, 10')
    a(f's_add_u32 s{sT}, s{sT}, {L_KV}')
    a(f'v_add_u32 v{vT+1}, s{sT}, v{vL16}')
    a(f'v_lshlrev_b32 v{vT+2}, 1, v{vLane}')
    a(f'v_lshrrev_b32 v{vT+4}, 5, v{vLane}')
    a(f'v_lshlrev_b32 v{vT+4}, 3, v{vT+4}')
    wphi_addr(a, vT + 3, vT + 5, vLane, 0)

    def base(rb):
        return B0 + rb * 56
    a('s_waitcnt vmcnt(24)')
    a('s_barrier')
    for t in range(2):
        for h in range(2):
            a(f'ds_read_b64_tr_b16 {vr(WP+4*t+2*h,2)}, v{vT+3} offset:{L_WP+(16*t+4*h)*64}')
    a('s_waitcnt lgkmcnt(0)')
    for t in range(2):
        for rb in range(2):
            d = vr(base(rb), 16)
            a(f'{M32} {d}, {vr(WP+4*t,4)}, {vr(QF+rb*8+t*4,4)}, {d if t else 0}')
    a('s_waitcnt vmcnt(8)')
    for stride in (32, 16, 8):
        for o in range(0, stride, 2):
            a(f'v_pk_add_f32 v[{KL+o}:{KL+o+1}], v[{KL+o}:{KL+o+1}], v[{KL+stride+o}:{KL+stride+o+1}]')
    for i in range(4):
        a(f'v_cvt_pk_bf16_f32 v{KL+i}, v{KL+2*i}, v{KL+2*i+1}')
    a(f'ds_write_b128 v{vT+1}, {vr(KL,4)}')
    a('s_waitcnt vmcnt(0)')
    for stride in (4, 2):
        for o in range(0, stride, 2):
            a(f'v_pk_add_f32 v[{ZL+o}:{ZL+o+1}], v[{ZL+o}:{ZL+o+1}], v[{ZL+stride+o}:{ZL+stride+o+1}]')
    a(f'v_add_f32 v{ZL}, v{ZL}, v{ZL+1}')
    a(f'v_cvt_pk_bf16_f32 v{ZL}, v{ZL}, v{ZL}')
    a(f'ds_write_b16 v{vT+2}, v{ZL} offset:{L_Z}')
    a('s_waitcnt lgkmcnt(0)')
    a('s_barrier')
    KVF = vb + 8
    ZF = vb + 24
    for f in range(4):
        a(f'ds_read_b128 {vr(KVF+4*f,4)}, v{vL16} offset:{L_KV+f*1024}')
    for f in range(4):
        for h in range(2):
            a(f'ds_read_b64 {vr(ZF+4*f+2*h,2)}, v{vT+4} offset:{L_Z+f*32+h*16}')
    softmax_pm(a, [dict(P=base(rb), E=base(rb) + 16, T=base(rb) + 32, O=base(rb) + 40) for rb in range(2)],
               f's[{sT+6}:{sT+7}]', f's{sT+8}')
    a('s_waitcnt lgkmcnt(0)')
    for f in range(4):
        for rb in range(2):
            b = base(rb)
            a(f'{M32} {vr(b+16,16)}, {vr(ZF+4*f,4)}, {vr(b+40+4*f,4)}, {vr(b+16,16) if f else 0}')
            a(f'{M32} {vr(b,16)}, {vr(KVF+4*f,4)}, {vr(b+40+4*f,4)}, {vr(b,16) if f else 0}')
    for rb in range(2):
        D = base(rb) + 16
        a(f'v_cvt_pk_bf16_f32 v{D}, v{D}, v{D}')
        a(f'v_lshlrev_b32 v{D}, 16, v{D}')
        a(f'v_add_f32 v{D}, 0x358637bd, v{D}')
        a(f'v_cvt_pk_bf16_f32 v{D}, v{D}, v{D}')
        a(f'v_lshlrev_b32 v{D}, 16, v{D}')
        a(f'v_rcp_f32 v{D}, v{D}')
    for rb in range(2):
        b = base(rb)
        D = b + 16
        for i in range(8):
            a(f'v_cvt_pk_bf16_f32 v{b+32+i}, v{b+2*i}, v{b+2*i+1}')
        for i in range(8):
            a(f'v_lshlrev_b32 v{b+2*i}, 16, v{b+32+i}')
            a(f'v_and_b32 v{b+2*i+1}, s{sT+8}, v{b+32+i}')
        for i in range(0, 16, 2):
            a(f'v_pk_mul_f32 v[{b+i}:{b+i+1}], v[{b+i}:{b+i+1}], v[{D}:{D+1}] op_sel_hi:[1,0]')
        for i in range(8):
            a(f'v_cvt_pk_bf16_f32 v{b+32+i}, v{b+2*i}, v{b+2*i+1}')
        a(f'buffer_store_dwordx4 {vr(b+32,4)}, v{vL16}, s[{sW}:{sW+3}], s{sT+4+rb} offen{sc}')
        a(f'buffer_store_dwordx4 {vr(b+36,4)}, v{vL16}, s[{sW}:{sW+3}], s{sT+4+rb} offen offset:1024{sc}')


CH = 16384
K3_LDS = 4 * CH


def gen_k3(a, cfg):
    L = 'k3_gemm2_kernel'
    kernel_head(a, L)
    sA, sW, sX, sO = 8, 12, 16, 20
    sWave, sMt, sCt, sP, sAo, sBo, sCh, sCnt, sDst, sB2, sEo, sEi, sFl, sId = range(24, 38)
    vLane, vL16, vR1, vR2, vXo, vFl, vId = 1, 2, 3, 7, 9, 10, 12
    ACC, BF2, AR, BF1 = 16, 80, 112, 176
    AX = 176
    EXR, TMP, GS, XR = 176, 192, 224, 240
    a('s_cmp_ge_u32 s2, 512')
    a(f's_cbranch_scc1 {L}_end')
    a(f's_load_dwordx2 s[48:49], s[0:1], {KA_WS}')
    a(f's_load_dwordx2 s[40:41], s[0:1], {KA_X}')
    a(f's_load_dwordx2 s[42:43], s[0:1], {KA_WPHI}')
    a(f's_load_dwordx2 s[46:47], s[0:1], {KA_OUT}')
    a('v_lshrrev_b32 v8, 6, v0')
    a(f'v_and_b32 v{vLane}, 63, v0')
    a(f'v_readfirstlane_b32 s{sWave}, v8')
    a(f'v_lshlrev_b32 v{vL16}, 4, v{vLane}')
    a('s_cmp_ge_u32 s2, 256')
    a(f's_cbranch_scc1 {L}_main')
    if cfg.get('k3_nohelp'):
        a('s_endpgm')
    a('s_and_b32 s50, s2, 7')
    a('s_lshl_b32 s50, s50, 2')
    a('s_bfe_u32 s51, s2, 0x20003')
    a('s_add_u32 s25, s50, s51')
    a('s_lshr_b32 s26, s2, 5')
    a('s_waitcnt lgkmcnt(0)')
    srd(a, sW, 's48', 's49', WS_USED)
    ophase(a, 42, 25, 26, sWave, vLane, vL16, sW, 16, 52, 8, ' sc1', None)
    a('s_waitcnt vmcnt(0)')
    a('s_barrier')
    a(f's_cmp_lg_u32 s{sWave}, 0')
    a(f's_cbranch_scc1 {L}_end')
    a('s_lshl_b32 s50, s26, 7')
    a(f's_add_u32 s50, s50, {CNT_OFF}')
    a('v_mov_b32 v3, 1')
    a('v_mov_b32 v4, 0')
    a('s_mov_b64 exec, 1')
    a(f'buffer_atomic_add v3, v4, s[{sW}:{sW+3}], s50 offen sc1')
    a('s_endpgm')
    a.label(f'{L}_main')
    a.reset()
    a('s_sub_u32 s2, s2, 256')
    stamp(a, cfg, 0)
    stamp(a, cfg, 1)
    if cfg.get('k3_prio'):
        a('s_setprio 1')
    a('s_bfe_u32 s50, s2, 0x20001')
    a('s_lshl_b32 s50, s50, 2')
    a('s_bfe_u32 s51, s2, 0x20003')
    a(f's_add_u32 s{sMt}, s50, s51')
    if cfg.get('k3_xpair'):
        a(f's_and_b32 s{sP}, s2, 1')
        a(f's_lshr_b32 s{sCt}, s2, 5')
    else:
        a(f's_bfe_u32 s{sP}, s2, 0x10005')
        a('s_and_b32 s50, s2, 1')
        a('s_lshl_b32 s50, s50, 2')
        a('s_lshr_b32 s51, s2, 6')
        a(f's_add_u32 s{sCt}, s50, s51')
    a(f's_lshl_b32 s50, s{sMt}, 2')
    a(f's_add_u32 s50, s50, s{sWave}')
    a(f's_mul_i32 s51, s50, {HO_RB}')
    a(f's_add_u32 s51, s51, {HO_OFF}')
    a(f's_mul_i32 s{sAo}, s{sP}, {112*1024}')
    a(f's_mul_i32 s{sBo}, s{sCt}, {3584*256}')
    a(f's_mul_i32 s52, s{sP}, {1792*256}')
    a(f's_add_u32 s{sBo}, s{sBo}, s52')
    a(f's_lshl_b32 s{sDst}, s{sWave}, 12')
    a(f's_add_u32 s{sBo}, s{sBo}, s{sDst}')
    a(f's_add_u32 s{sBo}, s{sBo}, {WDT_OFF}')
    a(f's_mov_b32 s{sCh}, 0')
    a(f's_lshl_b32 s53, s{sCt}, 1')
    a(f's_add_u32 s53, s53, s{sP}')
    a(f's_lshl_b32 s{sB2}, s53, 17')
    a(f's_add_u32 s{sB2}, s{sB2}, s{sDst}')
    a(f's_add_u32 s{sB2}, s{sB2}, {WOT_OFF}')
    a(f's_lshl_b32 s54, s{sMt}, 4')
    a('s_add_u32 s54, s54, s53')
    a(f's_lshl_b32 s{sId}, s54, 7')
    a(f's_add_u32 s{sId}, s{sId}, {ID_OFF}')
    a('s_lshl_b32 s54, s54, 2')
    a(f's_add_u32 s54, s54, s{sWave}')
    a(f's_lshl_b32 s{sEo}, s54, 12')
    a(f's_add_u32 s{sEo}, s{sEo}, {EX_OFF}')
    a('s_xor_b32 s54, s54, 4')
    a(f's_lshl_b32 s{sEi}, s54, 12')
    a(f's_add_u32 s{sEi}, s{sEi}, {EX_OFF}')
    a(f's_lshr_b32 s{sFl}, s{sMt}, 1')
    a(f's_lshl_b32 s{sFl}, s{sFl}, 7')
    a(f's_add_u32 s{sFl}, s{sFl}, {CNT_OFF}')
    a(f'v_and_b32 v11, 31, v{vLane}')
    a('v_lshlrev_b32 v11, 11, v11')
    a(f'v_lshrrev_b32 v12, 5, v{vLane}')
    a('v_lshl_add_u32 v11, v12, 6, v11')
    a('s_lshl_b32 s52, s50, 16')
    a('s_lshl_b32 s54, s53, 7')
    a('s_add_u32 s52, s52, s54')
    a(f'v_add_u32 v{vXo}, s52, v11')
    a(f'v_bfe_u32 v13, v{vLane}, 2, 2')
    a(f'v_and_b32 v14, 1, v{vLane}')
    a('v_lshlrev_b32 v11, 6, v14')
    a(f'v_bfe_u32 v14, v{vLane}, 4, 1')
    a('v_lshl_add_u32 v11, v14, 4, v11')
    a(f'v_bfe_u32 v14, v{vLane}, 1, 1')
    a('v_lshl_add_u32 v11, v14, 3, v11')
    a('v_lshrrev_b32 v14, 1, v13')
    a('v_lshl_add_u32 v15, v12, 2, v13')
    a('v_lshl_add_u32 v15, v15, 7, v11')
    a(f'v_lshl_add_u32 v{vR2}, v14, 5, v15')
    a(f'v_xor_b32 v{vR2+1}, 32, v{vR2}')
    a('v_lshl_add_u32 v15, v12, 3, v13')
    a('v_lshl_add_u32 v15, v15, 8, v11')
    a('v_lshl_add_u32 v15, v14, 7, v15')
    a('v_and_b32 v14, 1, v13')
    a('v_lshl_add_u32 v15, v14, 5, v15')
    a(f's_lshl_b32 s54, s{sP}, 7')
    a(f'v_xor_b32 v{vR1}, s54, v15')
    a(f'v_xor_b32 v{vR1+1}, 32, v{vR1}')
    a(f'v_xor_b32 v{vR1+2}, 0x80, v{vR1}')
    a(f'v_xor_b32 v{vR1+3}, 0xa0, v{vR1}')
    for i in range(4):
        a(f'v_mov_b32 v{12+i}, 0')
    for b in range(4):
        a(f'{M32} {vr(ACC+16*b,16)}, v[12:15], v[12:15], 0')
    a('s_waitcnt lgkmcnt(0)')
    srd_off(a, sA, 's48', 's49', 's51', HO_RB)
    srd(a, sW, 's48', 's49', WS_USED)

    vm = VmQ()
    inloop = [False]

    def dma_m0(chunk):
        a(f's_add_u32 m0, s{sDst}, {(chunk % 4)*CH}')

    def dma_q(chunk, u):
        if inloop[0] and cfg.get('k3_nob'):
            vm.issue(('B', chunk), 0)
            return
        a(f'buffer_load_dwordx4 v{vL16}, s[{sW}:{sW+3}], s{sBo} offen offset:{u*1024} lds')
        vm.issue(('B', chunk))

    def dma_adv():
        a(f's_add_u32 s{sBo}, s{sBo}, {CH}')
        a(f's_add_u32 s{sCh}, s{sCh}, 1')
        a(f's_cmp_eq_u32 s{sCh}, 28')
        a(f's_cselect_b32 s{sBo}, s{sB2}, s{sBo}')
        if inloop[0] and cfg.get('k3_wrap'):
            a(f's_and_b32 s{sBo}, s{sBo}, 0xfffdffff')

    def aload_to(reg, step, tag):
        if inloop[0] and cfg.get('k3_noa'):
            vm.issue((tag, step), 0)
            return
        a(f'buffer_load_dwordx4 {vr(reg,4)}, v{vL16}, s[{sA}:{sA+3}], s{sAo} offen offset:{(step&3)*1024}{"" if cfg.get("k3_plain") else " sc1"}')
        vm.issue((tag, step))
        if (step & 3) == 3:
            a(f's_add_u32 s{sAo}, s{sAo}, 4096')
            if inloop[0] and cfg.get('k3_wrap'):
                a(f's_and_b32 s{sAo}, s{sAo}, 0x7fff')

    def aload(step):
        aload_to(AR + 4 * (step % 16), step, 'A')

    def bread1(step, blk):
        slot = (step >> 2) % 4
        e = step % 4
        for h in range(2):
            off = slot * CH + ((step & 3) * 16 + 4 * h) * 256
            a(f'ds_read_b64_tr_b16 {vr(BF1+e*16+blk*4+2*h,2)}, v{vR1+blk} offset:{off}')

    def bread2(step, b):
        slot = (step >> 3) % 4
        e = step % 4
        for h in range(2):
            off = slot * CH + ((step & 7) * 16 + 8 * h) * 128
            a(f'ds_read_b64_tr_b16 {vr(BF2+e*8+b*4+2*h,2)}, v{vR2+b} offset:{off}')

    a('s_getreg_b32 s57, hwreg(HW_REG_XCC_ID)')
    a('s_and_b32 s57, s57, 0xf')
    a('s_or_b32 s57, s57, 0x100')
    for s_ in range(-16, 0):
        ph = s_ % 4
        c = (s_ + 2) // 4 + 3
        if s_ == -2:
            a(f's_waitcnt vmcnt({vm.need([("B", 0)])})')
            a('s_barrier')
            for t_ in range(2):
                for blk in range(4):
                    bread1(t_, blk)
        if ph == 3:
            aload(s_ + 15)
        if c >= 0:
            if ph == 2:
                if c > 0:
                    dma_adv()
                dma_m0(c)
            dma_q(c, (ph + 2) % 4)
        if ph != 2:
            aload(s_ + 16)
        if s_ == -11:
            srd(a, sX, 's40', 's41', 0x400000)
            srd(a, sO, 's46', 's47', 0x400000)
            a('v_mov_b32 v11, s57')
            a(f'buffer_store_dword v11, v15, s[{sW}:{sW+3}], s{sId} offen sc1')
    for i in range(4):
        a(f'buffer_load_dwordx4 {vr(XR+4*i,4)}, v{vXo}, s[{sX}:{sX+3}], 0 offen offset:{16*i}')
    a(f's_xor_b32 s{sId}, s{sId}, 128')
    a(f's_mov_b32 s{sCnt}, 0')
    stamp(a, cfg, 2)
    stampv(a, cfg, 14, 0)
    inloop[0] = True
    waits = {}

    def w(key, n):
        waits.setdefault(key, []).append(n)
        return min(waits[key])

    def step1(s):
        e = s % 16
        ph = s % 4
        c = (s + 2) // 4 + 3
        for blk in range(4):
            if blk == 0:
                a(f's_waitcnt vmcnt({w((e, "A"), vm.need([("A", s)]))}) lgkmcnt(8)')
            d = vr(ACC + 16 * blk, 16)
            a(f'{M32} {d}, {vr(BF1+ph*16+blk*4,4)}, {vr(AR+4*e,4)}, {d}')
            if ph == 2:
                if blk == 0:
                    dma_adv()
                    dma_m0(c)
                if blk == 1:
                    a(f's_waitcnt vmcnt({w((e, "B"), vm.need([("B", (s+2)//4)]))}) lgkmcnt(0)')
                    a('s_barrier')
                    bread1(s + 2, 0)
                if blk == 2:
                    bread1(s + 2, 1)
                    bread1(s + 2, 2)
                if blk == 3:
                    bread1(s + 2, 3)
                    dma_q(c, 0)
            else:
                bread1(s + 2, blk)
                if blk == 1:
                    dma_q(c, (ph + 2) % 4)
                if blk == 0 and ph == 3:
                    aload(s + 15)
            if blk == 2 and e == 1:
                a(f'buffer_load_dword v{vFl}, v15, s[{sW}:{sW+3}], s{sFl} offen sc1')
                vm.issue(('F', s))
            if blk == 2 and e == 5:
                a(f'buffer_load_dword v{vId}, v15, s[{sW}:{sW+3}], s{sId} offen sc1')
                vm.issue(('I', s))
        if ph != 2:
            aload(s + 16)

    q0 = list(vm.q)
    sl_, sh_ = a.lines, a.hist
    a.lines = []
    for s_ in range(48):
        step1(s_)
    a.lines, a.hist = sl_, sh_
    if cfg.get('verbose'):
        print(waits)
    vm.q = list(q0)
    a.raw('.p2align 6')
    a.label(f'{L}_loop1')
    for s_ in range(16):
        step1(s_)
    a(f's_add_u32 s{sCnt}, s{sCnt}, 1')
    if cfg.get('prof') == 3:
        a('s_mov_b32 s58, m0')
        a(f's_mov_b32 m0, s{sCnt}')
        stampv(a, cfg, 14, 'm0')
        a('s_mov_b32 m0, s58')
    a(f's_cmp_lg_u32 s{sCnt}, 6')
    a(f's_cbranch_scc1 {L}_l1next')
    a(f's_mov_b32 s{sAo}, {224*1024}')
    a(f's_waitcnt vmcnt({vm.need([("F", 1)])})')
    a('s_mov_b32 s55, 0')
    a.label(f'{L}_poll')
    a(f'v_readfirstlane_b32 s54, v{vFl}')
    a('s_cmp_ge_u32 s54, 32')
    a(f's_cbranch_scc1 {L}_l1next')
    a('s_add_u32 s55, s55, 1')
    a(f's_cmp_ge_u32 s55, {1 if cfg.get("k3_nohelp") else SPIN_MAX}')
    a(f's_cbranch_scc1 {L}_l1next')
    a('s_sleep 4')
    a(f'buffer_load_dword v{vFl}, v15, s[{sW}:{sW+3}], s{sFl} offen sc1')
    a('s_waitcnt vmcnt(0)')
    a(f's_branch {L}_poll')
    a.label(f'{L}_l1next')
    a(f's_cmp_lt_u32 s{sCnt}, 7')
    a(f's_cbranch_scc1 {L}_loop1')
    inloop[0] = False
    vm.q = [((('A2', t[1] - 16) if t[0] == 'A' else ('B', t[1] + 24) if t[0] == 'B' else t), wt) for (t, wt) in vm.q]

    def areg2(s):
        return AX + 4 * (s - 16) if 16 <= s < 32 else AR + 4 * (s % 16)

    dma_q(31, 2)
    dma_q(31, 3)
    dma_adv()
    a('s_waitcnt lgkmcnt(0)')
    for s_ in range(3):
        bread2(s_, 0)
        bread2(s_, 1)
    a('s_mov_b32 s54, 0xfffffffe')
    PB = ACC + 32
    for s_ in range(16, 32):
        i = s_ - 16
        aload_to(areg2(s_), s_, 'A2')
        a(f'v_cvt_pk_bf16_f32 v{PB+i}, v{PB+2*i}, v{PB+2*i+1}')
        a(f'v_min_u32 v{PB+i}, s54, v{PB+i}')
    a(f's_waitcnt vmcnt({vm.need([("I", 5)])})')
    a(f'v_readfirstlane_b32 s55, v{vId}')
    a('s_cmp_eq_u32 s55, s57')
    a(f's_cbranch_scc1 {L}_pubfast')
    for q in range(4):
        a(f'buffer_store_dwordx4 {vr(PB+4*q,4)}, v{vL16}, s[{sW}:{sW+3}], s{sEo} offen offset:{q*1024} sc1')
    a(f's_branch {L}_pubdone')
    a.label(f'{L}_pubfast')
    for q in range(4):
        a(f'buffer_store_dwordx4 {vr(PB+4*q,4)}, v{vL16}, s[{sW}:{sW+3}], s{sEo} offen offset:{q*1024}')
        vm.issue(('P', q))
    a.label(f'{L}_pubdone')
    a('s_nop 1')
    stampv(a, cfg, 14, 8)

    def exload(q):
        a(f'buffer_load_dwordx4 {vr(EXR+4*q,4)}, v{vL16}, s[{sW}:{sW+3}], s{sEi} offen offset:{q*1024} sc1')

    MID = cfg.get('k3_mid', 40)
    EL = cfg.get('k3_el', 24)

    def step2(s):
        bar = (s + 3) % 8 == 0
        c = 28 + (s + 3) // 8
        rd = s + 3 < 64
        a(f's_waitcnt vmcnt({vm.need([("A2", s)])}) lgkmcnt({min(8, 4*(63-s))})')
        for b in range(2):
            d = vr(ACC + 32 + 16 * b, 16)
            a(f'{M32} {d}, {vr(BF2+(s%4)*8+b*4,4)}, {vr(areg2(s),4)}, {d if s else 0}')
            if rd and bar:
                if b == 0 and c + 3 < 36:
                    dma_m0(c + 3)
                if b == 1:
                    a(f's_waitcnt vmcnt({vm.need([("B", c)])}) lgkmcnt(0)')
                    a('s_barrier')
                    bread2(s + 3, 0)
                    bread2(s + 3, 1)
            elif rd:
                bread2(s + 3, b)
                u = (s + 3) % 8 - 1
                if b == 0 and 0 <= u < 4 and s >= 5 and c + 3 < 36:
                    dma_q(c + 3, u)
                if b == 0 and u == 4 and s >= 5 and c + 3 < 36:
                    dma_adv()
        if s < 16:
            aload_to(AR + 4 * s, s + 32, 'A2')
        elif 32 <= s < 48:
            aload_to(AR + 4 * (s % 16), s + 16, 'A2')
        if EL <= s < EL + 4:
            exload(s - EL)
            vm.issue(('E', s - EL))

    for s_ in range(MID):
        step2(s_)
        if s_ % 8 == 7:
            stampv(a, cfg, 14, 32 + s_ // 8)
    stampv(a, cfg, 14, 9)
    a(f's_waitcnt vmcnt({vm.need([("E", 3)])})')
    a('s_mov_b32 s56, 0')
    a.label(f'{L}_chk')
    a(f'v_max3_u32 v11, v{EXR}, v{EXR+1}, v{EXR+2}')
    for i in range(3, 15, 2):
        a(f'v_max3_u32 v11, v11, v{EXR+i}, v{EXR+i+1}')
    a(f'v_max_u32 v11, v11, v{EXR+15}')
    a('v_cmp_eq_u32 vcc, -1, v11')
    a('s_nop 4')
    a(f's_cbranch_vccz {L}_got')
    a('s_add_u32 s56, s56, 1')
    a(f's_cmp_ge_u32 s56, {SPIN_MAX}')
    a(f's_cbranch_scc1 {L}_got')
    a('s_sleep 2')
    for q in range(4):
        exload(q)
    a('s_waitcnt vmcnt(0)')
    a(f's_branch {L}_chk')
    a.label(f'{L}_got')
    stampv(a, cfg, 14, 10)
    a(f's_mov_b32 s53, {LOG2E | 0x80000000}')
    a('s_mov_b32 s54, 0xffff0000')
    mid = []
    for i in range(16):
        mid.append(f'v_lshlrev_b32 v{TMP+2*i}, 16, v{EXR+i}')
        mid.append(f'v_and_b32 v{TMP+2*i+1}, s54, v{EXR+i}')
    for i in range(32):
        mid.append(f'v_add_f32 v{ACC+i}, v{ACC+i}, v{TMP+i}')
    for i in range(16):
        mid.append(f'v_cvt_pk_bf16_f32 v{GS+i}, v{ACC+2*i}, v{ACC+2*i+1}')
    for i in range(16):
        mid.append(f'v_lshlrev_b32 v{ACC+2*i}, 16, v{GS+i}')
        mid.append(f'v_and_b32 v{ACC+2*i+1}, s54, v{GS+i}')
    for i in range(32):
        mid.append(f'v_mul_f32 v{TMP+i}, s53, v{ACC+i}')
    for i in range(32):
        mid.append(f'v_exp_f32 v{TMP+i}, v{TMP+i}')
    for i in range(32):
        mid.append(f'v_add_f32 v{TMP+i}, 1.0, v{TMP+i}')
    for i in range(32):
        mid.append(f'v_rcp_f32 v{TMP+i}, v{TMP+i}')
    for i in range(32):
        mid.append(f'v_mul_f32 v{ACC+i}, v{ACC+i}, v{TMP+i}')
    for i in range(16):
        mid.append(f'v_cvt_pk_bf16_f32 v{GS+i}, v{ACC+2*i}, v{ACC+2*i+1}')
    for i in range(16):
        mid.append(f'v_lshlrev_b32 v{ACC+2*i}, 16, v{GS+i}')
        mid.append(f'v_and_b32 v{ACC+2*i+1}, s54, v{GS+i}')
        mid.append(f'v_lshlrev_b32 v{TMP+2*i}, 16, v{XR+i}')
        mid.append(f'v_and_b32 v{TMP+2*i+1}, s54, v{XR+i}')
    per = -(-len(mid) // (2 * (64 - MID)))
    mid2 = ['\n'.join(mid[i:i + per]) for i in range(0, len(mid), per)]
    a.sprinkle(mid2, 4)
    stampv(a, cfg, 14, 11)
    for s_ in range(MID, 64):
        step2(s_)
    a.flush()
    stamp(a, cfg, 3)
    stampv(a, cfg, 14, 12)
    S = ACC + 32
    T = GS
    for q in range(4):
        rng = range(4 * q, 4 * q + 4)
        for i in rng:
            a(f'v_cvt_pk_bf16_f32 v{T+i}, v{S+2*i}, v{S+2*i+1}')
        for i in rng:
            a(f'v_lshlrev_b32 v{S+2*i}, 16, v{T+i}')
            a(f'v_and_b32 v{S+2*i+1}, s54, v{T+i}')
        for i in rng:
            a(f'v_pk_mul_f32 v[{S+2*i}:{S+2*i+1}], v[{S+2*i}:{S+2*i+1}], v[{ACC+2*i}:{ACC+2*i+1}]')
        for i in rng:
            a(f'v_cvt_pk_bf16_f32 v{T+i}, v{S+2*i}, v{S+2*i+1}')
        for i in rng:
            a(f'v_lshlrev_b32 v{S+2*i}, 16, v{T+i}')
            a(f'v_and_b32 v{S+2*i+1}, s54, v{T+i}')
        for i in rng:
            a(f'v_pk_add_f32 v[{S+2*i}:{S+2*i+1}], v[{S+2*i}:{S+2*i+1}], v[{TMP+2*i}:{TMP+2*i+1}]')
        for i in rng:
            a(f'v_cvt_pk_bf16_f32 v{T+i}, v{S+2*i}, v{S+2*i+1}')
        a(f'buffer_store_dwordx4 {vr(T+4*q,4)}, v{vXo}, s[{sO}:{sO+3}], 0 offen offset:{16*q}')
    if cfg.get('prof'):
        a('s_waitcnt vmcnt(0)')
    stamp(a, cfg, 4)
    stamp(a, cfg, 5)
    stampv(a, cfg, 14, 13)
    stampv_store(a, cfg, 14, 13)
    stamp_store(a, cfg, 3)
    a.label(f'{L}_end')
    a('s_endpgm')
    return L, kernel_desc(L, 256, 102, 256), (512, 256, K3_LDS)


def build(cfg):
    a = Asm()
    NOSENT[0] = cfg.get('nosent', 0)
    ks = [gen_k0(a, cfg), gen_k1(a, cfg), gen_k3(a, cfg)]
    out = HEADER
    for (lab, _, (g, b, lds)) in ks:
        out += f'; @launch kernel={lab} grid=({g},1,1) block=({b},1,1) lds={lds}\n'
    out += '.amdgcn_target "amdgcn-amd-amdhsa--gfx950"\n.text\n'
    out += a.text()
    out += '.section .rodata,"a"\n'
    for (_, desc, _) in ks:
        out += '.p2align 6\n' + desc
    return out


if __name__ == '__main__':
    cfg = {}
    outp = sys.argv[1] if len(sys.argv) > 1 else f'cdna_kernels/{NAME}.s'
    for kv in sys.argv[2:]:
        k, v = kv.split('=')
        cfg[k] = int(v)
    open(outp, 'w').write(build(cfg))
    print('wrote', outp)
```

```python
import sys
import os
sys.path.insert(0, os.path.dirname(os.path.abspath(__file__)))
from asmlib import Asm, vr, ar, sr
from gen import (NAME, srd, srd_off, stamp, stampv, stampv_store, stamp_store, kernel_head, kernel_desc, VmQ, HEADER,
                 KA_X, KA_WQKV, KA_WPHI, KA_WO, KA_WG, KA_WU, KA_WD, KA_OUT, KA_DBG, KA_WS, LOG2E,
                 XN_OFF, HO_OFF, HO_RB, Q_OFF, KVP_OFF, ZP_OFF, WDT_OFF, WOT_OFF, EX_OFF, CNT_OFF, WS_USED)

M32 = 'v_mfma_f32_32x32x16_bf16'
M16 = 'v_mfma_f32_16x16x32_bf16'
SPIN_MAX = 200000
ID_OFF = EX_OFF + 0x400000


def gen_k0(a, cfg):
    L = 'k0_ln_kernel'
    kernel_head(a, L)
    a('s_cmp_ge_u32 s2, 256')
    a(f's_cbranch_scc1 {L}_end')
    a(f's_load_dwordx4 s[24:27], s[0:1], {KA_X}')
    a(f's_load_dwordx2 s[6:7], s[0:1], {KA_WS}')
    a(f's_load_dwordx4 s[32:35], s[0:1], {KA_WG}')
    a('v_and_b32 v1, 7, v0')
    a('v_lshrrev_b32 v2, 3, v0')
    a('v_lshlrev_b32 v3, 11, v1')
    a('v_lshl_add_u32 v3, v2, 4, v3')
    a('s_lshl_b32 s3, s2, 14')
    a('v_lshrrev_b32 v5, 6, v0')
    a('v_readfirstlane_b32 s36, v5')
    a('s_lshr_b32 s16, s2, 3')
    a('s_lshl_b32 s16, s16, 17')
    a('s_bfe_u32 s17, s2, 0x20001')
    a('s_lshl_b32 s17, s17, 10')
    a('s_or_b32 s16, s16, s17')
    a('s_and_b32 s17, s2, 1')
    a('s_lshl_b32 s17, s17, 7')
    a('s_or_b32 s16, s16, s17')
    a('s_add_u32 s17, s16, 0x10000')
    a('v_lshrrev_b32 v4, 2, v2')
    a('v_lshlrev_b32 v4, 12, v4')
    a('v_and_b32 v6, 3, v2')
    a('v_lshl_add_u32 v4, v6, 8, v4')
    a('v_lshl_add_u32 v4, v1, 4, v4')
    a('v_lshlrev_b32 v6, 5, v1')
    a('v_lshl_add_u32 v5, v5, 2, v6')
    a('s_mov_b32 s18, 0xffff0000')
    a('s_waitcnt lgkmcnt(0)')
    srd(a, 8, 's24', 's25', 0x400000)
    a('buffer_load_dwordx4 v[8:11], v3, s[8:11], s3 offen')
    a('buffer_load_dwordx4 v[12:15], v3, s[8:11], s3 offen offset:1024')
    npf = 0
    R0 = cfg.get('pf_rows', 128)
    if R0:
        a('s_cmp_eq_u32 s36, 1')
        a('s_cselect_b32 s20, s32, s34')
        a('s_cselect_b32 s21, s33, s35')
        a(f's_movk_i32 s37, {R0*28}')
        a('s_cmp_eq_u32 s36, 0')
        a('s_cselect_b32 s20, s26, s20')
        a('s_cselect_b32 s21, s27, s21')
        a(f's_cselect_b32 s37, {R0*24}, s37')
        a('s_cmp_gt_u32 s36, 2')
        a('s_cselect_b32 s37, 0, s37')
        a('s_mul_i32 s38, s37, s2')
        a('s_add_u32 s22, s38, s37')
        a('s_and_b32 s21, s21, 0xffff')
        a('s_mov_b32 s23, 0x20000')
        a('v_and_b32 v7, 63, v0')
        a('v_lshlrev_b32 v7, 7, v7')
        a('buffer_load_dword v63, v7, s[20:23], s38 offen')
        npf = 1
    a('s_cmp_lg_u32 s2, 0')
    a(f's_cbranch_scc1 {L}_nz')
    srd_off(a, 12, 's6', 's7', CNT_OFF, 1024)
    for i in range(4):
        a(f'v_mov_b32 v{16+i}, 0')
    a('v_lshlrev_b32 v7, 4, v0')
    a('buffer_store_dwordx4 v[16:19], v7, s[12:15], 0 offen')
    a('s_waitcnt vmcnt(0)')
    a.label(f'{L}_nz')
    srd(a, 12, 's6', 's7', 0x400000)
    a(f's_waitcnt vmcnt({npf})')
    X = 16
    for i in range(8):
        a(f'v_lshlrev_b32 v{X+2*i}, 16, v{8+i}')
        a(f'v_and_b32 v{X+2*i+1}, s18, v{8+i}')

    def reduce_all(acc, tmp, ldsoff, filler=None):
        a(f'v_add_f32_dpp v{acc}, v{acc}, v{acc} row_ror:8 row_mask:0xf bank_mask:0xf')
        a(f'v_mov_b32 v{tmp}, v{acc}')
        a(f'v_permlane16_swap_b32 v{acc}, v{tmp}')
        a(f'v_add_f32 v{acc}, v{acc}, v{tmp}')
        a(f'v_mov_b32 v{tmp}, v{acc}')
        a(f'v_permlane32_swap_b32 v{acc}, v{tmp}')
        a(f'v_add_f32 v{acc}, v{acc}, v{tmp}')
        a('s_mov_b64 exec, 0xff')
        a(f'ds_write_b32 v5, v{acc} offset:{ldsoff}')
        a('s_mov_b64 exec, -1')
        if filler:
            filler()
        a('s_waitcnt lgkmcnt(0)')
        a('s_barrier')
        a(f'ds_read_b128 v[48:51], v6 offset:{ldsoff}')
        a(f'ds_read_b128 v[52:55], v6 offset:{ldsoff+16}')
        a('s_waitcnt lgkmcnt(0)')
        a('v_pk_add_f32 v[48:49], v[48:49], v[50:51]')
        a('v_pk_add_f32 v[52:53], v[52:53], v[54:55]')
        a('v_pk_add_f32 v[48:49], v[48:49], v[52:53]')
        a(f'v_add_f32 v{acc}, v48, v49')

    a(f'v_pk_add_f32 v[32:33], v[{X}:{X+1}], v[{X+2}:{X+3}]')
    a(f'v_pk_add_f32 v[34:35], v[{X+4}:{X+5}], v[{X+6}:{X+7}]')
    a(f'v_pk_add_f32 v[36:37], v[{X+8}:{X+9}], v[{X+10}:{X+11}]')
    a(f'v_pk_add_f32 v[38:39], v[{X+12}:{X+13}], v[{X+14}:{X+15}]')
    a('v_pk_add_f32 v[32:33], v[32:33], v[34:35]')
    a('v_pk_add_f32 v[36:37], v[36:37], v[38:39]')
    a('v_pk_add_f32 v[32:33], v[32:33], v[36:37]')
    a('v_add_f32 v56, v32, v33')
    reduce_all(56, 57, 0)
    a('v_mul_f32 v56, 0x3a800000, v56')
    for i in range(16):
        a(f'v_sub_f32 v{32+i}, v{X+i}, v56')
    a('v_pk_mul_f32 v[58:59], v[32:33], v[32:33]')
    a('v_pk_mul_f32 v[60:61], v[34:35], v[34:35]')
    for i in range(2, 8):
        d = 58 + 2 * (i & 1)
        a(f'v_pk_fma_f32 v[{d}:{d+1}], v[{32+2*i}:{33+2*i}], v[{32+2*i}:{33+2*i}], v[{d}:{d+1}]')
    a('v_pk_add_f32 v[58:59], v[58:59], v[60:61]')
    a('v_add_f32 v58, v58, v59')

    def fill():
        a('v_cvt_pk_bf16_f32 v62, v56, v56')
        a('v_lshlrev_b32 v62, 16, v62')
        for i in range(16):
            a(f'v_sub_f32 v{32+i}, v{X+i}, v62')
        for i in range(8):
            a(f'v_cvt_pk_bf16_f32 v{8+i}, v{32+2*i}, v{33+2*i}')
        for i in range(8):
            a(f'v_lshlrev_b32 v{X+2*i}, 16, v{8+i}')
            a(f'v_and_b32 v{X+2*i+1}, s18, v{8+i}')
    reduce_all(58, 57, 256, fill)
    a('v_mul_f32 v58, 0x3a800000, v58')
    a('v_cvt_pk_bf16_f32 v58, v58, v58')
    a('v_lshlrev_b32 v58, 16, v58')
    a('v_add_f32 v58, 0x3727c5ac, v58')
    a('v_cvt_pk_bf16_f32 v58, v58, v58')
    a('v_lshlrev_b32 v58, 16, v58')
    a('v_sqrt_f32 v58, v58')
    a('v_cvt_pk_bf16_f32 v58, v58, v58')
    a('v_lshlrev_b32 v58, 16, v58')
    a('v_rcp_f32 v58, v58')
    for i in range(0, 16, 2):
        a(f'v_pk_mul_f32 v[{X+i}:{X+i+1}], v[{X+i}:{X+i+1}], v[58:59] op_sel_hi:[1,0]')
    for i in range(8):
        a(f'v_cvt_pk_bf16_f32 v{8+i}, v{X+2*i}, v{X+2*i+1}')
        if i == 3:
            a('buffer_store_dwordx4 v[8:11], v4, s[12:15], s16 offen')
    a('buffer_store_dwordx4 v[12:15], v4, s[12:15], s17 offen')
    a.label(f'{L}_end')
    a('s_endpgm')
    return L, kernel_desc(L, 64, 48, 64), (256, 512, 512)


def softmax_pm(a, blocks, sL, sMask):
    sL0 = 's' + sL[2:].split(':')[0]

    def each(f):
        for b in blocks:
            f(b)
    for i in range(8):
        each(lambda b: a(f"v_cvt_pk_bf16_f32 v{b['T']+i}, v{b['P']+2*i}, v{b['P']+2*i+1}"))
    for i in range(8):
        each(lambda b: (a(f"v_lshlrev_b32 v{b['P']+2*i}, 16, v{b['T']+i}"),
                        a(f"v_and_b32 v{b['P']+2*i+1}, {sMask}, v{b['T']+i}")))
    each(lambda b: (a(f"v_max3_f32 v{b['T']}, v{b['P']}, v{b['P']+1}, v{b['P']+2}"),
                    a(f"v_min3_f32 v{b['T']+2}, v{b['P']}, v{b['P']+1}, v{b['P']+2}")))
    for i in range(3, 15, 2):
        each(lambda b: (a(f"v_max3_f32 v{b['T']}, v{b['T']}, v{b['P']+i}, v{b['P']+i+1}"),
                        a(f"v_min3_f32 v{b['T']+2}, v{b['T']+2}, v{b['P']+i}, v{b['P']+i+1}")))
    each(lambda b: (a(f"v_max_f32 v{b['T']}, v{b['T']}, v{b['P']+15}"),
                    a(f"v_min_f32 v{b['T']+2}, v{b['T']+2}, v{b['P']+15}")))
    each(lambda b: (a(f"v_mov_b32 v{b['T']+1}, v{b['T']}"),
                    a(f"v_mov_b32 v{b['T']+3}, v{b['T']+2}")))
    each(lambda b: (a(f"v_permlane32_swap_b32 v{b['T']}, v{b['T']+1}"),
                    a(f"v_permlane32_swap_b32 v{b['T']+2}, v{b['T']+3}")))
    each(lambda b: (a(f"v_max_f32 v{b['T']}, v{b['T']}, v{b['T']+1}"),
                    a(f"v_min_f32 v{b['T']+2}, v{b['T']+2}, v{b['T']+3}")))
    each(lambda b: (a(f"v_mul_f32 v{b['T']}, {sL0}, v{b['T']}"),
                    a(f"v_mul_f32 v{b['T']+2}, {sL0}, v{b['T']+2}")))
    for i in range(0, 16, 2):
        each(lambda b: (
            a(f"v_pk_fma_f32 v[{b['E']+i}:{b['E']+i+1}], v[{b['P']+i}:{b['P']+i+1}], {sL}, v[{b['T']+2}:{b['T']+3}] op_sel_hi:[1,1,0] neg_lo:[1,0,0] neg_hi:[1,0,0]"),
            a(f"v_pk_fma_f32 v[{b['P']+i}:{b['P']+i+1}], v[{b['P']+i}:{b['P']+i+1}], {sL}, v[{b['T']}:{b['T']+1}] op_sel_hi:[1,1,0] neg_lo:[0,0,1] neg_hi:[0,0,1]")))
    for i in range(16):
        each(lambda b: (a(f"v_exp_f32 v{b['P']+i}, v{b['P']+i}"),
                        a(f"v_exp_f32 v{b['E']+i}, v{b['E']+i}")))
    each(lambda b: (a(f"v_pk_add_f32 v[{b['T']}:{b['T']+1}], v[{b['P']}:{b['P']+1}], v[{b['P']+2}:{b['P']+3}]"),
                    a(f"v_pk_add_f32 v[{b['T']+2}:{b['T']+3}], v[{b['E']}:{b['E']+1}], v[{b['E']+2}:{b['E']+3}]")))
    for i in range(4, 16, 2):
        each(lambda b: (a(f"v_pk_add_f32 v[{b['T']}:{b['T']+1}], v[{b['T']}:{b['T']+1}], v[{b['P']+i}:{b['P']+i+1}]"),
                        a(f"v_pk_add_f32 v[{b['T']+2}:{b['T']+3}], v[{b['T']+2}:{b['T']+3}], v[{b['E']+i}:{b['E']+i+1}]")))
    each(lambda b: (a(f"v_add_f32 v{b['T']}, v{b['T']}, v{b['T']+1}"),
                    a(f"v_add_f32 v{b['T']+2}, v{b['T']+2}, v{b['T']+3}")))
    each(lambda b: (a(f"v_mov_b32 v{b['T']+1}, v{b['T']}"),
                    a(f"v_mov_b32 v{b['T']+3}, v{b['T']+2}")))
    each(lambda b: (a(f"v_permlane32_swap_b32 v{b['T']}, v{b['T']+1}"),
                    a(f"v_permlane32_swap_b32 v{b['T']+2}, v{b['T']+3}")))
    each(lambda b: (a(f"v_add_f32 v{b['T']}, v{b['T']}, v{b['T']+1}"),
                    a(f"v_add_f32 v{b['T']+2}, v{b['T']+2}, v{b['T']+3}")))
    each(lambda b: (a(f"v_rcp_f32 v{b['T']}, v{b['T']}"),
                    a(f"v_rcp_f32 v{b['T']+2}, v{b['T']+2}")))
    for i in range(0, 16, 2):
        each(lambda b: (a(f"v_pk_mul_f32 v[{b['P']+i}:{b['P']+i+1}], v[{b['P']+i}:{b['P']+i+1}], v[{b['T']}:{b['T']+1}] op_sel_hi:[1,0]"),
                        a(f"v_pk_mul_f32 v[{b['E']+i}:{b['E']+i+1}], v[{b['E']+i}:{b['E']+i+1}], v[{b['T']+2}:{b['T']+3}] op_sel_hi:[1,0]")))
    for i in range(8):
        each(lambda b: (a(f"v_cvt_pk_bf16_f32 v{b['O']+i}, v{b['P']+2*i}, v{b['P']+2*i+1}"),
                        a(f"v_cvt_pk_bf16_f32 v{b['O']+8+i}, v{b['E']+2*i}, v{b['E']+2*i+1}")))


def wphi_addr(a, vd, vt, vLane, base):
    a(f'v_lshrrev_b32 v{vd}, 5, v{vLane}')
    a(f'v_bfe_u32 v{vt}, v{vLane}, 2, 2')
    a(f'v_lshl_add_u32 v{vd}, v{vd}, 3, v{vt}')
    a(f'v_lshlrev_b32 v{vd}, 6, v{vd}')
    a(f'v_bfe_u32 v{vt}, v{vLane}, 4, 1')
    a(f'v_lshl_add_u32 v{vd}, v{vt}, 5, v{vd}')
    a(f'v_and_b32 v{vt}, 3, v{vLane}')
    a(f'v_lshl_add_u32 v{vd}, v{vt}, 3, v{vd}')
    if base:
        a(f'v_add_u32 v{vd}, {base}, v{vd}')


C_QKV, C_G, C_U, C_SZ = 0, 6144, 13312, 20480
K1_STAGE = 2 * C_SZ
K1_WPHI = 3 * K1_STAGE
K1_RED = K1_WPHI + 2048
K1_ZR = K1_RED + 4 * 8192
K1_LDS = K1_ZR + 4 * 512
ADDR_SPLIT = 3 * C_SZ


def gen_k1(a, cfg):
    L = 'k1_gemm1_kernel'
    kernel_head(a, L)
    sA, sB0, sW, sP, sT = 8, 12, 32, 36, 40
    sOff, sStep, sDst = 44, 49, 54
    sAo, sAo2, sCnt, sWave, sHead, sMt, sU, sWid, sTo, sTs = range(59, 69)
    vLane, vDma, vA, vGU, vQE, vQO, vCd, vWo, vTo, vTd = 1, 2, 7, 8, 10, 12, 14, 15, 16, 17
    ACC_V = 32
    aX, aW, aI, aOnes, aWp, aC = 96, 192, 224, 232, 236, 244
    T0 = 20

    def acc(cb, tb):
        if cb < 6:
            return ('a', (cb * 4 + tb) * 4)
        isu = cb >= 13
        j = cb - (13 if isu else 6)
        return ('v', ACC_V + (j * 2 + (tb >> 1)) * 16 + (8 if isu else 0) + (tb & 1) * 4)

    def accs(cb, tb):
        k, b = acc(cb, tb)
        return vr(b, 4, k)

    a('s_cmp_ge_u32 s2, 256')
    a(f's_cbranch_scc1 {L}_end')
    stamp(a, cfg, 0)
    stamp(a, cfg, 1)
    stampv(a, cfg, 19, 0, 4)
    a(f's_load_dwordx2 s[82:83], s[0:1], {KA_WS}')
    a(f's_load_dwordx2 s[70:71], s[0:1], {KA_WQKV}')
    a(f's_load_dwordx4 s[72:75], s[0:1], {KA_WPHI}')
    a(f's_load_dwordx4 s[76:79], s[0:1], {KA_WG}')
    a(f's_load_dwordx2 s[80:81], s[0:1], {KA_WD}')
    a(f'v_lshrrev_b32 v{T0}, 6, v0')
    a(f'v_and_b32 v{vLane}, 63, v0')
    a(f'v_readfirstlane_b32 s{sWave}, v{T0}')
    a('s_and_b32 s3, s2, 7')
    a('s_lshl_b32 s3, s3, 2')
    a('s_bfe_u32 s4, s2, 0x20003')
    a(f's_add_u32 s{sHead}, s3, s4')
    a(f's_lshr_b32 s{sMt}, s2, 5')
    a(f'v_lshlrev_b32 v{vA}, 4, v{vLane}')
    a(f's_mul_i32 s3, s{sWave}, 5')
    a(f's_lshl_b32 s84, s{sHead}, 6')
    a(f's_mul_i32 s85, s{sHead}, 224')
    for t in range(5):
        d = sB0 + 4 * t
        a(f's_add_u32 s4, s3, {t}')
        a('s_cmp_ge_u32 s4, 13')
        a('s_cselect_b32 s5, 13, 6')
        a('s_cmp_lt_u32 s4, 6')
        a('s_cselect_b32 s5, 0, s5')
        a(f's_cselect_b32 s{d}, 12, 14')
        a(f's_cselect_b32 s{d+1}, s84, s85')
        a(f's_cselect_b32 s6, 1984, 0')
        a(f's_cselect_b32 s7, 2, 0')
        a(f's_movk_i32 s{d+3}, 4682')
        a(f's_cselect_b32 s{d+3}, 5462, s{d+3}')
        a(f's_lshl_b32 s{sDst+t}, s4, 10')
        a('s_sub_u32 s5, s4, s5')
        a('s_lshl_b32 s5, s5, 6')
        a(f's_lshl_b32 s{d+2}, s{d}, 9')
        a(f's_lshl_b32 s{sStep+t}, s{d}, 14')
        a(f'v_add_u32 v{T0}, s5, v{vLane}')
        a(f'v_mul_u32_u24 v{T0+1}, s{d+3}, v{T0}')
        a(f'v_lshrrev_b32 v{T0+1}, 16, v{T0+1}')
        a(f'v_mul_u32_u24 v{T0+2}, s{d}, v{T0+1}')
        a(f'v_sub_u32 v{T0+2}, v{T0}, v{T0+2}')
        a(f'v_lshrrev_b32 v{T0+3}, 1, v{T0+1}')
        a(f'v_and_b32 v{T0+4}, s7, v{T0+3}')
        a(f'v_xor_b32 v{T0+2}, v{T0+2}, v{T0+4}')
        a(f'v_and_b32 v{T0+3}, 4, v{T0+3}')
        a(f'v_and_b32 v{T0+4}, 4, v{T0+1}')
        a(f'v_lshl_or_b32 v{T0+3}, v{T0+4}, 1, v{T0+3}')
        a(f'v_and_or_b32 v{T0+1}, v{T0+1}, 19, v{T0+3}')
        a(f'v_mul_u32_u24 v{T0+1}, s{d+2}, v{T0+1}')
        a(f'v_lshl_add_u32 v{T0+1}, v{T0+2}, 4, v{T0+1}')
        a(f'v_lshrrev_b32 v{T0+2}, 2, v{T0+2}')
        a(f'v_mul_u32_u24 v{T0+2}, s6, v{T0+2}')
        a(f'v_add3_u32 v{vDma+t}, v{T0+1}, v{T0+2}, s{d+1}')
        a(f's_lshl_b32 s{d+2}, s{d+2}, 10')
        a(f's_mov_b32 s{sOff+t}, 0')
    a(f's_lshl_b32 s4, s{sMt}, 2')
    a(f's_add_u32 s4, s4, s{sWave}')
    a('s_lshl_b32 s4, s4, 17')
    a(f's_mov_b32 s{sAo}, 0')
    a(f's_movk_i32 s{sAo2}, 4096')
    a('s_waitcnt lgkmcnt(0)')
    stampv(a, cfg, 19, 1, 4)
    for t in range(5):
        d = sB0 + 4 * t
        a(f's_cmp_ge_u32 s3, {13-t}')
        a(f's_cselect_b32 s{d}, s78, s76')
        a(f's_cselect_b32 s{d+1}, s79, s77')
        a(f's_cmp_lt_u32 s3, {6-t}')
        a(f's_cselect_b32 s{d}, s70, s{d}')
        a(f's_cselect_b32 s{d+1}, s71, s{d+1}')
        a(f's_and_b32 s{d+1}, s{d+1}, 0xffff')
        a(f's_mov_b32 s{d+3}, 0x20000')
    srd_off(a, sA, 's82', 's83', 's4', 131072)

    vm = VmQ()
    inloop = [False]

    def slot_of(u):
        return (u + 2) % 3

    def dma(u, i, parts=(0, 1, 2)):
        if inloop[0] and cfg.get('k1_nodma'):
            if 1 in parts:
                vm.issue(('B', u), 0)
            return
        t, ch = i % 5, i // 5
        d = sB0 + 4 * t
        if 0 in parts:
            a(f's_add_u32 m0, s{sDst+t}, {slot_of(u)*K1_STAGE + ch*C_SZ}')
        if 1 in parts:
            a(f'buffer_load_dwordx4 v{vDma+t}, s[{d}:{d+3}], s{sOff+t} offen lds')
            vm.issue(('B', u))
        if 2 in parts:
            a(f's_add_u32 s{sOff+t}, s{sOff+t}, s{sStep+t}')

    def aload(u, i):
        if inloop[0] and cfg.get('k1_noa'):
            vm.issue(('A', u), 0)
            return
        t, tb = i >> 2, i & 3
        a(f'buffer_load_dwordx4 {ar(aX+slot_of(u)*32+i*4, 4)}, v{vA}, s[{sA}:{sA+3}], s{sAo2 if t else sAo} offen offset:{tb*1024}')
        vm.issue(('A', u))
        if tb == 3:
            r = sAo2 if t else sAo
            a(f's_add_u32 s{r}, s{r}, 8192')

    def bread(u, cb, i):
        if inloop[0] and cfg.get('k1_nods'):
            return
        t, h = i >> 1, i & 1
        off = slot_of(u) * K1_STAGE + t * C_SZ
        hi = 1 if off >= ADDR_SPLIT else 0
        off -= hi * ADDR_SPLIT
        if cb < 6:
            off += C_QKV + 8 * h * 192 + 32 * cb
            addr = (vQO if cb & 1 else vQE) + hi
        elif cb < 13:
            off += C_G + 8 * h * 224 + 32 * (cb - 6)
            addr = vGU + hi
        else:
            off += C_U + 8 * h * 224 + 32 * (cb - 13)
            addr = vGU + hi
        a(f'ds_read_b64_tr_b16 {ar(aW+(cb%4)*8+2*i, 2)}, v{addr} offset:{off}')

    for i in range(10):
        dma(0, i)
    for i in range(8):
        aload(0, i)
    stampv(a, cfg, 19, 2, 4)
    for i in range(4):
        a(f'v_mov_b32 v{T0+i}, 0')
    for b in range(6):
        a(f'{M32} {ar(b*16,16)}, {vr(T0,4)}, {vr(T0,4)}, 0')
    zero_list = [f'{M32} {vr(ACC_V+b*16,16)}, {vr(T0,4)}, {vr(T0,4)}, 0' for b in range(14)]
    a.sprinkle(zero_list, 6)
    U = T0 + 4
    srd(a, sP, 's72', 's73', 65536)
    a(f's_and_b32 s4, s{sWave}, 1')
    a('s_lshl_b32 s4, s4, 10')
    a(f's_lshl_b32 s5, s{sHead}, 11')
    a('s_add_u32 s5, s5, s4')
    a(f's_add_u32 m0, s4, {K1_WPHI}')
    a(f'buffer_load_dwordx4 v{vA}, s[{sP}:{sP+3}], s5 offen lds')
    a(f'v_lshrrev_b32 v{U}, 5, v{vLane}')
    a(f'v_bfe_u32 v{U+1}, v{vLane}, 2, 3')
    a(f'v_lshl_add_u32 v{U}, v{U}, 4, v{U+1}')
    a(f'v_and_b32 v{U+2}, 3, v{vLane}')
    a(f'v_lshlrev_b32 v{U+2}, 3, v{U+2}')
    a(f'v_mul_u32_u24 v{U+3}, 224, v{U}')
    a(f'v_add_u32 v{vGU}, v{U+3}, v{U+2}')
    a(f'v_add_u32 v{vGU+1}, {ADDR_SPLIT}, v{vGU}')
    a(f'v_mul_u32_u24 v{U+3}, 192, v{U}')
    a(f'v_add_u32 v{U+3}, v{U+3}, v{U+2}')
    a(f'v_and_b32 v{U+1}, 16, v{vLane}')
    a(f'v_lshlrev_b32 v{U+1}, 1, v{U+1}')
    a(f'v_add_u32 v{vQE}, v{U+3}, v{U+1}')
    a(f'v_sub_u32 v{vQO}, v{U+3}, v{U+1}')
    a(f'v_add_u32 v{vQE+1}, {ADDR_SPLIT}, v{vQE}')
    a(f'v_add_u32 v{vQO+1}, {ADDR_SPLIT}, v{vQO}')
    srd(a, sW, 's82', 's83', WS_USED)
    srd(a, sP, 's80', 's81', 3584 * 2048)
    a(f's_lshl_b32 s{sWid}, s2, 2')
    a(f's_add_u32 s{sWid}, s{sWid}, s{sWave}')
    a(f's_lshr_b32 s4, s{sWid}, 1')
    a(f's_and_b32 s5, s{sWid}, 1')
    a('s_and_b32 s6, s4, 1')
    a('s_lshl_b32 s6, s6, 1')
    a('s_and_b32 s7, s4, 2')
    a('s_lshl_b32 s84, s7, 2')
    a('s_or_b32 s6, s6, s84')
    a(f'v_and_b32 v{U}, 15, v{vLane}')
    a(f'v_xor_b32 v{U}, s6, v{U}')
    a(f'v_lshrrev_b32 v{U+1}, 4, v{vLane}')
    a('s_lshl_b32 s84, s5, 2')
    a(f'v_add_u32 v{U+1}, s84, v{U+1}')
    a(f'v_mul_u32_u24 v{U+1}, {3584*256}, v{U+1}')
    a(f'v_lshl_add_u32 v{U+1}, v{U}, 4, v{U+1}')
    a('s_lshl_b32 s84, s4, 8')
    a(f'v_add_u32 v{vCd}, s84, v{U+1}')
    a(f'v_and_b32 v{U}, 7, v{vLane}')
    a(f'v_xor_b32 v{U}, s7, v{U}')
    a(f'v_lshrrev_b32 v{U+1}, 3, v{vLane}')
    a('s_lshl_b32 s84, s5, 3')
    a(f'v_add_u32 v{U+1}, s84, v{U+1}')
    a(f'v_lshlrev_b32 v{U+1}, 17, v{U+1}')
    a(f'v_lshl_add_u32 v{U+1}, v{U}, 4, v{U+1}')
    a('s_lshl_b32 s84, s4, 7')
    a(f'v_add_u32 v{vWo}, s84, v{U+1}')
    a(f's_lshl_b32 s{sWid}, s{sWid}, 10')
    a(f's_cmp_eq_u32 s{sWave}, 1')
    a(f's_cselect_b32 s{sT}, s76, s78')
    a(f's_cselect_b32 s{sT+1}, s77, s79')
    a('s_movk_i32 s4, 3584')
    a(f's_mov_b32 s{sT+2}, {7168*1024}')
    a(f's_cmp_eq_u32 s{sWave}, 0')
    a(f's_cselect_b32 s{sT}, s70, s{sT}')
    a(f's_cselect_b32 s{sT+1}, s71, s{sT+1}')
    a('s_cselect_b32 s4, 3072, s4')
    a(f's_cselect_b32 s{sT+2}, {6144*1024}, s{sT+2}')
    a(f's_mul_i32 s5, s4, {2*cfg.get("t_start", 128)}')
    a(f's_cmp_eq_u32 s{sWave}, 3')
    a(f's_cselect_b32 s{sT}, s80, s{sT}')
    a(f's_cselect_b32 s{sT+1}, s81, s{sT+1}')
    a('s_cselect_b32 s4, 7168, s4')
    a('s_cselect_b32 s5, 0, s5')
    a(f's_and_b32 s{sT+1}, s{sT+1}, 0xffff')
    a(f's_mov_b32 s{sT+3}, 0x20000')
    a(f's_mul_i32 s{sTo}, s4, s2')
    a(f's_add_u32 s{sTo}, s{sTo}, s5')
    a(f's_lshl_b32 s{sTs}, s4, 8')
    a(f'v_lshlrev_b32 v{vTo}, 7, v{vLane}')
    a(f'v_mov_b32 v{U}, 0x1000000')
    a(f'v_cmp_gt_u32 vcc, s4, v{vTo}')
    a(f'v_cndmask_b32 v{vTo}, v{U}, v{vTo}, vcc')
    for _ in range(cfg.get('t_pro', 1)):
        a(f'buffer_load_dword v{vTd}, v{vTo}, s[{sT}:{sT+3}], s{sTo} offen')
        a(f's_add_u32 s{sTo}, s{sTo}, s{sTs}')
    a(f'v_and_b32 v{U}, 31, v{vLane}')
    a(f'v_lshrrev_b32 v{U+1}, 5, v{vLane}')
    a(f'v_lshlrev_b32 v{U+1}, 2, v{U+1}')
    a(f'v_sub_u32 v{U}, v{U}, v{U+1}')
    a(f'v_mov_b32 v{U+2}, 0x3f80')
    a(f'v_mov_b32 v{U+3}, 0x3f800000')
    for t in range(2):
        for rho in range(4):
            c = 16 * t + 8 * (rho >> 1) + 2 * (rho & 1)
            a(f'v_cmp_eq_u32 vcc, {c}, v{U}')
            a(f'v_cmp_eq_u32 s[4:5], {c+1}, v{U}')
            a(f'v_cndmask_b32 v{U+4}, 0, v{U+2}, vcc')
            a(f'v_cndmask_b32 v{U+4}, v{U+4}, v{U+3}, s[4:5]')
            a(f'v_accvgpr_write_b32 a{aI+4*t+rho}, v{U+4}')
    a(f'v_mov_b32 v{U+4}, 0x3f803f80')
    for i in range(4):
        a(f'v_accvgpr_write_b32 a{aOnes+i}, v{U+4}')
    a.flush()
    a(f's_mov_b32 s{sCnt}, 0')
    a(f's_mov_b32 s{sU}, 0')
    stampv(a, cfg, 19, 3, 4)
    for i in range(10):
        dma(1, i)
    for i in range(4):
        a(f'v_mov_b32 v{U+i}, -1')
    a(f's_lshl_b32 s4, s{sWid}, 2')
    a(f's_add_u32 s4, s4, {EX_OFF}')
    for q in range(4):
        a(f'buffer_store_dwordx4 {vr(U,4)}, v{vA}, s[{sW}:{sW+3}], s4 offen offset:{q*1024}')
        vm.issue(('S', -1))
    a('s_lshl_b32 s4, s2, 7')
    a(f's_add_u32 s4, s4, {ID_OFF}')
    a(f'v_mov_b32 v{U+4}, 0')
    a(f'buffer_store_dword v{U}, v{U+4}, s[{sW}:{sW+3}], s4 offen')
    vm.issue(('S', -1))
    stampv(a, cfg, 19, 4, 4)
    a(f's_waitcnt vmcnt({vm.need([("B", 0)])})')
    a('s_barrier')
    stampv(a, cfg, 19, 5, 4)
    for cb in range(3):
        for i in range(4):
            bread(0, cb, i)
    for i in range(8):
        aload(1, i)
    stampv(a, cfg, 19, 6, 4)
    stamp(a, cfg, 2)
    stampv(a, cfg, 19, 7, 4)
    a(f's_branch {L}_part2')
    inloop[0] = True
    waits = {}

    def w(key, n):
        waits.setdefault(key, []).append(n)
        return min(waits[key])

    def side(u, k):
        if k == 0:
            if cfg.get('k1_notouch'):
                return
            a(f'buffer_load_dword v{vTd}, v{vTo}, s[{sT}:{sT+3}], s{sTo} offen')
            a(f's_add_u32 s{sTo}, s{sTo}, s{sTs}')
            vm.issue(('T', u))
        elif k == 1:
            if cfg.get('k1_nocopy'):
                return
            a(f's_sub_u32 s4, s{sU}, 5')
            a('s_lshl_b32 s5, s4, 17')
            a(f's_add_u32 s5, s5, {WDT_OFF}')
            a('s_cmp_lt_u32 s4, 7')
            a(f's_cselect_b32 s5, s5, {WS_USED}')
        elif k == 2:
            if cfg.get('k1_nocopy'):
                return
            if any(t == ('C', u - 1) for (t, _) in vm.q):
                n = w((u % 3, 'C'), vm.need([('C', u - 1)]))
            else:
                n = min(waits.get((u % 3, 'C'), [63]))
            a(f's_waitcnt vmcnt({n})')
            a(f'buffer_store_dwordx4 {ar(aC,4)}, v{vCd}, s[{sW}:{sW+3}], s5 offen')
            vm.issue(('S', u))
        elif k == 3:
            if cfg.get('k1_nocopy'):
                return
            a(f's_sub_u32 s4, s{sU}, 4')
            a('s_lshl_b32 s5, s4, 20')
            a(f's_add_u32 s5, s5, s{sWid}')
            a('s_cmp_lt_u32 s4, 7')
            a(f's_cselect_b32 s5, s5, {3584*2048}')
        elif k == 4:
            a(f's_add_u32 s{sU}, s{sU}, 1')
            if cfg.get('k1_nocopy'):
                return
            a(f'buffer_load_dwordx4 {ar(aC,4)}, v{vA}, s[{sP}:{sP+3}], s5 offen')
            vm.issue(('C', u))

    def superstep(u):
        sl = slot_of(u)
        for cb in range(20):
            if cb == 0:
                a(f's_waitcnt vmcnt({w((u % 3, "A"), vm.need([("A", u)]))}) lgkmcnt(8)')
            elif cb != 18:
                a('s_waitcnt lgkmcnt(8)')
            nu, ncb = (u, cb + 3) if cb + 3 < 20 else (u + 1, cb + 3 - 20)
            for m in range(8):
                tb, t = m >> 1, m & 1
                xf = ar(aX + sl * 32 + (t * 4 + tb) * 4, 4)
                wf = ar(aW + (cb % 4) * 8 + t * 4, 4)
                d = accs(cb, tb)
                if cb in (4, 5):
                    a(f'{M16} {d}, {xf}, {wf}, {d}')
                else:
                    a(f'{M16} {d}, {wf}, {xf}, {d}')
                if cb == 17:
                    if m == 3:
                        a(f's_waitcnt vmcnt({w((u % 3, "B"), vm.need([("B", u + 1)]))}) lgkmcnt(0)')
                        if not cfg.get('k1_nobar'):
                            a('s_barrier')
                    if m >= 4:
                        bread(nu, ncb, m - 4)
                else:
                    if m in (0, 1, 2, 3):
                        bread(nu, ncb, m)
                if cb < 10 and m in (4, 5, 6):
                    dma(u + 2, cb, (m - 4,))
                if m == 5:
                    if cb < 10:
                        pass
                    elif cb < 17:
                        aload(u + 2, cb - 10)
                    elif cb == 18:
                        side(u, 2)
                    elif cb == 19:
                        side(u, 4)
                if cb == 17 and m == 0:
                    aload(u + 2, 7)
                if cb == 18 and m == 4:
                    side(u, 1)
                if cb == 19 and m == 4:
                    side(u, 3)
                if cb == 18 and m == 7:
                    side(u, 0)

    q0 = list(vm.q)
    sl_, sh_ = a.lines, a.hist
    a.lines = []
    for u in range(0, 7):
        superstep(u)
    a.lines = []
    vm.q = list(q0)
    superstep(0)
    a.lines, a.hist = sl_, []
    a.raw('.p2align 6')
    a.label(f'{L}_loop')
    superstep(1)
    superstep(2)
    a.label(f'{L}_part2')
    superstep(3)
    a(f's_add_u32 s{sCnt}, s{sCnt}, 1')
    a(f's_cmp_lg_u32 s{sCnt}, 5')
    a(f's_cbranch_scc1 {L}_nowo')
    srd(a, sP, 's74', 's75', 1024 * 2048)
    a(f's_add_u32 s4, s{sWid}, {1024*1024}')
    a(f'buffer_load_dwordx4 v[24:27], v{vA}, s[{sP}:{sP+3}], s{sWid} offen')
    a(f'buffer_load_dwordx4 v[28:31], v{vA}, s[{sP}:{sP+3}], s4 offen')
    a.label(f'{L}_nowo')
    a(f's_cmp_lt_u32 s{sCnt}, 6')
    a(f's_cbranch_scc1 {L}_loop')
    inloop[0] = False

    stamp(a, cfg, 3)
    stampv(a, cfg, 19, 8, 4)
    a(f's_mov_b32 s3, {WOT_OFF}')
    a(f's_mov_b32 s4, {WOT_OFF + 512*128}')
    a(f'buffer_store_dwordx4 v[24:27], v{vWo}, s[{sW}:{sW+3}], s3 offen')
    a(f'buffer_store_dwordx4 v[28:31], v{vWo}, s[{sW}:{sW+3}], s4 offen')
    wphi_addr(a, 20, 21, vLane, K1_WPHI)
    for t in range(2):
        for h in range(2):
            a(f'ds_read_b64_tr_b16 {ar(aWp+4*t+2*h, 2)}, v20 offset:{(16*t+4*h)*64}')
    a(f's_lshl_b32 s3, s{sMt}, 3')
    a(f's_lshl_b32 s4, s{sWave}, 1')
    a('s_add_u32 s3, s3, s4')
    a(f's_mul_i32 s4, s3, {HO_RB}')
    a(f's_mul_i32 s5, s{sHead}, {7*1024}')
    a('s_add_u32 s4, s4, s5')
    a(f's_add_u32 s4, s4, {HO_OFF}')
    a('s_add_u32 s5, s4, 4096')
    a(f's_add_u32 s6, s4, {HO_RB}')
    a(f's_add_u32 s7, s5, {HO_RB}')
    a('s_lshl_b32 s84, s3, 16')
    a(f's_lshl_b32 s85, s{sHead}, 11')
    a('s_add_u32 s84, s84, s85')
    a(f's_add_u32 s84, s84, {Q_OFF}')
    a('s_add_u32 s85, s84, 65536')
    a(f's_mov_b32 s44, {LOG2E}')
    a(f's_mov_b32 s45, {LOG2E}')
    a('s_mov_b32 s46, 0xffff0000')
    HPOL = {0: '', 1: ' nt', 2: ' sc1', 3: ' sc0 sc1'}[cfg.get('hpol', 0)]
    stores = []
    for n in range(14):
        j, rb = n >> 1, n & 1
        G = ACC_V + n * 16
        D = ACC_V + n * 4
        if cfg.get('h_round'):
            pass
        for i in range(0, 8, 2):
            a(f'v_pk_mul_f32 v[{G+i}:{G+i+1}], v[{G+i}:{G+i+1}], v[{G+8+i}:{G+9+i}]')
        for i in range(4):
            a(f'v_cvt_pk_bf16_f32 v{D+i}, v{G+2*i}, v{G+2*i+1}')
        if n:
            P = D - 4
            a(f'v_permlane16_swap_b32 v{P}, v{P+2}')
            a(f'v_permlane16_swap_b32 v{P+1}, v{P+3}')
            if n % 3 == 0 and stores:
                a(stores.pop(0))
        stores.append(f'buffer_store_dwordx4 v[{D}:{D+3}], v{vA}, s[{sW}:{sW+3}], s{4 + 2*rb + (j >> 2)} offen offset:{(j&3)*1024}{HPOL}')
    P = ACC_V + 13 * 4
    a(f'v_permlane16_swap_b32 v{P}, v{P+2}')
    a(f'v_permlane16_swap_b32 v{P+1}, v{P+3}')
    stampv(a, cfg, 19, 9, 4)
    a.sprinkle(stores, 28)

    def base(rb):
        return 96 + rb * 80
    KVp, KVm, Zp, Zm = 0, 16, 32, 48

    def conv_T(cb0, rb, tmp, dst):
        for db in range(2):
            for tl in range(2):
                s_ = acc(cb0 + db, rb * 2 + tl)[1]
                for i in range(4):
                    a(f'v_accvgpr_read_b32 v{tmp+db*8+tl*4+i}, a{s_+i}')
        for i in range(8):
            a(f'v_cvt_pk_bf16_f32 v{dst+i}, v{tmp+2*i}, v{tmp+2*i+1}')

    def swaps16(dst):
        for f in range(2):
            a(f'v_permlane16_swap_b32 v{dst+4*f}, v{dst+4*f+2}')
            a(f'v_permlane16_swap_b32 v{dst+4*f+1}, v{dst+4*f+3}')

    for rb in range(2):
        conv_T(2, rb, base(rb) + 16, base(rb) + 32)
    for rb in range(2):
        swaps16(base(rb) + 32)
    a('s_waitcnt lgkmcnt(0)')
    for t in range(2):
        for rb in range(2):
            b = base(rb)
            a(f'{M32} {vr(b,16)}, {ar(aWp+4*t,4)}, {vr(b+32+4*t,4)}, {vr(b,16) if t else 0}')
    for rb in range(2):
        conv_T(0, rb, base(rb) + 16, base(rb) + 64)
    for rb in range(2):
        swaps16(base(rb) + 64)
    a.sprinkle([f'buffer_store_dwordx4 {vr(base(rb)+64+4*t,4)}, v{vA}, s[{sW}:{sW+3}], s{84+rb} offen offset:{t*1024}'
                for rb in range(2) for t in range(2)], 28)
    for rb in range(2):
        b = base(rb)
        for tl in range(2):
            for db in range(2):
                s_ = acc(4 + db, rb * 2 + tl)[1]
                for i in range(4):
                    a(f'v_accvgpr_read_b32 v{b+16+tl*8+db*4+i}, a{s_+i}')
        for i in range(8):
            a(f'v_cvt_pk_bf16_f32 v{b+56+i}, v{b+16+2*i}, v{b+16+2*i+1}')
    for rb in range(2):
        swaps16(base(rb) + 56)
    for rb in range(2):
        d = base(rb) + 56
        for f in range(2):
            a(f'v_permlane32_swap_b32 v{d+4*f}, v{d+4*f+2}')
            a(f'v_permlane32_swap_b32 v{d+4*f+1}, v{d+4*f+3}')
    stampv(a, cfg, 19, 10, 4)
    softmax_pm(a, [dict(P=base(rb), E=base(rb) + 16, T=base(rb) + 32, O=base(rb) + 40) for rb in range(2)], 's[44:45]', 's46')
    stampv(a, cfg, 19, 11, 4)
    for t in range(2):
        for rb in range(2):
            b = base(rb)
            for pm in range(2):
                d = vr(b + 16 * pm, 16)
                a(f'{M32} {d}, {vr(b+40+8*pm+4*t,4)}, {ar(aI+4*t,4)}, {d if t else 0}')
    a.flush()
    a(f's_lshl_b32 s3, s{sWave}, 13')
    a(f's_add_u32 s3, s3, {K1_RED}')
    a(f'v_add_u32 v20, s3, v{vA}')
    a(f's_lshl_b32 s3, s{sWave}, 9')
    a(f's_add_u32 s3, s3, {K1_ZR}')
    a(f'v_lshlrev_b32 v21, 2, v{vLane}')
    a('v_add_u32 v22, s3, v21')
    a(f's_lshl_b32 s3, s{sWave}, 11')
    a(f's_add_u32 s3, s3, {K1_RED}')
    a(f'v_add_u32 v23, s3, v{vA}')
    a(f'v_lshrrev_b32 v8, 5, v{vLane}')
    a('v_lshlrev_b32 v8, 8, v8')
    a(f'v_and_b32 v9, 31, v{vLane}')
    a('v_lshl_add_u32 v8, v9, 2, v8')
    a(f'v_add_u32 v8, {K1_ZR}, v8')
    a(f's_lshl_b32 s3, s{sHead}, 3')
    a(f's_add_u32 s3, s3, s{sMt}')
    a('s_lshl_b32 s47, s3, 13')
    a(f's_lshl_b32 s48, s{sWave}, 11')
    a('s_add_u32 s47, s47, s48')
    a(f's_add_u32 s47, s47, {KVP_OFF}')
    a('s_lshl_b32 s48, s3, 8')
    a(f's_add_u32 s48, s48, {ZP_OFF}')
    first = True
    for rb in range(2):
        b = base(rb)
        for pm in range(2):
            for i in range(8):
                a(f'v_cvt_pk_bf16_f32 v{b+40+8*pm+i}, v{b+16*pm+2*i}, v{b+16*pm+2*i+1}')
        for t in range(2):
            for pm in range(2):
                d = ar(KVm if pm else KVp, 16)
                a(f'{M32} {d}, {vr(b+40+8*pm+4*t,4)}, {vr(b+56+4*t,4)}, {0 if first else d}')
            for pm in range(2):
                d = ar(Zm if pm else Zp, 16)
                a(f'{M32} {d}, {ar(aOnes,4)}, {vr(b+40+8*pm+4*t,4)}, {0 if first else d}')
            first = False
    stampv(a, cfg, 19, 12, 4)
    for q in range(8):
        a(f'ds_write_b128 v20, {ar(KVp+4*q,4)} offset:{q*1024}')
    a(f'ds_write_b32 v22, a{Zp}')
    a(f'ds_write_b32 v22, a{Zm} offset:256')
    a('s_waitcnt lgkmcnt(0)')
    a('s_barrier')
    R = 96
    for w_ in range(4):
        for q in range(2):
            a(f'ds_read_b128 {vr(R+w_*8+q*4,4)}, v23 offset:{w_*8192+q*1024}')
    for w_ in range(4):
        a(f'ds_read_b32 v{R+32+w_}, v8 offset:{w_*512}')
    a('s_waitcnt lgkmcnt(8)')
    for i in range(0, 8, 2):
        a(f'v_pk_add_f32 v[{R+i}:{R+1+i}], v[{R+i}:{R+1+i}], v[{R+8+i}:{R+9+i}]')
    a('s_waitcnt lgkmcnt(4)')
    for i in range(0, 8, 2):
        a(f'v_pk_add_f32 v[{R+16+i}:{R+17+i}], v[{R+16+i}:{R+17+i}], v[{R+24+i}:{R+25+i}]')
    for i in range(0, 8, 2):
        a(f'v_pk_add_f32 v[{R+i}:{R+1+i}], v[{R+i}:{R+1+i}], v[{R+16+i}:{R+17+i}]')
    a(f'buffer_store_dwordx4 {vr(R,4)}, v{vA}, s[{sW}:{sW+3}], s47 offen')
    a(f'buffer_store_dwordx4 {vr(R+4,4)}, v{vA}, s[{sW}:{sW+3}], s47 offen offset:1024')
    stampv(a, cfg, 19, 13, 4)
    stampv_store(a, cfg, 19, 18, 4)
    a(f's_cmp_lg_u32 s{sWave}, 0')
    a(f's_cbranch_scc1 {L}_end')
    a('s_waitcnt lgkmcnt(0)')
    a(f'v_add_f32 v{R+32}, v{R+32}, v{R+33}')
    a(f'v_add_f32 v{R+34}, v{R+34}, v{R+35}')
    a(f'v_add_f32 v{R+32}, v{R+32}, v{R+34}')
    a(f'buffer_store_dword v{R+32}, v21, s[{sW}:{sW+3}], s48 offen')
    if cfg.get('prof'):
        a('s_waitcnt vmcnt(0)')
    stamp(a, cfg, 4)
    stamp(a, cfg, 5)
    stamp_store(a, cfg, 1)
    a.label(f'{L}_end')
    a('s_endpgm')
    return L, kernel_desc(L, 512, 102, 256), (256, 256, K1_LDS)


NOSENT = [0]


def ophase(a, sWphiLo, sHead, sMt, sWave, vLane, vL16, sW, sP, sT, vb, sc, sEx):
    L_KV, L_WP, L_Z = 0, 4096, 6144
    srd(a, sP, f's{sWphiLo}', f's{sWphiLo+1}', 65536)
    a(f's_and_b32 s{sT}, s{sWave}, 1')
    a(f's_lshl_b32 s{sT}, s{sT}, 10')
    a(f's_lshl_b32 s{sT+1}, s{sHead}, 11')
    a(f's_add_u32 s{sT+1}, s{sT+1}, s{sT}')
    a(f's_add_u32 m0, s{sT}, {L_WP}')
    a(f'buffer_load_dwordx4 v{vL16}, s[{sP}:{sP+3}], s{sT+1} offen lds')
    QF = vb + 80
    a(f's_lshl_b32 s{sT+2}, s{sMt}, 3')
    a(f's_lshl_b32 s{sT+1}, s{sWave}, 1')
    a(f's_add_u32 s{sT+2}, s{sT+2}, s{sT+1}')
    a(f's_lshl_b32 s{sT}, s{sT+2}, 16')
    a(f's_lshl_b32 s{sT+1}, s{sHead}, 11')
    a(f's_add_u32 s{sT}, s{sT}, s{sT+1}')
    a(f's_add_u32 s{sT}, s{sT}, {Q_OFF}')
    a(f's_add_u32 s{sT+3}, s{sT}, 65536')
    for rb in range(2):
        for t in range(2):
            a(f'buffer_load_dwordx4 {vr(QF+rb*8+t*4,4)}, v{vL16}, s[{sW}:{sW+3}], s{sT+3*rb} offen offset:{t*1024}')
    a(f's_mul_i32 s{sT+4}, s{sT+2}, {HO_RB}')
    a(f's_add_u32 s{sT+4}, s{sT+4}, s{sT+1}')
    a(f's_add_u32 s{sT+4}, s{sT+4}, {HO_OFF + 224*1024}')
    a(f's_add_u32 s{sT+5}, s{sT+4}, {HO_RB}')
    a(f's_lshl_b32 s{sT}, s{sHead}, 16')
    a(f's_lshl_b32 s{sT+1}, s{sWave}, 11')
    a(f's_add_u32 s{sT}, s{sT}, s{sT+1}')
    a(f's_add_u32 s{sT}, s{sT}, {KVP_OFF}')
    KL = vb
    for m in range(8):
        for q in range(2):
            a(f'buffer_load_dwordx4 {vr(KL+m*8+q*4,4)}, v{vL16}, s[{sW}:{sW+3}], s{sT} offen offset:{q*1024}')
        if m < 7:
            a(f's_add_u32 s{sT}, s{sT}, 8192')
    ZL = vb + 64
    vT = vb + 72
    a(f's_lshl_b32 s{sT}, s{sHead}, 11')
    a(f's_add_u32 s{sT}, s{sT}, {ZP_OFF}')
    a(f'v_lshlrev_b32 v{vT}, 2, v{vLane}')
    for m in range(8):
        a(f'buffer_load_dword v{ZL+m}, v{vT}, s[{sW}:{sW+3}], s{sT} offen offset:{m*256}')
    B0 = vb + 96
    WP = vb + 208
    a(f's_mov_b32 s{sT+6}, {LOG2E}')
    a(f's_mov_b32 s{sT+7}, {LOG2E}')
    a(f's_mov_b32 s{sT+8}, 0xffff0000')
    a(f's_lshl_b32 s{sT}, s{sWave}, 10')
    a(f's_add_u32 s{sT}, s{sT}, {L_KV}')
    a(f'v_add_u32 v{vT+1}, s{sT}, v{vL16}')
    a(f'v_lshlrev_b32 v{vT+2}, 1, v{vLane}')
    a(f'v_lshrrev_b32 v{vT+4}, 5, v{vLane}')
    a(f'v_lshlrev_b32 v{vT+4}, 3, v{vT+4}')
    wphi_addr(a, vT + 3, vT + 5, vLane, 0)

    def base(rb):
        return B0 + rb * 56
    a('s_waitcnt vmcnt(24)')
    a('s_barrier')
    for t in range(2):
        for h in range(2):
            a(f'ds_read_b64_tr_b16 {vr(WP+4*t+2*h,2)}, v{vT+3} offset:{L_WP+(16*t+4*h)*64}')
    a('s_waitcnt lgkmcnt(0)')
    for t in range(2):
        for rb in range(2):
            d = vr(base(rb), 16)
            a(f'{M32} {d}, {vr(WP+4*t,4)}, {vr(QF+rb*8+t*4,4)}, {d if t else 0}')
    a('s_waitcnt vmcnt(8)')
    for stride in (32, 16, 8):
        for o in range(0, stride, 2):
            a(f'v_pk_add_f32 v[{KL+o}:{KL+o+1}], v[{KL+o}:{KL+o+1}], v[{KL+stride+o}:{KL+stride+o+1}]')
    for i in range(4):
        a(f'v_cvt_pk_bf16_f32 v{KL+i}, v{KL+2*i}, v{KL+2*i+1}')
    a(f'ds_write_b128 v{vT+1}, {vr(KL,4)}')
    a('s_waitcnt vmcnt(0)')
    for stride in (4, 2):
        for o in range(0, stride, 2):
            a(f'v_pk_add_f32 v[{ZL+o}:{ZL+o+1}], v[{ZL+o}:{ZL+o+1}], v[{ZL+stride+o}:{ZL+stride+o+1}]')
    a(f'v_add_f32 v{ZL}, v{ZL}, v{ZL+1}')
    a(f'v_cvt_pk_bf16_f32 v{ZL}, v{ZL}, v{ZL}')
    a(f'ds_write_b16 v{vT+2}, v{ZL} offset:{L_Z}')
    a('s_waitcnt lgkmcnt(0)')
    a('s_barrier')
    KVF = vb + 8
    ZF = vb + 24
    for f in range(4):
        a(f'ds_read_b128 {vr(KVF+4*f,4)}, v{vL16} offset:{L_KV+f*1024}')
    for f in range(4):
        for h in range(2):
            a(f'ds_read_b64 {vr(ZF+4*f+2*h,2)}, v{vT+4} offset:{L_Z+f*32+h*16}')
    softmax_pm(a, [dict(P=base(rb), E=base(rb) + 16, T=base(rb) + 32, O=base(rb) + 40) for rb in range(2)],
               f's[{sT+6}:{sT+7}]', f's{sT+8}')
    a('s_waitcnt lgkmcnt(0)')
    for f in range(4):
        for rb in range(2):
            b = base(rb)
            a(f'{M32} {vr(b+16,16)}, {vr(ZF+4*f,4)}, {vr(b+40+4*f,4)}, {vr(b+16,16) if f else 0}')
            a(f'{M32} {vr(b,16)}, {vr(KVF+4*f,4)}, {vr(b+40+4*f,4)}, {vr(b,16) if f else 0}')
    for rb in range(2):
        D = base(rb) + 16
        a(f'v_cvt_pk_bf16_f32 v{D}, v{D}, v{D}')
        a(f'v_lshlrev_b32 v{D}, 16, v{D}')
        a(f'v_add_f32 v{D}, 0x358637bd, v{D}')
        a(f'v_cvt_pk_bf16_f32 v{D}, v{D}, v{D}')
        a(f'v_lshlrev_b32 v{D}, 16, v{D}')
        a(f'v_rcp_f32 v{D}, v{D}')
    for rb in range(2):
        b = base(rb)
        D = b + 16
        for i in range(8):
            a(f'v_cvt_pk_bf16_f32 v{b+32+i}, v{b+2*i}, v{b+2*i+1}')
        for i in range(8):
            a(f'v_lshlrev_b32 v{b+2*i}, 16, v{b+32+i}')
            a(f'v_and_b32 v{b+2*i+1}, s{sT+8}, v{b+32+i}')
        for i in range(0, 16, 2):
            a(f'v_pk_mul_f32 v[{b+i}:{b+i+1}], v[{b+i}:{b+i+1}], v[{D}:{D+1}] op_sel_hi:[1,0]')
        for i in range(8):
            a(f'v_cvt_pk_bf16_f32 v{b+32+i}, v{b+2*i}, v{b+2*i+1}')
        a(f'buffer_store_dwordx4 {vr(b+32,4)}, v{vL16}, s[{sW}:{sW+3}], s{sT+4+rb} offen{sc}')
        a(f'buffer_store_dwordx4 {vr(b+36,4)}, v{vL16}, s[{sW}:{sW+3}], s{sT+4+rb} offen offset:1024{sc}')


CH = 16384
K3_LDS = 4 * CH


def gen_k3(a, cfg):
    L = 'k3_gemm2_kernel'
    kernel_head(a, L)
    sA, sW, sX, sO = 8, 12, 16, 20
    sWave, sMt, sCt, sP, sAo, sBo, sCh, sCnt, sDst, sB2, sEo, sEi, sFl, sId = range(24, 38)
    vLane, vL16, vR1, vR2, vXo, vFl, vId = 1, 2, 3, 7, 9, 10, 12
    ACC, BF2, AR, BF1 = 16, 80, 112, 176
    AX = 176
    EXR, TMP, GS, XR = 176, 192, 224, 240
    a('s_cmp_ge_u32 s2, 512')
    a(f's_cbranch_scc1 {L}_end')
    a(f's_load_dwordx2 s[48:49], s[0:1], {KA_WS}')
    a(f's_load_dwordx2 s[40:41], s[0:1], {KA_X}')
    a(f's_load_dwordx2 s[42:43], s[0:1], {KA_WPHI}')
    a(f's_load_dwordx2 s[46:47], s[0:1], {KA_OUT}')
    a('v_lshrrev_b32 v8, 6, v0')
    a(f'v_and_b32 v{vLane}, 63, v0')
    a(f'v_readfirstlane_b32 s{sWave}, v8')
    a(f'v_lshlrev_b32 v{vL16}, 4, v{vLane}')
    a('s_cmp_ge_u32 s2, 256')
    a(f's_cbranch_scc1 {L}_main')
    if cfg.get('k3_nohelp'):
        a('s_endpgm')
    a('s_and_b32 s50, s2, 7')
    a('s_lshl_b32 s50, s50, 2')
    a('s_bfe_u32 s51, s2, 0x20003')
    a('s_add_u32 s25, s50, s51')
    a('s_lshr_b32 s26, s2, 5')
    a('s_waitcnt lgkmcnt(0)')
    srd(a, sW, 's48', 's49', WS_USED)
    ophase(a, 42, 25, 26, sWave, vLane, vL16, sW, 16, 52, 8, ' sc1', None)
    a('s_waitcnt vmcnt(0)')
    a('s_barrier')
    a(f's_cmp_lg_u32 s{sWave}, 0')
    a(f's_cbranch_scc1 {L}_end')
    a('s_lshl_b32 s50, s26, 7')
    a(f's_add_u32 s50, s50, {CNT_OFF}')
    a('v_mov_b32 v3, 1')
    a('v_mov_b32 v4, 0')
    a('s_mov_b64 exec, 1')
    a(f'buffer_atomic_add v3, v4, s[{sW}:{sW+3}], s50 offen sc1')
    a('s_endpgm')
    a.label(f'{L}_main')
    a.reset()
    a('s_sub_u32 s2, s2, 256')
    stamp(a, cfg, 0)
    stamp(a, cfg, 1)
    if cfg.get('k3_prio'):
        a('s_setprio 1')
    a('s_bfe_u32 s50, s2, 0x20001')
    a('s_lshl_b32 s50, s50, 2')
    a('s_bfe_u32 s51, s2, 0x20003')
    a(f's_add_u32 s{sMt}, s50, s51')
    if cfg.get('k3_xpair'):
        a(f's_and_b32 s{sP}, s2, 1')
        a(f's_lshr_b32 s{sCt}, s2, 5')
    else:
        a(f's_bfe_u32 s{sP}, s2, 0x10005')
        a('s_and_b32 s50, s2, 1')
        a('s_lshl_b32 s50, s50, 2')
        a('s_lshr_b32 s51, s2, 6')
        a(f's_add_u32 s{sCt}, s50, s51')
    a(f's_lshl_b32 s50, s{sMt}, 2')
    a(f's_add_u32 s50, s50, s{sWave}')
    a(f's_mul_i32 s51, s50, {HO_RB}')
    a(f's_add_u32 s51, s51, {HO_OFF}')
    a(f's_mul_i32 s{sAo}, s{sP}, {112*1024}')
    a(f's_mul_i32 s{sBo}, s{sCt}, {3584*256}')
    a(f's_mul_i32 s52, s{sP}, {1792*256}')
    a(f's_add_u32 s{sBo}, s{sBo}, s52')
    a(f's_lshl_b32 s{sDst}, s{sWave}, 12')
    a(f's_add_u32 s{sBo}, s{sBo}, s{sDst}')
    a(f's_add_u32 s{sBo}, s{sBo}, {WDT_OFF}')
    a(f's_mov_b32 s{sCh}, 0')
    a(f's_lshl_b32 s53, s{sCt}, 1')
    a(f's_add_u32 s53, s53, s{sP}')
    a(f's_lshl_b32 s{sB2}, s53, 17')
    a(f's_add_u32 s{sB2}, s{sB2}, s{sDst}')
    a(f's_add_u32 s{sB2}, s{sB2}, {WOT_OFF}')
    a(f's_lshl_b32 s54, s{sMt}, 4')
    a('s_add_u32 s54, s54, s53')
    a(f's_lshl_b32 s{sId}, s54, 7')
    a(f's_add_u32 s{sId}, s{sId}, {ID_OFF}')
    a('s_lshl_b32 s54, s54, 2')
    a(f's_add_u32 s54, s54, s{sWave}')
    a(f's_lshl_b32 s{sEo}, s54, 12')
    a(f's_add_u32 s{sEo}, s{sEo}, {EX_OFF}')
    a('s_xor_b32 s54, s54, 4')
    a(f's_lshl_b32 s{sEi}, s54, 12')
    a(f's_add_u32 s{sEi}, s{sEi}, {EX_OFF}')
    a(f's_lshr_b32 s{sFl}, s{sMt}, 1')
    a(f's_lshl_b32 s{sFl}, s{sFl}, 7')
    a(f's_add_u32 s{sFl}, s{sFl}, {CNT_OFF}')
    a(f'v_and_b32 v11, 31, v{vLane}')
    a('v_lshlrev_b32 v11, 11, v11')
    a(f'v_lshrrev_b32 v12, 5, v{vLane}')
    a('v_lshl_add_u32 v11, v12, 6, v11')
    a('s_lshl_b32 s52, s50, 16')
    a('s_lshl_b32 s54, s53, 7')
    a('s_add_u32 s52, s52, s54')
    a(f'v_add_u32 v{vXo}, s52, v11')
    a(f'v_bfe_u32 v13, v{vLane}, 2, 2')
    a(f'v_and_b32 v14, 1, v{vLane}')
    a('v_lshlrev_b32 v11, 6, v14')
    a(f'v_bfe_u32 v14, v{vLane}, 4, 1')
    a('v_lshl_add_u32 v11, v14, 4, v11')
    a(f'v_bfe_u32 v14, v{vLane}, 1, 1')
    a('v_lshl_add_u32 v11, v14, 3, v11')
    a('v_lshrrev_b32 v14, 1, v13')
    a('v_lshl_add_u32 v15, v12, 2, v13')
    a('v_lshl_add_u32 v15, v15, 7, v11')
    a(f'v_lshl_add_u32 v{vR2}, v14, 5, v15')
    a(f'v_xor_b32 v{vR2+1}, 32, v{vR2}')
    a('v_lshl_add_u32 v15, v12, 3, v13')
    a('v_lshl_add_u32 v15, v15, 8, v11')
    a('v_lshl_add_u32 v15, v14, 7, v15')
    a('v_and_b32 v14, 1, v13')
    a('v_lshl_add_u32 v15, v14, 5, v15')
    a(f's_lshl_b32 s54, s{sP}, 7')
    a(f'v_xor_b32 v{vR1}, s54, v15')
    a(f'v_xor_b32 v{vR1+1}, 32, v{vR1}')
    a(f'v_xor_b32 v{vR1+2}, 0x80, v{vR1}')
    a(f'v_xor_b32 v{vR1+3}, 0xa0, v{vR1}')
    for i in range(4):
        a(f'v_mov_b32 v{12+i}, 0')
    for b in range(4):
        a(f'{M32} {vr(ACC+16*b,16)}, v[12:15], v[12:15], 0')
    a('s_waitcnt lgkmcnt(0)')
    srd_off(a, sA, 's48', 's49', 's51', HO_RB)
    srd(a, sW, 's48', 's49', WS_USED)

    vm = VmQ()
    inloop = [False]

    def dma_m0(chunk):
        a(f's_add_u32 m0, s{sDst}, {(chunk % 4)*CH}')

    def dma_q(chunk, u):
        if inloop[0] and cfg.get('k3_nob'):
            vm.issue(('B', chunk), 0)
            return
        a(f'buffer_load_dwordx4 v{vL16}, s[{sW}:{sW+3}], s{sBo} offen offset:{u*1024} lds')
        vm.issue(('B', chunk))

    def dma_adv():
        a(f's_add_u32 s{sBo}, s{sBo}, {CH}')
        a(f's_add_u32 s{sCh}, s{sCh}, 1')
        a(f's_cmp_eq_u32 s{sCh}, 28')
        a(f's_cselect_b32 s{sBo}, s{sB2}, s{sBo}')
        if inloop[0] and cfg.get('k3_wrap'):
            a(f's_and_b32 s{sBo}, s{sBo}, 0xfffdffff')

    def aload_to(reg, step, tag):
        if inloop[0] and cfg.get('k3_noa'):
            vm.issue((tag, step), 0)
            return
        a(f'buffer_load_dwordx4 {vr(reg,4)}, v{vL16}, s[{sA}:{sA+3}], s{sAo} offen offset:{(step&3)*1024}{"" if cfg.get("k3_plain") else " sc1"}')
        vm.issue((tag, step))
        if (step & 3) == 3:
            a(f's_add_u32 s{sAo}, s{sAo}, 4096')
            if inloop[0] and cfg.get('k3_wrap'):
                a(f's_and_b32 s{sAo}, s{sAo}, 0x7fff')

    def aload(step):
        aload_to(AR + 4 * (step % 16), step, 'A')

    def bread1(step, blk):
        slot = (step >> 2) % 4
        e = step % 4
        for h in range(2):
            off = slot * CH + ((step & 3) * 16 + 4 * h) * 256
            a(f'ds_read_b64_tr_b16 {vr(BF1+e*16+blk*4+2*h,2)}, v{vR1+blk} offset:{off}')

    def bread2(step, b):
        slot = (step >> 3) % 4
        e = step % 4
        for h in range(2):
            off = slot * CH + ((step & 7) * 16 + 8 * h) * 128
            a(f'ds_read_b64_tr_b16 {vr(BF2+e*8+b*4+2*h,2)}, v{vR2+b} offset:{off}')

    a('s_getreg_b32 s57, hwreg(HW_REG_XCC_ID)')
    a('s_and_b32 s57, s57, 0xf')
    a('s_or_b32 s57, s57, 0x100')
    for s_ in range(-16, 0):
        ph = s_ % 4
        c = (s_ + 2) // 4 + 3
        if s_ == -2:
            a(f's_waitcnt vmcnt({vm.need([("B", 0)])})')
            a('s_barrier')
            for t_ in range(2):
                for blk in range(4):
                    bread1(t_, blk)
        if ph == 3:
            aload(s_ + 15)
        if c >= 0:
            if ph == 2:
                if c > 0:
                    dma_adv()
                dma_m0(c)
            dma_q(c, (ph + 2) % 4)
        if ph != 2:
            aload(s_ + 16)
        if s_ == -11:
            srd(a, sX, 's40', 's41', 0x400000)
            srd(a, sO, 's46', 's47', 0x400000)
            a('v_mov_b32 v11, s57')
            a(f'buffer_store_dword v11, v15, s[{sW}:{sW+3}], s{sId} offen sc1')
    for i in range(4):
        a(f'buffer_load_dwordx4 {vr(XR+4*i,4)}, v{vXo}, s[{sX}:{sX+3}], 0 offen offset:{16*i}')
    a(f's_xor_b32 s{sId}, s{sId}, 128')
    a(f's_mov_b32 s{sCnt}, 0')
    stamp(a, cfg, 2)
    stampv(a, cfg, 14, 0)
    inloop[0] = True
    waits = {}

    def w(key, n):
        waits.setdefault(key, []).append(n)
        return min(waits[key])

    def step1(s):
        e = s % 16
        ph = s % 4
        c = (s + 2) // 4 + 3
        for blk in range(4):
            if blk == 0:
                a(f's_waitcnt vmcnt({w((e, "A"), vm.need([("A", s)]))}) lgkmcnt(8)')
            d = vr(ACC + 16 * blk, 16)
            a(f'{M32} {d}, {vr(BF1+ph*16+blk*4,4)}, {vr(AR+4*e,4)}, {d}')
            if ph == 2:
                if blk == 0:
                    dma_adv()
                    dma_m0(c)
                if blk == 1:
                    a(f's_waitcnt vmcnt({w((e, "B"), vm.need([("B", (s+2)//4)]))}) lgkmcnt(0)')
                    a('s_barrier')
                    bread1(s + 2, 0)
                if blk == 2:
                    bread1(s + 2, 1)
                    bread1(s + 2, 2)
                if blk == 3:
                    bread1(s + 2, 3)
                    dma_q(c, 0)
            else:
                bread1(s + 2, blk)
                if blk == 1:
                    dma_q(c, (ph + 2) % 4)
                if blk == 0 and ph == 3:
                    aload(s + 15)
            if blk == 2 and e == 1:
                a(f'buffer_load_dword v{vFl}, v15, s[{sW}:{sW+3}], s{sFl} offen sc1')
                vm.issue(('F', s))
            if blk == 2 and e == 5:
                a(f'buffer_load_dword v{vId}, v15, s[{sW}:{sW+3}], s{sId} offen sc1')
                vm.issue(('I', s))
        if ph != 2:
            aload(s + 16)

    q0 = list(vm.q)
    sl_, sh_ = a.lines, a.hist
    a.lines = []
    for s_ in range(48):
        step1(s_)
    a.lines, a.hist = sl_, sh_
    if cfg.get('verbose'):
        print(waits)
    vm.q = list(q0)
    a.raw('.p2align 6')
    a.label(f'{L}_loop1')
    for s_ in range(16):
        step1(s_)
    a(f's_add_u32 s{sCnt}, s{sCnt}, 1')
    if cfg.get('prof') == 3:
        a('s_mov_b32 s58, m0')
        a(f's_mov_b32 m0, s{sCnt}')
        stampv(a, cfg, 14, 'm0')
        a('s_mov_b32 m0, s58')
    a(f's_cmp_lg_u32 s{sCnt}, 6')
    a(f's_cbranch_scc1 {L}_l1next')
    a(f's_mov_b32 s{sAo}, {224*1024}')
    a(f's_waitcnt vmcnt({vm.need([("F", 1)])})')
    a('s_mov_b32 s55, 0')
    a.label(f'{L}_poll')
    a(f'v_readfirstlane_b32 s54, v{vFl}')
    a('s_cmp_ge_u32 s54, 32')
    a(f's_cbranch_scc1 {L}_l1next')
    a('s_add_u32 s55, s55, 1')
    a(f's_cmp_ge_u32 s55, {1 if cfg.get("k3_nohelp") else SPIN_MAX}')
    a(f's_cbranch_scc1 {L}_l1next')
    a('s_sleep 4')
    a(f'buffer_load_dword v{vFl}, v15, s[{sW}:{sW+3}], s{sFl} offen sc1')
    a('s_waitcnt vmcnt(0)')
    a(f's_branch {L}_poll')
    a.label(f'{L}_l1next')
    a(f's_cmp_lt_u32 s{sCnt}, 7')
    a(f's_cbranch_scc1 {L}_loop1')
    inloop[0] = False
    vm.q = [((('A2', t[1] - 16) if t[0] == 'A' else ('B', t[1] + 24) if t[0] == 'B' else t), wt) for (t, wt) in vm.q]

    def areg2(s):
        return AX + 4 * (s - 16) if 16 <= s < 32 else AR + 4 * (s % 16)

    dma_q(31, 2)
    dma_q(31, 3)
    dma_adv()
    a('s_waitcnt lgkmcnt(0)')
    for s_ in range(3):
        bread2(s_, 0)
        bread2(s_, 1)
    a('s_mov_b32 s54, 0xfffffffe')
    PB = ACC + 32
    for s_ in range(16, 32):
        i = s_ - 16
        aload_to(areg2(s_), s_, 'A2')
        a(f'v_cvt_pk_bf16_f32 v{PB+i}, v{PB+2*i}, v{PB+2*i+1}')
        a(f'v_min_u32 v{PB+i}, s54, v{PB+i}')
    a(f's_waitcnt vmcnt({vm.need([("I", 5)])})')
    a(f'v_readfirstlane_b32 s55, v{vId}')
    a('s_cmp_eq_u32 s55, s57')
    a(f's_cbranch_scc1 {L}_pubfast')
    for q in range(4):
        a(f'buffer_store_dwordx4 {vr(PB+4*q,4)}, v{vL16}, s[{sW}:{sW+3}], s{sEo} offen offset:{q*1024} sc1')
    a(f's_branch {L}_pubdone')
    a.label(f'{L}_pubfast')
    for q in range(4):
        a(f'buffer_store_dwordx4 {vr(PB+4*q,4)}, v{vL16}, s[{sW}:{sW+3}], s{sEo} offen offset:{q*1024}')
        vm.issue(('P', q))
    a.label(f'{L}_pubdone')
    a('s_nop 1')
    stampv(a, cfg, 14, 8)

    def exload(q):
        a(f'buffer_load_dwordx4 {vr(EXR+4*q,4)}, v{vL16}, s[{sW}:{sW+3}], s{sEi} offen offset:{q*1024} sc1')

    MID = cfg.get('k3_mid', 40)
    EL = cfg.get('k3_el', 24)

    def step2(s):
        bar = (s + 3) % 8 == 0
        c = 28 + (s + 3) // 8
        rd = s + 3 < 64
        a(f's_waitcnt vmcnt({vm.need([("A2", s)])}) lgkmcnt({min(8, 4*(63-s))})')
        for b in range(2):
            d = vr(ACC + 32 + 16 * b, 16)
            a(f'{M32} {d}, {vr(BF2+(s%4)*8+b*4,4)}, {vr(areg2(s),4)}, {d if s else 0}')
            if rd and bar:
                if b == 0 and c + 3 < 36:
                    dma_m0(c + 3)
                if b == 1:
                    a(f's_waitcnt vmcnt({vm.need([("B", c)])}) lgkmcnt(0)')
                    a('s_barrier')
                    bread2(s + 3, 0)
                    bread2(s + 3, 1)
            elif rd:
                bread2(s + 3, b)
                u = (s + 3) % 8 - 1
                if b == 0 and 0 <= u < 4 and s >= 5 and c + 3 < 36:
                    dma_q(c + 3, u)
                if b == 0 and u == 4 and s >= 5 and c + 3 < 36:
                    dma_adv()
        if s < 16:
            aload_to(AR + 4 * s, s + 32, 'A2')
        elif 32 <= s < 48:
            aload_to(AR + 4 * (s % 16), s + 16, 'A2')
        if EL <= s < EL + 4:
            exload(s - EL)
            vm.issue(('E', s - EL))

    for s_ in range(MID):
        step2(s_)
        if s_ % 8 == 7:
            stampv(a, cfg, 14, 32 + s_ // 8)
    stampv(a, cfg, 14, 9)
    a(f's_waitcnt vmcnt({vm.need([("E", 3)])})')
    a('s_mov_b32 s56, 0')
    a.label(f'{L}_chk')
    a(f'v_max3_u32 v11, v{EXR}, v{EXR+1}, v{EXR+2}')
    for i in range(3, 15, 2):
        a(f'v_max3_u32 v11, v11, v{EXR+i}, v{EXR+i+1}')
    a(f'v_max_u32 v11, v11, v{EXR+15}')
    a('v_cmp_eq_u32 vcc, -1, v11')
    a('s_nop 4')
    a(f's_cbranch_vccz {L}_got')
    a('s_add_u32 s56, s56, 1')
    a(f's_cmp_ge_u32 s56, {SPIN_MAX}')
    a(f's_cbranch_scc1 {L}_got')
    a('s_sleep 2')
    for q in range(4):
        exload(q)
    a('s_waitcnt vmcnt(0)')
    a(f's_branch {L}_chk')
    a.label(f'{L}_got')
    stampv(a, cfg, 14, 10)
    a(f's_mov_b32 s53, {LOG2E | 0x80000000}')
    a('s_mov_b32 s54, 0xffff0000')
    mid = []
    for i in range(16):
        mid.append(f'v_lshlrev_b32 v{TMP+2*i}, 16, v{EXR+i}')
        mid.append(f'v_and_b32 v{TMP+2*i+1}, s54, v{EXR+i}')
    for i in range(32):
        mid.append(f'v_add_f32 v{ACC+i}, v{ACC+i}, v{TMP+i}')
    for i in range(16):
        mid.append(f'v_cvt_pk_bf16_f32 v{GS+i}, v{ACC+2*i}, v{ACC+2*i+1}')
    for i in range(16):
        mid.append(f'v_lshlrev_b32 v{ACC+2*i}, 16, v{GS+i}')
        mid.append(f'v_and_b32 v{ACC+2*i+1}, s54, v{GS+i}')
    for i in range(32):
        mid.append(f'v_mul_f32 v{TMP+i}, s53, v{ACC+i}')
    for i in range(32):
        mid.append(f'v_exp_f32 v{TMP+i}, v{TMP+i}')
    for i in range(32):
        mid.append(f'v_add_f32 v{TMP+i}, 1.0, v{TMP+i}')
    for i in range(32):
        mid.append(f'v_rcp_f32 v{TMP+i}, v{TMP+i}')
    for i in range(32):
        mid.append(f'v_mul_f32 v{ACC+i}, v{ACC+i}, v{TMP+i}')
    for i in range(16):
        mid.append(f'v_cvt_pk_bf16_f32 v{GS+i}, v{ACC+2*i}, v{ACC+2*i+1}')
    for i in range(16):
        mid.append(f'v_lshlrev_b32 v{ACC+2*i}, 16, v{GS+i}')
        mid.append(f'v_and_b32 v{ACC+2*i+1}, s54, v{GS+i}')
        mid.append(f'v_lshlrev_b32 v{TMP+2*i}, 16, v{XR+i}')
        mid.append(f'v_and_b32 v{TMP+2*i+1}, s54, v{XR+i}')
    per = -(-len(mid) // (2 * (64 - MID)))
    mid2 = ['\n'.join(mid[i:i + per]) for i in range(0, len(mid), per)]
    a.sprinkle(mid2, 4)
    stampv(a, cfg, 14, 11)
    for s_ in range(MID, 64):
        step2(s_)
    a.flush()
    stamp(a, cfg, 3)
    stampv(a, cfg, 14, 12)
    S = ACC + 32
    T = GS
    for q in range(4):
        rng = range(4 * q, 4 * q + 4)
        for i in rng:
            a(f'v_cvt_pk_bf16_f32 v{T+i}, v{S+2*i}, v{S+2*i+1}')
        for i in rng:
            a(f'v_lshlrev_b32 v{S+2*i}, 16, v{T+i}')
            a(f'v_and_b32 v{S+2*i+1}, s54, v{T+i}')
        for i in rng:
            a(f'v_pk_mul_f32 v[{S+2*i}:{S+2*i+1}], v[{S+2*i}:{S+2*i+1}], v[{ACC+2*i}:{ACC+2*i+1}]')
        for i in rng:
            a(f'v_cvt_pk_bf16_f32 v{T+i}, v{S+2*i}, v{S+2*i+1}')
        for i in rng:
            a(f'v_lshlrev_b32 v{S+2*i}, 16, v{T+i}')
            a(f'v_and_b32 v{S+2*i+1}, s54, v{T+i}')
        for i in rng:
            a(f'v_pk_add_f32 v[{S+2*i}:{S+2*i+1}], v[{S+2*i}:{S+2*i+1}], v[{TMP+2*i}:{TMP+2*i+1}]')
            if cfg.get('err_add') or cfg.get('err_mul'):
                import struct
                f2u = lambda x: struct.unpack('<I', struct.pack('<f', x))[0]
                for r in (S + 2 * i, S + 2 * i + 1):
                    if cfg.get('err_add'):
                        a(f'v_add_f32 v{r}, {f2u(cfg["err_add"] / 1000.0):#x}, v{r}')
                    else:
                        a(f'v_mul_f32 v{r}, {f2u(1.0 + cfg["err_mul"] / 1000.0):#x}, v{r}')
        for i in rng:
            a(f'v_cvt_pk_bf16_f32 v{T+i}, v{S+2*i}, v{S+2*i+1}')
        a(f'buffer_store_dwordx4 {vr(T+4*q,4)}, v{vXo}, s[{sO}:{sO+3}], 0 offen offset:{16*q}')
    if cfg.get('prof'):
        a('s_waitcnt vmcnt(0)')
    stamp(a, cfg, 4)
    stamp(a, cfg, 5)
    stampv(a, cfg, 14, 13)
    stampv_store(a, cfg, 14, 13)
    stamp_store(a, cfg, 3)
    a.label(f'{L}_end')
    a('s_endpgm')
    return L, kernel_desc(L, 256, 102, 256), (512, 256, K3_LDS)


def build(cfg):
    a = Asm()
    NOSENT[0] = cfg.get('nosent', 0)
    ks = [gen_k0(a, cfg), gen_k1(a, cfg), gen_k3(a, cfg)]
    out = HEADER
    for (lab, _, (g, b, lds)) in ks:
        out += f'; @launch kernel={lab} grid=({g},1,1) block=({b},1,1) lds={lds}\n'
    out += '.amdgcn_target "amdgcn-amd-amdhsa--gfx950"\n.text\n'
    out += a.text()
    out += '.section .rodata,"a"\n'
    for (_, desc, _) in ks:
        out += '.p2align 6\n' + desc
    return out


if __name__ == '__main__':
    cfg = {}
    outp = sys.argv[1] if len(sys.argv) > 1 else f'cdna_kernels/{NAME}.s'
    for kv in sys.argv[2:]:
        k, v = kv.split('=')
        cfg[k] = int(v)
    open(outp, 'w').write(build(cfg))
    print('wrote', outp)
```

```python
import sys
import os
sys.path.insert(0, os.path.dirname(os.path.abspath(__file__)))
from asmlib import Asm, vr, ar, sr

NAME = 'recurrent_scan__linear_kernel_hedgehog__glu_gated_bilinear__prompt'

XN_OFF = 0
HO_OFF = 0x400000
HO_RB = 288 * 1024
Q_OFF = 0x1600000
KVP_OFF = 0x1A00000
ZP_OFF = 0x1C00000
WDT_OFF = 0x1D00000
WOT_OFF = 0x2400000
EX_OFF = 0x2600000
CNT_OFF = 0x2E00000
WS_USED = 0x2E01000

KA_X, KA_WQKV, KA_WPHI, KA_WO, KA_WG, KA_WU, KA_WD, KA_OUT, KA_DBG, KA_WS = 0, 8, 16, 24, 40, 48, 56, 64, 72, 80
LOG2E = 0x3FB8AA3B
MFMA = 'v_mfma_f32_32x32x16_bf16'


def srd(a, d, lo, hi, nrec):
    a(f's_mov_b32 s{d}, {lo}')
    a(f's_and_b32 s{d+1}, {hi}, 0xffff')
    a(f's_mov_b32 s{d+2}, {nrec}')
    a(f's_mov_b32 s{d+3}, 0x20000')


def srd_off(a, d, lo, hi, off, nrec):
    a(f's_add_u32 s{d}, {lo}, {off}')
    a(f's_addc_u32 s{d+1}, {hi}, 0')
    a(f's_and_b32 s{d+1}, s{d+1}, 0xffff')
    a(f's_mov_b32 s{d+2}, {nrec}')
    a(f's_mov_b32 s{d+3}, 0x20000')


PROF_OFF = 0x3800000


def stamp(a, cfg, idx):
    if not cfg.get('prof'):
        return
    a('s_waitcnt lgkmcnt(0)')
    if idx in (0, 5):
        a(f's_memrealtime s[{86+2*idx}:{87+2*idx}]')
    else:
        a(f's_memtime s[{86+2*idx}:{87+2*idx}]')
    a('s_waitcnt lgkmcnt(0)')


def stampv(a, cfg, vreg, lane, lvl=3):
    if cfg.get('prof') != lvl:
        return
    a('s_waitcnt lgkmcnt(0)')
    a('s_memtime s[98:99]')
    a('s_waitcnt lgkmcnt(0)')
    a(f'v_writelane_b32 v{vreg}, s98, {lane}')


def stampv_store(a, cfg, vreg, vtmp, lvl=3):
    if cfg.get('prof') != lvl:
        return
    a(f's_load_dwordx2 s[4:5], s[0:1], {KA_WS}')
    a('s_waitcnt lgkmcnt(0)')
    a(f's_lshl_b32 s3, s2, 10')
    a(f's_add_u32 s3, s3, {PROF_OFF + 0x200000}')
    a('s_add_u32 s4, s4, s3')
    a('s_addc_u32 s5, s5, 0')
    a('s_and_b32 s5, s5, 0xffff')
    a('s_mov_b32 s6, 1024')
    a('s_mov_b32 s7, 0x20000')
    a(f'v_lshlrev_b32 v{vtmp}, 2, v0')
    a(f'buffer_store_dword v{vreg}, v{vtmp}, s[4:7], 0 offen')


def stamp_store(a, cfg, kidx):
    if not cfg.get('prof'):
        return
    a(f's_load_dwordx2 s[4:5], s[0:1], {KA_WS}')
    a('s_waitcnt lgkmcnt(0)')
    a(f's_lshl_b32 s3, s2, 6')
    a(f's_add_u32 s3, s3, {PROF_OFF + kidx*16384}')
    a('s_add_u32 s4, s4, s3')
    a('s_addc_u32 s5, s5, 0')
    a('s_and_b32 s5, s5, 0xffff')
    a('s_mov_b32 s6, 64')
    a('s_mov_b32 s7, 0x20000')
    a('v_mov_b32 v1, 0')
    a('v_cmp_eq_u32 vcc, 0, v0')
    a('s_and_saveexec_b64 s[98:99], vcc')
    for i in range(12):
        a(f'v_mov_b32 v2, s{86+i}')
        a(f'buffer_store_dword v2, v1, s[4:7], 0 offen offset:{4*i}')
    a('s_getreg_b32 s3, hwreg(HW_REG_XCC_ID)')
    a('v_mov_b32 v2, s3')
    a('buffer_store_dword v2, v1, s[4:7], 0 offen offset:48')
    a('s_getreg_b32 s3, hwreg(HW_REG_HW_ID)')
    a('v_mov_b32 v2, s3')
    a('buffer_store_dword v2, v1, s[4:7], 0 offen offset:52')
    a('s_mov_b64 exec, s[98:99]')


def kernel_head(a, label):
    a.raw('.p2align 8')
    a.raw(f'.globl {label}')
    a.raw(f'.type {label},@function')
    a.label(label)
    a.reset()


def kernel_desc(label, nv, ns, acc):
    return f""".amdhsa_kernel {label}
  .amdhsa_next_free_vgpr {nv}
  .amdhsa_next_free_sgpr {ns}
  .amdhsa_accum_offset {acc}
  .amdhsa_group_segment_fixed_size 0
  .amdhsa_kernarg_size 88
  .amdhsa_user_sgpr_count 2
  .amdhsa_user_sgpr_kernarg_segment_ptr 1
  .amdhsa_system_sgpr_workgroup_id_x 1
  .amdhsa_float_denorm_mode_32 3
.end_amdhsa_kernel
"""


def gen_k0(a, cfg):
    L = 'k0_ln_kernel'
    kernel_head(a, L)
    a('s_cmp_ge_u32 s2, 256')
    a(f's_cbranch_scc1 {L}_end')
    a(f's_load_dwordx2 s[4:5], s[0:1], {KA_X}')
    a(f's_load_dwordx2 s[6:7], s[0:1], {KA_WS}')
    a('v_and_b32 v1, 7, v0')
    a('v_lshrrev_b32 v2, 3, v0')
    a('v_lshlrev_b32 v3, 11, v1')
    a('v_lshl_add_u32 v3, v2, 4, v3')
    a('s_lshl_b32 s3, s2, 14')
    a('s_waitcnt lgkmcnt(0)')
    srd(a, 8, 's4', 's5', 0x400000)
    a('buffer_load_dwordx4 v[8:11], v3, s[8:11], s3 offen')
    a('buffer_load_dwordx4 v[12:15], v3, s[8:11], s3 offen offset:1024')
    if cfg.get('pf_code'):
        a('s_getpc_b64 s[20:21]')
        a.label('k0_pc')
        a('s_sub_u32 s20, s20, k0_pc-k0_ln_kernel')
        a('s_subb_u32 s21, s21, 0')
        a('s_and_b32 s21, s21, 0xffff')
        a('s_mov_b32 s22, code_end-k0_ln_kernel')
        a('s_mov_b32 s23, 0x20000')
        a('v_lshlrev_b32 v7, 6, v0')
        a('buffer_load_dword v63, v7, s[20:23], 0 offen')
        a('s_mov_b32 s19, 32768')
        a('buffer_load_dword v63, v7, s[20:23], s19 offen')
    if cfg.get('pf_tlb'):
        a('s_load_dwordx4 s[24:27], s[0:1], 8')
        a('s_load_dwordx2 s[28:29], s[0:1], 24')
        a('s_load_dwordx8 s[32:39], s[0:1], 40')
        a('v_lshlrev_b32 v7, 16, v0')
        a('s_waitcnt lgkmcnt(0)')
        for (lo, n) in ((24, 6144*1024), (28, 2048*1024), (32, 7168*1024), (34, 7168*1024), (36, 7168*1024), (38, 4096*1024), (6, WS_USED)):
            srd(a, 40, f's{lo}', f's{lo+1}', n)
            a('buffer_load_dword v63, v7, s[40:43], 0 offen')
    a('s_cmp_lg_u32 s2, 0')
    a(f's_cbranch_scc1 {L}_nz')
    srd_off(a, 12, 's6', 's7', CNT_OFF, 1024)
    for i in range(4):
        a(f'v_mov_b32 v{16+i}, 0')
    a('v_lshlrev_b32 v7, 4, v0')
    a('buffer_store_dwordx4 v[16:19], v7, s[12:15], 0 offen')
    a('s_nop 1')
    a.label(f'{L}_nz')
    srd(a, 12, 's6', 's7', 0x400000)
    a('s_lshr_b32 s16, s2, 3')
    a('s_lshl_b32 s16, s16, 17')
    a('s_bfe_u32 s17, s2, 0x10002')
    a('s_lshl_b32 s17, s17, 10')
    a('s_or_b32 s16, s16, s17')
    a('s_and_b32 s17, s2, 3')
    a('s_lshl_b32 s17, s17, 7')
    a('s_or_b32 s16, s16, s17')
    a('s_add_u32 s17, s16, 0x10000')
    a('v_lshrrev_b32 v4, 1, v2')
    a('v_lshlrev_b32 v4, 11, v4')
    a('v_and_b32 v5, 1, v2')
    a('v_lshl_add_u32 v4, v5, 9, v4')
    a('v_lshl_add_u32 v4, v1, 4, v4')
    a('v_lshrrev_b32 v5, 6, v0')
    a('v_lshlrev_b32 v6, 5, v1')
    a('v_lshl_add_u32 v5, v5, 2, v6')
    a('s_mov_b32 s18, 0xffff0000')
    a(f"s_waitcnt vmcnt({(2 if cfg.get('pf_code') else 0) + (7 if cfg.get('pf_tlb') else 0)})")
    X = 16
    for i in range(8):
        a(f'v_lshlrev_b32 v{X+2*i}, 16, v{8+i}')
        a(f'v_and_b32 v{X+2*i+1}, s18, v{8+i}')

    def reduce_all(acc, tmp, ldsoff):
        a(f'v_add_f32_dpp v{acc}, v{acc}, v{acc} row_ror:8 row_mask:0xf bank_mask:0xf')
        a(f'v_mov_b32 v{tmp}, v{acc}')
        a(f'v_permlane16_swap_b32 v{acc}, v{tmp}')
        a(f'v_add_f32 v{acc}, v{acc}, v{tmp}')
        a(f'v_mov_b32 v{tmp}, v{acc}')
        a(f'v_permlane32_swap_b32 v{acc}, v{tmp}')
        a(f'v_add_f32 v{acc}, v{acc}, v{tmp}')
        a('s_mov_b64 exec, 0xff')
        a(f'ds_write_b32 v5, v{acc} offset:{ldsoff}')
        a('s_mov_b64 exec, -1')
        a('s_waitcnt lgkmcnt(0)')
        a('s_barrier')
        a(f'ds_read_b128 v[48:51], v6 offset:{ldsoff}')
        a(f'ds_read_b128 v[52:55], v6 offset:{ldsoff+16}')
        a('s_waitcnt lgkmcnt(0)')
        a('v_pk_add_f32 v[48:49], v[48:49], v[50:51]')
        a('v_pk_add_f32 v[52:53], v[52:53], v[54:55]')
        a('v_pk_add_f32 v[48:49], v[48:49], v[52:53]')
        a(f'v_add_f32 v{acc}, v48, v49')

    a(f'v_pk_add_f32 v[32:33], v[{X}:{X+1}], v[{X+2}:{X+3}]')
    a(f'v_pk_add_f32 v[34:35], v[{X+4}:{X+5}], v[{X+6}:{X+7}]')
    a(f'v_pk_add_f32 v[36:37], v[{X+8}:{X+9}], v[{X+10}:{X+11}]')
    a(f'v_pk_add_f32 v[38:39], v[{X+12}:{X+13}], v[{X+14}:{X+15}]')
    a('v_pk_add_f32 v[32:33], v[32:33], v[34:35]')
    a('v_pk_add_f32 v[36:37], v[36:37], v[38:39]')
    a('v_pk_add_f32 v[32:33], v[32:33], v[36:37]')
    a('v_add_f32 v56, v32, v33')
    reduce_all(56, 57, 0)
    a('v_mul_f32 v56, 0x3a800000, v56')
    for i in range(16):
        a(f'v_sub_f32 v{32+i}, v{X+i}, v56')
    a('v_pk_mul_f32 v[58:59], v[32:33], v[32:33]')
    a('v_pk_mul_f32 v[60:61], v[34:35], v[34:35]')
    for i in range(2, 8):
        d = 58 + 2 * (i & 1)
        a(f'v_pk_fma_f32 v[{d}:{d+1}], v[{32+2*i}:{33+2*i}], v[{32+2*i}:{33+2*i}], v[{d}:{d+1}]')
    a('v_pk_add_f32 v[58:59], v[58:59], v[60:61]')
    a('v_add_f32 v58, v58, v59')
    a('v_cvt_pk_bf16_f32 v62, v56, v56')
    a('v_lshlrev_b32 v62, 16, v62')
    for i in range(16):
        a(f'v_sub_f32 v{32+i}, v{X+i}, v62')
    for i in range(8):
        a(f'v_cvt_pk_bf16_f32 v{8+i}, v{32+2*i}, v{33+2*i}')
    for i in range(8):
        a(f'v_lshlrev_b32 v{X+2*i}, 16, v{8+i}')
        a(f'v_and_b32 v{X+2*i+1}, s18, v{8+i}')
    reduce_all(58, 57, 256)
    a('v_mul_f32 v58, 0x3a800000, v58')
    a('v_cvt_pk_bf16_f32 v58, v58, v58')
    a('v_lshlrev_b32 v58, 16, v58')
    a('v_add_f32 v58, 0x3727c5ac, v58')
    a('v_cvt_pk_bf16_f32 v58, v58, v58')
    a('v_lshlrev_b32 v58, 16, v58')
    a('v_sqrt_f32 v58, v58')
    a('v_cvt_pk_bf16_f32 v58, v58, v58')
    a('v_lshlrev_b32 v58, 16, v58')
    a('v_rcp_f32 v58, v58')
    for i in range(16):
        a(f'v_mul_f32 v{X+i}, v{X+i}, v58')
    for i in range(8):
        a(f'v_cvt_pk_bf16_f32 v{8+i}, v{X+2*i}, v{X+2*i+1}')
    a('buffer_store_dwordx4 v[8:11], v4, s[12:15], s16 offen')
    a('buffer_store_dwordx4 v[12:15], v4, s[12:15], s17 offen')
    a.label(f'{L}_end')
    a('s_endpgm')
    return L, kernel_desc(L, 64, 48, 64), (256, 512, 512)


def softmax_pm(a, blocks, sL, sMask):
    def each(f):
        for b in blocks:
            f(b)
    for i in range(8):
        each(lambda b: a(f"v_cvt_pk_bf16_f32 v{b['T']+i}, v{b['P']+2*i}, v{b['P']+2*i+1}"))
    for i in range(8):
        each(lambda b: (a(f"v_lshlrev_b32 v{b['P']+2*i}, 16, v{b['T']+i}"),
                        a(f"v_and_b32 v{b['P']+2*i+1}, {sMask}, v{b['T']+i}")))
    each(lambda b: (a(f"v_max3_f32 v{b['T']}, v{b['P']}, v{b['P']+1}, v{b['P']+2}"),
                    a(f"v_min3_f32 v{b['T']+1}, v{b['P']}, v{b['P']+1}, v{b['P']+2}")))
    for i in range(3, 15, 2):
        each(lambda b: (a(f"v_max3_f32 v{b['T']}, v{b['T']}, v{b['P']+i}, v{b['P']+i+1}"),
                        a(f"v_min3_f32 v{b['T']+1}, v{b['T']+1}, v{b['P']+i}, v{b['P']+i+1}")))
    each(lambda b: (a(f"v_max_f32 v{b['T']}, v{b['T']}, v{b['P']+15}"),
                    a(f"v_min_f32 v{b['T']+1}, v{b['T']+1}, v{b['P']+15}")))
    each(lambda b: (a(f"v_mov_b32 v{b['T']+2}, v{b['T']}"),
                    a(f"v_mov_b32 v{b['T']+3}, v{b['T']+1}")))
    each(lambda b: (a(f"v_permlane32_swap_b32 v{b['T']}, v{b['T']+2}"),
                    a(f"v_permlane32_swap_b32 v{b['T']+1}, v{b['T']+3}")))
    each(lambda b: (a(f"v_max_f32 v{b['T']}, v{b['T']}, v{b['T']+2}"),
                    a(f"v_min_f32 v{b['T']+1}, v{b['T']+1}, v{b['T']+3}")))
    for i in range(16):
        each(lambda b: (a(f"v_sub_f32 v{b['E']+i}, v{b['T']+1}, v{b['P']+i}"),
                        a(f"v_sub_f32 v{b['P']+i}, v{b['P']+i}, v{b['T']}")))
    for i in range(16):
        each(lambda b: (a(f"v_mul_f32 v{b['E']+i}, {sL}, v{b['E']+i}"),
                        a(f"v_mul_f32 v{b['P']+i}, {sL}, v{b['P']+i}")))
    for i in range(16):
        each(lambda b: (a(f"v_exp_f32 v{b['P']+i}, v{b['P']+i}"),
                        a(f"v_exp_f32 v{b['E']+i}, v{b['E']+i}")))
    each(lambda b: (a(f"v_pk_add_f32 v[{b['T']}:{b['T']+1}], v[{b['P']}:{b['P']+1}], v[{b['P']+2}:{b['P']+3}]"),
                    a(f"v_pk_add_f32 v[{b['T']+2}:{b['T']+3}], v[{b['E']}:{b['E']+1}], v[{b['E']+2}:{b['E']+3}]")))
    for i in range(4, 16, 2):
        each(lambda b: (a(f"v_pk_add_f32 v[{b['T']}:{b['T']+1}], v[{b['T']}:{b['T']+1}], v[{b['P']+i}:{b['P']+i+1}]"),
                        a(f"v_pk_add_f32 v[{b['T']+2}:{b['T']+3}], v[{b['T']+2}:{b['T']+3}], v[{b['E']+i}:{b['E']+i+1}]")))
    each(lambda b: (a(f"v_add_f32 v{b['T']}, v{b['T']}, v{b['T']+1}"),
                    a(f"v_add_f32 v{b['T']+2}, v{b['T']+2}, v{b['T']+3}")))
    each(lambda b: (a(f"v_mov_b32 v{b['T']+1}, v{b['T']}"),
                    a(f"v_mov_b32 v{b['T']+3}, v{b['T']+2}")))
    each(lambda b: (a(f"v_permlane32_swap_b32 v{b['T']}, v{b['T']+1}"),
                    a(f"v_permlane32_swap_b32 v{b['T']+2}, v{b['T']+3}")))
    each(lambda b: (a(f"v_add_f32 v{b['T']}, v{b['T']}, v{b['T']+1}"),
                    a(f"v_add_f32 v{b['T']+2}, v{b['T']+2}, v{b['T']+3}")))
    each(lambda b: (a(f"v_rcp_f32 v{b['T']}, v{b['T']}"),
                    a(f"v_rcp_f32 v{b['T']+2}, v{b['T']+2}")))
    for i in range(0, 16, 2):
        each(lambda b: (a(f"v_pk_mul_f32 v[{b['P']+i}:{b['P']+i+1}], v[{b['P']+i}:{b['P']+i+1}], v[{b['T']}:{b['T']+1}] op_sel_hi:[1,0]"),
                        a(f"v_pk_mul_f32 v[{b['E']+i}:{b['E']+i+1}], v[{b['E']+i}:{b['E']+i+1}], v[{b['T']+2}:{b['T']+3}] op_sel_hi:[1,0]")))
    for i in range(8):
        each(lambda b: (a(f"v_cvt_pk_bf16_f32 v{b['O']+i}, v{b['P']+2*i}, v{b['P']+2*i+1}"),
                        a(f"v_cvt_pk_bf16_f32 v{b['O']+8+i}, v{b['E']+2*i}, v{b['E']+2*i+1}")))


class VmQ:
    def __init__(self):
        self.q = []

    def issue(self, tag, w=1):
        self.q.append((tag, w))

    def need(self, tags):
        last = -1
        for i, (t, w) in enumerate(self.q):
            if t in tags:
                last = i
        assert last >= 0, tags
        return min(63, sum(w for (t, w) in self.q[last + 1:]))


K1_QKV0, K1_G0, K1_U0 = 0, 6144, 6144 + 7168 + 128
K1_STAGE = K1_U0 + 7168
K1_NS = 4
K1_WPHI = K1_STAGE * K1_NS
K1_RED = K1_WPHI + 2048
K1_ZR = K1_RED + 4 * 8192
K1_LDS = K1_ZR + 4 * 512


def gen_k1(a, cfg):
    L = 'k1_gemm1_kernel'
    kernel_head(a, L)
    sA, sB0, sW, sP = 8, 12, 32, 36
    sOff, sStep, sDst = 40, 45, 50
    sAo, sCnt, sWave, sHead, sMt = 55, 56, 57, 58, 59
    sCs, sCd, sEx = 3, 4, 5
    vLane, vDma, vA, vGU, vQ = 1, 2, 7, 8, 10
    ACC_V = 32
    aRing, aB, aI, aOnes, aWp = 96, 160, 200, 208, 212

    def acc(rb, j):
        if j < 3:
            return ('a', (j * 2 + rb) * 16)
        return ('v', ACC_V + ((j - 3) * 2 + rb) * 16)

    def accs(rb, j):
        k, b = acc(rb, j)
        return vr(b, 16, k)

    a('s_cmp_ge_u32 s2, 256')
    a(f's_cbranch_scc1 {L}_end')
    stamp(a, cfg, 0)
    stamp(a, cfg, 1)
    stampv(a, cfg, 19, 0, 4)
    a(f's_load_dwordx4 s[60:63], s[0:1], {KA_WQKV}')
    a(f's_load_dwordx4 s[64:67], s[0:1], {KA_WG}')
    a(f's_load_dwordx2 s[68:69], s[0:1], {KA_WS}')
    a(f's_load_dwordx2 s[4:5], s[0:1], {KA_WD}')
    a(f's_load_dwordx2 s[6:7], s[0:1], {KA_WO}')
    a('v_lshrrev_b32 v12, 6, v0')
    a(f'v_and_b32 v{vLane}, 63, v0')
    a(f'v_readfirstlane_b32 s{sWave}, v12')
    a('s_and_b32 s70, s2, 7')
    a('s_lshl_b32 s70, s70, 2')
    a('s_bfe_u32 s71, s2, 0x20003')
    a(f's_add_u32 s{sHead}, s70, s71')
    a(f's_lshr_b32 s{sMt}, s2, 5')
    a(f'v_lshlrev_b32 v{vA}, 4, v{vLane}')
    a('s_waitcnt lgkmcnt(0)')
    stampv(a, cfg, 19, 1, 4)
    a(f's_lshl_b32 s70, s{sMt}, 2')
    a(f's_add_u32 s70, s70, s{sWave}')
    a('s_lshl_b32 s70, s70, 17')
    srd_off(a, sA, 's68', 's69', 's70', 131072)
    srd(a, sP, 's62', 's63', 65536)
    a(f's_and_b32 s70, s{sWave}, 1')
    a('s_lshl_b32 s70, s70, 10')
    a(f's_lshl_b32 s71, s{sHead}, 11')
    a('s_add_u32 s71, s71, s70')
    a(f's_add_u32 m0, s70, {K1_WPHI}')
    a(f'buffer_load_dwordx4 v{vA}, s[{sP}:{sP+3}], s71 offen lds')
    a(f's_mul_i32 s72, s{sWave}, 5')
    a(f's_lshl_b32 s80, s{sHead}, 6')
    a(f's_mul_i32 s81, s{sHead}, 224')
    a('s_mov_b32 s84, 4682')
    a(f's_mov_b32 s85, {K1_G0}')
    for t in range(5):
        d = sB0 + 4 * t
        a(f's_add_u32 s73, s72, {t}')
        a('s_cmp_ge_u32 s73, 13')
        a(f's_cselect_b32 s{d}, s66, s64')
        a(f's_cselect_b32 s{d+1}, s67, s65')
        a('s_cselect_b32 s74, 13, 6')
        a(f's_cselect_b32 s75, {K1_U0}, s85')
        a('s_cmp_lt_u32 s73, 6')
        a(f's_cselect_b32 s{d}, s60, s{d}')
        a(f's_cselect_b32 s{d+1}, s61, s{d+1}')
        a('s_cselect_b32 s74, 0, s74')
        a(f's_cselect_b32 s75, {K1_QKV0}, s75')
        a('s_cselect_b32 s76, 5462, s84')
        a('s_cselect_b32 s77, 12, 14')
        a('s_cselect_b32 s79, 1984, 0')
        a('s_cselect_b32 s82, s80, s81')
        a('s_lshl_b32 s78, s77, 9')
        a(f's_lshl_b32 s{d+2}, s78, 10')
        a(f's_and_b32 s{d+1}, s{d+1}, 0xffff')
        a(f's_mov_b32 s{d+3}, 0x20000')
        a('s_sub_u32 s74, s73, s74')
        a(f's_lshl_b32 s{sStep+t}, s78, 5')
        a(f's_mov_b32 s{sOff+t}, 0')
        a('s_lshl_b32 s83, s74, 10')
        a(f's_add_u32 s{sDst+t}, s83, s75')
        a('s_lshl_b32 s83, s74, 6')
        a(f'v_add_u32 v12, s83, v{vLane}')
        a('v_mul_u32_u24 v13, s76, v12')
        a('v_lshrrev_b32 v13, 16, v13')
        a('v_mul_u32_u24 v14, s77, v13')
        a('v_sub_u32 v14, v12, v14')
        a('v_mul_u32_u24 v13, s78, v13')
        a('v_lshl_add_u32 v13, v14, 4, v13')
        a('v_lshrrev_b32 v14, 2, v14')
        a('v_mul_u32_u24 v14, s79, v14')
        a(f'v_add3_u32 v{vDma+t}, v13, v14, s82')
    a(f's_mov_b32 s{sAo}, 0')

    vm = VmQ()
    inloop = [False]

    def dma(t, chunk):
        if inloop[0] and cfg.get('k1_nodma'):
            vm.issue(('B', chunk))
            return
        slot = chunk % K1_NS
        a(f's_add_u32 m0, s{sDst+t}, {slot*K1_STAGE}')
        d = sB0 + 4 * t
        a(f'buffer_load_dwordx4 v{vDma+t}, s[{d}:{d+3}], s{sOff+t} offen lds')
        a(f's_add_u32 s{sOff+t}, s{sOff+t}, s{sStep+t}')
        vm.issue(('B', chunk))

    def aload(step, rb):
        if inloop[0] and cfg.get('k1_noa'):
            vm.issue(('A', step))
            return
        e = step % 8
        off = (step & 1) * 2048 + rb * 1024
        a(f'buffer_load_dwordx4 {ar(aRing+e*8+rb*4, 4)}, v{vA}, s[{sA}:{sA+3}], s{sAo} offen offset:{off}')
        vm.issue(('A', step))
        if (step & 1) and rb == 1:
            a(f's_add_u32 s{sAo}, s{sAo}, 4096')

    def bread(step, j, half):
        if inloop[0] and cfg.get('k1_nods'):
            return
        chunk = step >> 1
        slot = chunk % K1_NS
        t = step & 1
        hi_set = slot >> 1
        sb = (slot & 1) * K1_STAGE
        if j < 3:
            off = sb + K1_QKV0 + (t * 16 + 4 * half) * 192 + 64 * j
            addr = vQ + hi_set
        else:
            off = sb + K1_G0 + (t * 16 + 4 * half) * 224 + 32 * (j - 3)
            addr = vGU + hi_set
        a(f'ds_read_b64_tr_b16 {ar(aB+4*j+2*half, 2)}, v{addr} offset:{off}')

    stampv(a, cfg, 19, 2, 4)
    for s in range(-7, -1):
        if s & 1:
            for t in range(5):
                dma(t, (s + 7) // 2)
        else:
            for st in (s + 6, s + 7):
                for rb in range(2):
                    aload(st, rb)
    stampv(a, cfg, 19, 3, 4)
    srd(a, sW, 's68', 's69', WS_USED)
    srd(a, sP, 's6', 's7', 1024 * 2048)
    a('s_lshl_b32 s70, s2, 2')
    a(f's_add_u32 s70, s70, s{sWave}')
    a(f's_lshl_b32 s{sCs}, s70, 10')
    a(f's_add_u32 s71, s{sCs}, {1024*1024}')
    a(f'buffer_load_dwordx4 v[20:23], v{vA}, s[{sP}:{sP+3}], s{sCs} offen')
    a(f'buffer_load_dwordx4 v[24:27], v{vA}, s[{sP}:{sP+3}], s71 offen')
    srd(a, sP, 's4', 's5', 3584 * 2048)
    a(f's_mov_b32 s{sCd}, {WDT_OFF}')
    a(f's_lshl_b32 s{sEx}, s70, 13')
    a(f's_add_u32 s{sEx}, s{sEx}, {EX_OFF}')
    a('s_lshr_b32 s71, s70, 1')
    a('s_and_b32 s72, s70, 1')
    a('s_and_b32 s73, s71, 1')
    a('s_lshl_b32 s73, s73, 1')
    a('s_and_b32 s74, s71, 2')
    a('s_lshl_b32 s75, s74, 2')
    a('s_or_b32 s73, s73, s75')
    a(f'v_and_b32 v12, 15, v{vLane}')
    a('v_xor_b32 v12, s73, v12')
    a(f'v_lshrrev_b32 v13, 4, v{vLane}')
    a('s_lshl_b32 s75, s72, 2')
    a('v_add_u32 v13, s75, v13')
    a(f'v_mul_u32_u24 v13, {3584*256}, v13')
    a('v_lshl_add_u32 v13, v12, 4, v13')
    a('s_lshl_b32 s75, s71, 8')
    a('v_add_u32 v18, s75, v13')
    a(f'v_and_b32 v12, 7, v{vLane}')
    a('v_xor_b32 v12, s74, v12')
    a(f'v_lshrrev_b32 v13, 3, v{vLane}')
    a('s_lshl_b32 s75, s72, 3')
    a('v_add_u32 v13, s75, v13')
    a('v_lshlrev_b32 v13, 17, v13')
    a('v_lshl_add_u32 v13, v12, 4, v13')
    a('s_lshl_b32 s75, s71, 7')
    a('v_add_u32 v17, s75, v13')
    for i in range(4):
        a(f'v_mov_b32 v{28+i}, -1')
    a(f'v_lshrrev_b32 v12, 5, v{vLane}')
    a(f'v_bfe_u32 v13, v{vLane}, 2, 2')
    a('v_lshl_add_u32 v12, v12, 3, v13')
    a(f'v_bfe_u32 v13, v{vLane}, 4, 1')
    a(f'v_and_b32 v14, 3, v{vLane}')
    a('v_mul_u32_u24 v15, 224, v12')
    a(f'v_mul_u32_u24 v16, {K1_U0-K1_G0}, v13')
    a('v_lshl_add_u32 v15, v14, 3, v15')
    a(f'v_add_u32 v{vGU}, v15, v16')
    a(f'v_add_u32 v{vGU+1}, {2*K1_STAGE}, v{vGU}')
    a('v_mul_u32_u24 v15, 192, v12')
    a('v_lshl_add_u32 v15, v13, 5, v15')
    a(f'v_lshl_add_u32 v{vQ}, v14, 3, v15')
    a(f'v_add_u32 v{vQ+1}, {2*K1_STAGE}, v{vQ}')
    a(f'v_and_b32 v12, 31, v{vLane}')
    a(f'v_lshrrev_b32 v13, 5, v{vLane}')
    a('v_lshlrev_b32 v13, 2, v13')
    a('v_sub_u32 v12, v12, v13')
    a('v_mov_b32 v14, 0x3f80')
    a('v_mov_b32 v15, 0x3f800000')
    for t in range(2):
        for rho in range(4):
            c = 16 * t + 8 * (rho >> 1) + 2 * (rho & 1)
            a(f'v_cmp_eq_u32 vcc, {c}, v12')
            a('v_cndmask_b32 v16, 0, v14, vcc')
            a(f'v_cmp_eq_u32 vcc, {c+1}, v12')
            a('v_cndmask_b32 v16, v16, v15, vcc')
            a(f'v_accvgpr_write_b32 a{aI+4*t+rho}, v16')
    a('v_mov_b32 v16, 0x3f803f80')
    for i in range(4):
        a(f'v_accvgpr_write_b32 a{aOnes+i}, v16')
    stampv(a, cfg, 19, 4, 4)
    for i in range(96):
        a(f'v_accvgpr_write_b32 a{i}, 0')
    for i in range(ACC_V, 256):
        a(f'v_mov_b32 v{i}, 0')
    stampv(a, cfg, 19, 5, 4)
    a(f's_waitcnt vmcnt({vm.need([("B", 0)])})')
    a('s_barrier')
    stampv(a, cfg, 19, 6, 4)
    for j in range(10):
        bread(0, j, 0)
        bread(0, j, 1)
    for t in range(5):
        dma(t, 3)
    a(f's_mov_b32 s{sCnt}, 0')
    stamp(a, cfg, 2)
    if cfg.get('prof') == 2:
        a('s_memtime s[98:99]')
        a('s_memrealtime s[100:101]')
        a('s_waitcnt lgkmcnt(0)')
        a('v_writelane_b32 v19, s98, 63')
        a('v_writelane_b32 v16, s100, 63')
    stampv(a, cfg, 19, 7, 4)
    inloop[0] = True

    waits = {}

    def step(s, emit=True):
        odd = s & 1
        e = s % 8
        for m in range(20):
            j, rb = m >> 1, m & 1
            if m == 0 and not odd:
                n = vm.need([('A', s), ('A', s + 1)])
                waits[(s % 8, 'A')] = waits.get((s % 8, 'A'), []) + [n]
                a(f's_waitcnt vmcnt({n}) lgkmcnt(10)')
            if m == 10 and not odd:
                a('s_waitcnt lgkmcnt(6)')
            xf = ar(aRing + e * 8 + rb * 4, 4)
            wf = ar(aB + 4 * j, 4)
            if j == 2:
                a(f'{MFMA} {accs(rb, j)}, {xf}, {wf}, {accs(rb, j)}')
            else:
                a(f'{MFMA} {accs(rb, j)}, {wf}, {xf}, {accs(rb, j)}')
            if odd:
                p = (s + 1) // 2
                if m == 3:
                    n = vm.need([('B', p)])
                    waits[(s % 8, 'B')] = waits.get((s % 8, 'B'), []) + [n]
                    a(f's_waitcnt vmcnt({n}) lgkmcnt(0)')
                    if not cfg.get('k1_nobar'):
                        a('s_barrier')
                    bread(s + 1, 0, 0)
                    bread(s + 1, 0, 1)
                elif m == 4:
                    bread(s + 1, 1, 0)
                    bread(s + 1, 1, 1)
                elif m > 4 and rb == 1:
                    bread(s + 1, j, 0)
                    bread(s + 1, j, 1)
                elif m in (6, 8, 10, 12, 14):
                    dma((m - 6) // 2, p + 3)
            else:
                if rb == 1:
                    bread(s + 1, j, 0)
                    bread(s + 1, j, 1)
                elif m in (2, 6, 12, 16):
                    k = (2, 6, 12, 16).index(m)
                    aload(s + 6 + (k >> 1), k & 1)
                elif m == 8 and e == 0 and not cfg.get('k1_nocopy'):
                    a(f'buffer_load_dwordx4 v[12:15], v{vA}, s[{sP}:{sP+3}], s{sCs} offen')
                    a(f's_add_u32 s{sCs}, s{sCs}, {1024*1024}')
                    vm.issue(('C', s))
                elif m == 8 and e == 2 and not cfg.get('k1_nosent'):
                    a(f'buffer_store_dwordx4 v[28:31], v{vA}, s[{sW}:{sW+3}], s{sEx} offen')
                    a(f's_add_u32 s{sEx}, s{sEx}, 1024')
                    vm.issue(('S', s))
                elif m == 8 and e == 6 and not cfg.get('k1_nocopy'):
                    a(f's_cmp_eq_u32 s{sCnt}, 7')
                    a(f's_cselect_b32 s{sCd}, {WS_USED}, s{sCd}')
                    n = vm.need([('C', s - 6)])
                    waits[(s % 8, 'C')] = waits.get((s % 8, 'C'), []) + [n]
                    a(f's_waitcnt vmcnt({n})')
                    a(f'buffer_store_dwordx4 v[12:15], v18, s[{sW}:{sW+3}], s{sCd} offen')
                    a(f's_add_u32 s{sCd}, s{sCd}, {512*256}')
                    vm.issue(('S', s))

    a.raw('.p2align 6')
    a.label(f'{L}_loop')
    for s in range(8):
        step(s)
    if cfg.get('prof') == 2:
        a('s_memtime s[98:99]')
        a('s_memrealtime s[100:101]')
        a('s_waitcnt lgkmcnt(0)')
        a(f's_mov_b32 m0, s{sCnt}')
        a('s_nop 4')
        a('v_writelane_b32 v19, s98, m0')
        a('v_writelane_b32 v16, s100, m0')
    a(f's_add_u32 s{sCnt}, s{sCnt}, 1')
    a(f's_cmp_lt_u32 s{sCnt}, 8')
    a(f's_cbranch_scc1 {L}_loop')
    saved_lines, saved_hist = a.lines, a.hist
    a.lines = []
    for s in range(8, 16):
        step(s)
    a.lines, a.hist = saved_lines, saved_hist
    for k, v in waits.items():
        assert v[0] <= v[1], (k, v)

    inloop[0] = False
    stampv(a, cfg, 19, 8, 4)
    stamp(a, cfg, 3)
    a.nop(16)
    a(f's_mov_b32 s70, {WOT_OFF}')
    a(f's_mov_b32 s71, {WOT_OFF + 512*128}')
    a(f'buffer_store_dwordx4 v[20:23], v17, s[{sW}:{sW+3}], s70 offen')
    a(f'buffer_store_dwordx4 v[24:27], v17, s[{sW}:{sW+3}], s71 offen')
    a(f'v_lshrrev_b32 v12, 5, v{vLane}')
    a(f'v_bfe_u32 v13, v{vLane}, 2, 2')
    a('v_lshl_add_u32 v12, v12, 2, v13')
    a('v_lshlrev_b32 v12, 6, v12')
    a(f'v_bfe_u32 v13, v{vLane}, 4, 1')
    a('v_lshl_add_u32 v12, v13, 5, v12')
    a(f'v_and_b32 v13, 3, v{vLane}')
    a('v_lshl_add_u32 v12, v13, 3, v12')
    a(f'v_add_u32 v12, {K1_WPHI}, v12')
    for t in range(2):
        for h in range(2):
            a(f'ds_read_b64_tr_b16 {ar(aWp+4*t+2*h, 2)}, v12 offset:{(16*t+8*h)*64}')
    a(f's_lshl_b32 s70, s{sMt}, 3')
    a(f's_lshl_b32 s71, s{sWave}, 1')
    a('s_add_u32 s70, s70, s71')
    a(f's_mul_i32 s71, s70, {HO_RB}')
    a(f's_mul_i32 s72, s{sHead}, {7*1024}')
    a('s_add_u32 s71, s71, s72')
    a(f's_add_u32 s71, s71, {HO_OFF}')
    a('s_add_u32 s72, s71, 4096')
    a(f's_add_u32 s73, s71, {HO_RB}')
    a(f's_add_u32 s74, s72, {HO_RB}')
    for j in range(3, 10):
        for rb in range(2):
            G = acc(rb, j)[1]
            for i in range(0, 8, 2):
                a(f'v_pk_mul_f32 v[{G+i}:{G+i+1}], v[{G+i}:{G+i+1}], v[{G+8+i}:{G+9+i}]')
            for i in range(4):
                a(f'v_cvt_pk_bf16_f32 v{G+i}, v{G+2*i}, v{G+2*i+1}')
            jj = j - 3
            so = 71 + 2 * rb + (jj >> 2)
            a(f'buffer_store_dwordx4 v[{G}:{G+3}], v{vA}, s[{sW}:{sW+3}], s{so} offen offset:{(jj&3)*1024}')
    stampv(a, cfg, 19, 9, 4)
    a('s_lshl_b32 s71, s70, 16')
    a(f's_lshl_b32 s72, s{sHead}, 11')
    a('s_add_u32 s71, s71, s72')
    a(f's_add_u32 s71, s71, {Q_OFF}')
    a('s_add_u32 s72, s71, 65536')
    a(f's_mov_b32 s75, {LOG2E}')
    a('s_mov_b32 s76, 0xffff0000')

    def base(rb):
        return 32 + rb * 96
    KVp, KVm, Zp, Zm = 224, 240, 0, 16

    def rd_cvt(src_a, tmp, dst):
        for i in range(16):
            a(f'v_accvgpr_read_b32 v{tmp+i}, a{src_a+i}')
        for i in range(8):
            a(f'v_cvt_pk_bf16_f32 v{dst+i}, v{tmp+2*i}, v{tmp+2*i+1}')

    for rb in range(2):
        b = base(rb)
        rd_cvt(acc(rb, 1)[1], b + 16, b + 32)
    a('s_waitcnt lgkmcnt(0)')
    for rb in range(2):
        b = base(rb)
        a(f'{MFMA} {vr(b,16)}, {ar(aWp,4)}, {vr(b+32,4)}, 0')
    for rb in range(2):
        b = base(rb)
        a(f'{MFMA} {vr(b,16)}, {ar(aWp+4,4)}, {vr(b+36,4)}, {vr(b,16)}')
    for rb in range(2):
        b = base(rb)
        rd_cvt(acc(rb, 0)[1], b + 16, b + 40)
        a(f'buffer_store_dwordx4 {vr(b+40,4)}, v{vA}, s[{sW}:{sW+3}], s{71+rb} offen')
        a(f'buffer_store_dwordx4 {vr(b+44,4)}, v{vA}, s[{sW}:{sW+3}], s{71+rb} offen offset:1024')
    for rb in range(2):
        b = base(rb)
        rd_cvt(acc(rb, 2)[1], b + 16, b + 80)
    stampv(a, cfg, 19, 10, 4)
    softmax_pm(a, [dict(P=base(rb), E=base(rb) + 16, T=base(rb) + 32, O=base(rb) + 48) for rb in range(2)], 's75', 's76')
    stampv(a, cfg, 19, 11, 4)
    for t in range(2):
        for rb in range(2):
            b = base(rb)
            for pm in range(2):
                d = vr(b + 16 * pm, 16)
                a(f'{MFMA} {d}, {vr(b+48+8*pm+4*t,4)}, {ar(aI+4*t,4)}, {d if t else 0}')
    for rb in range(2):
        b = base(rb)
        for pm in range(2):
            for i in range(8):
                a(f'v_cvt_pk_bf16_f32 v{b+64+8*pm+i}, v{b+16*pm+2*i}, v{b+16*pm+2*i+1}')
    first = True
    for rb in range(2):
        b = base(rb)
        for t in range(2):
            for pm in range(2):
                d = vr(KVm if pm else KVp, 16)
                a(f'{MFMA} {d}, {vr(b+64+8*pm+4*t,4)}, {vr(b+80+4*t,4)}, {0 if first else d}')
            for pm in range(2):
                d = ar(Zm if pm else Zp, 16)
                a(f'{MFMA} {d}, {ar(aOnes,4)}, {vr(b+64+8*pm+4*t,4)}, {0 if first else d}')
            first = False
    stampv(a, cfg, 19, 12, 4)
    a(f's_lshl_b32 s70, s{sWave}, 13')
    a(f's_add_u32 s70, s70, {K1_RED}')
    a(f'v_add_u32 v12, s70, v{vA}')
    a(f's_lshl_b32 s70, s{sWave}, 9')
    a(f's_add_u32 s70, s70, {K1_ZR}')
    a(f'v_lshlrev_b32 v13, 2, v{vLane}')
    a('v_add_u32 v14, s70, v13')
    for q in range(8):
        a(f'ds_write_b128 v12, {vr(KVp+4*q,4)} offset:{q*1024}')
    a(f'ds_write_b32 v14, a{Zp}')
    a(f'ds_write_b32 v14, a{Zm} offset:256')
    a(f's_lshl_b32 s70, s{sWave}, 11')
    a(f's_add_u32 s70, s70, {K1_RED}')
    a(f'v_add_u32 v12, s70, v{vA}')
    a(f'v_lshrrev_b32 v14, 5, v{vLane}')
    a('v_lshlrev_b32 v14, 8, v14')
    a(f'v_and_b32 v15, 31, v{vLane}')
    a('v_lshl_add_u32 v14, v15, 2, v14')
    a(f'v_add_u32 v14, {K1_ZR}, v14')
    a(f's_lshl_b32 s70, s{sHead}, 3')
    a(f's_add_u32 s70, s70, s{sMt}')
    a('s_lshl_b32 s71, s70, 13')
    a(f's_lshl_b32 s72, s{sWave}, 11')
    a('s_add_u32 s71, s71, s72')
    a(f's_add_u32 s71, s71, {KVP_OFF}')
    a('s_lshl_b32 s72, s70, 8')
    a(f's_add_u32 s72, s72, {ZP_OFF}')
    a('s_waitcnt lgkmcnt(0)')
    a('s_barrier')
    for w in range(4):
        for q in range(2):
            a(f'ds_read_b128 {vr(32+w*8+q*4,4)}, v12 offset:{w*8192+q*1024}')
    for w in range(4):
        a(f'ds_read_b32 v{64+w}, v14 offset:{w*512}')
    a('s_waitcnt lgkmcnt(0)')
    for i in range(0, 8, 2):
        a(f'v_pk_add_f32 v[{32+i}:{33+i}], v[{32+i}:{33+i}], v[{40+i}:{41+i}]')
        a(f'v_pk_add_f32 v[{48+i}:{49+i}], v[{48+i}:{49+i}], v[{56+i}:{57+i}]')
    for i in range(0, 8, 2):
        a(f'v_pk_add_f32 v[{32+i}:{33+i}], v[{32+i}:{33+i}], v[{48+i}:{49+i}]')
    a('v_add_f32 v64, v64, v65')
    a('v_add_f32 v66, v66, v67')
    a('v_add_f32 v64, v64, v66')
    a(f'buffer_store_dwordx4 v[32:35], v{vA}, s[{sW}:{sW+3}], s71 offen')
    a(f'buffer_store_dwordx4 v[36:39], v{vA}, s[{sW}:{sW+3}], s71 offen offset:1024')
    stampv(a, cfg, 19, 13, 4)
    stampv_store(a, cfg, 19, 16, 4)
    a(f's_cmp_lg_u32 s{sWave}, 0')
    a(f's_cbranch_scc1 {L}_end')
    a(f'buffer_store_dword v64, v13, s[{sW}:{sW+3}], s72 offen')
    if cfg.get('prof'):
        a('s_waitcnt vmcnt(0)')
    stamp(a, cfg, 4)
    stamp(a, cfg, 5)
    stamp_store(a, cfg, 1)
    if cfg.get('prof') == 2:
        a(f's_load_dwordx2 s[4:5], s[0:1], {KA_WS}')
        a('s_waitcnt lgkmcnt(0)')
        a(f's_lshl_b32 s3, s2, 9')
        a(f's_add_u32 s3, s3, {PROF_OFF + 0x100000}')
        a('s_add_u32 s4, s4, s3')
        a('s_addc_u32 s5, s5, 0')
        a('s_and_b32 s5, s5, 0xffff')
        a('s_mov_b32 s6, 512')
        a('s_mov_b32 s7, 0x20000')
        a('buffer_store_dword v19, v13, s[4:7], 0 offen')
        a('buffer_store_dword v16, v13, s[4:7], 0 offen offset:256')
    a.label(f'{L}_end')
    a('s_endpgm')
    return L, kernel_desc(L, 512, 102, 256), (256, 256, K1_LDS)


def ophase(a, sWs, sWphiLo, sHead, sMt, sWave, vLane, vL16, lds0, sW, sP, sT, vb, sc=''):
    L_KV, L_WP, L_Z = lds0, lds0 + 4096, lds0 + 6144
    srd(a, sP, f's{sWphiLo}', f's{sWphiLo+1}', 65536)
    a(f's_and_b32 s{sT}, s{sWave}, 1')
    a(f's_lshl_b32 s{sT}, s{sT}, 10')
    a(f's_lshl_b32 s{sT+1}, s{sHead}, 11')
    a(f's_add_u32 s{sT+1}, s{sT+1}, s{sT}')
    a(f's_add_u32 m0, s{sT}, {L_WP}')
    a(f'buffer_load_dwordx4 v{vL16}, s[{sP}:{sP+3}], s{sT+1} offen lds')
    a(f's_lshl_b32 s{sT}, s{sHead}, 16')
    a(f's_lshl_b32 s{sT+1}, s{sWave}, 11')
    a(f's_add_u32 s{sT}, s{sT}, s{sT+1}')
    a(f's_add_u32 s{sT}, s{sT}, {KVP_OFF}')
    KL = vb
    for m in range(8):
        for q in range(2):
            a(f'buffer_load_dwordx4 {vr(KL+m*8+q*4,4)}, v{vL16}, s[{sW}:{sW+3}], s{sT} offen offset:{q*1024}')
        if m < 7:
            a(f's_add_u32 s{sT}, s{sT}, 8192')
    ZL = vb + 64
    vT = vb + 72
    a(f's_lshl_b32 s{sT}, s{sHead}, 11')
    a(f's_add_u32 s{sT}, s{sT}, {ZP_OFF}')
    a(f'v_lshlrev_b32 v{vT}, 2, v{vLane}')
    for m in range(8):
        a(f'buffer_load_dword v{ZL+m}, v{vT}, s[{sW}:{sW+3}], s{sT} offen offset:{m*256}')
    QF = vb + 80
    a(f's_lshl_b32 s{sT+2}, s{sMt}, 3')
    a(f's_lshl_b32 s{sT+1}, s{sWave}, 1')
    a(f's_add_u32 s{sT+2}, s{sT+2}, s{sT+1}')
    a(f's_lshl_b32 s{sT}, s{sT+2}, 16')
    a(f's_lshl_b32 s{sT+1}, s{sHead}, 11')
    a(f's_add_u32 s{sT}, s{sT}, s{sT+1}')
    a(f's_add_u32 s{sT}, s{sT}, {Q_OFF}')
    a(f's_add_u32 s{sT+3}, s{sT}, 65536')
    for rb in range(2):
        for t in range(2):
            a(f'buffer_load_dwordx4 {vr(QF+rb*8+t*4,4)}, v{vL16}, s[{sW}:{sW+3}], s{sT+3*rb} offen offset:{t*1024}')
    a(f's_mul_i32 s{sT+4}, s{sT+2}, {HO_RB}')
    a(f's_add_u32 s{sT+4}, s{sT+4}, s{sT+1}')
    a(f's_add_u32 s{sT+4}, s{sT+4}, {HO_OFF + 224*1024}')
    a(f's_add_u32 s{sT+5}, s{sT+4}, {HO_RB}')
    a(f's_mov_b32 s{sT+6}, {LOG2E}')
    a(f's_mov_b32 s{sT+7}, 0xffff0000')
    a(f's_lshl_b32 s{sT}, s{sWave}, 10')
    a(f's_add_u32 s{sT}, s{sT}, {L_KV}')
    a(f'v_add_u32 v{vT+1}, s{sT}, v{vL16}')
    a(f'v_lshlrev_b32 v{vT+2}, 1, v{vLane}')
    a(f'v_lshrrev_b32 v{vT+3}, 5, v{vLane}')
    a(f'v_lshlrev_b32 v{vT+4}, 3, v{vT+3}')
    a(f'v_bfe_u32 v{vT+5}, v{vLane}, 2, 2')
    a(f'v_lshl_add_u32 v{vT+3}, v{vT+3}, 2, v{vT+5}')
    a(f'v_lshlrev_b32 v{vT+3}, 6, v{vT+3}')
    a(f'v_bfe_u32 v{vT+5}, v{vLane}, 4, 1')
    a(f'v_lshl_add_u32 v{vT+3}, v{vT+5}, 5, v{vT+3}')
    a(f'v_and_b32 v{vT+5}, 3, v{vLane}')
    a(f'v_lshl_add_u32 v{vT+3}, v{vT+5}, 3, v{vT+3}')
    a('s_waitcnt vmcnt(12)')
    for stride in (32, 16, 8):
        for o in range(0, stride, 2):
            a(f'v_pk_add_f32 v[{KL+o}:{KL+o+1}], v[{KL+o}:{KL+o+1}], v[{KL+stride+o}:{KL+stride+o+1}]')
    for i in range(4):
        a(f'v_cvt_pk_bf16_f32 v{KL+i}, v{KL+2*i}, v{KL+2*i+1}')
    a(f'ds_write_b128 v{vT+1}, {vr(KL,4)}')
    a('s_waitcnt vmcnt(4)')
    for stride in (4, 2):
        for o in range(0, stride, 2):
            a(f'v_pk_add_f32 v[{ZL+o}:{ZL+o+1}], v[{ZL+o}:{ZL+o+1}], v[{ZL+stride+o}:{ZL+stride+o+1}]')
    a(f'v_add_f32 v{ZL}, v{ZL}, v{ZL+1}')
    a(f'v_cvt_pk_bf16_f32 v{ZL}, v{ZL}, v{ZL}')
    a(f'ds_write_b16 v{vT+2}, v{ZL} offset:{L_Z}')
    a('s_waitcnt lgkmcnt(0)')
    a('s_barrier')
    WP = vb
    KVF = vb + 8
    ZF = vb + 24
    for t in range(2):
        for h in range(2):
            a(f'ds_read_b64_tr_b16 {vr(WP+4*t+2*h,2)}, v{vT+3} offset:{L_WP+(16*t+8*h)*64}')
    for f in range(4):
        a(f'ds_read_b128 {vr(KVF+4*f,4)}, v{vL16} offset:{L_KV+f*1024}')
    for f in range(4):
        for h in range(2):
            a(f'ds_read_b64 {vr(ZF+4*f+2*h,2)}, v{vT+4} offset:{L_Z+f*32+h*16}')
    B0 = vb + 96

    def base(rb):
        return B0 + rb * 56
    a('s_waitcnt vmcnt(0) lgkmcnt(12)')
    for t in range(2):
        for rb in range(2):
            d = vr(base(rb), 16)
            a(f'{MFMA} {d}, {vr(WP+4*t,4)}, {vr(QF+rb*8+t*4,4)}, {d if t else 0}')
    softmax_pm(a, [dict(P=base(rb), E=base(rb) + 16, T=base(rb) + 32, O=base(rb) + 40) for rb in range(2)],
               f's{sT+6}', f's{sT+7}')
    a('s_waitcnt lgkmcnt(0)')
    for f in range(4):
        for rb in range(2):
            b = base(rb)
            a(f'{MFMA} {vr(b+16,16)}, {vr(ZF+4*f,4)}, {vr(b+40+4*f,4)}, {vr(b+16,16) if f else 0}')
            a(f'{MFMA} {vr(b,16)}, {vr(KVF+4*f,4)}, {vr(b+40+4*f,4)}, {vr(b,16) if f else 0}')
    for rb in range(2):
        b = base(rb)
        D = b + 16
        a(f'v_cvt_pk_bf16_f32 v{D}, v{D}, v{D}')
        a(f'v_lshlrev_b32 v{D}, 16, v{D}')
        a(f'v_add_f32 v{D}, 0x358637bd, v{D}')
        a(f'v_cvt_pk_bf16_f32 v{D}, v{D}, v{D}')
        a(f'v_lshlrev_b32 v{D}, 16, v{D}')
        a(f'v_rcp_f32 v{D}, v{D}')
    for rb in range(2):
        b = base(rb)
        D = b + 16
        for i in range(8):
            a(f'v_cvt_pk_bf16_f32 v{b+32+i}, v{b+2*i}, v{b+2*i+1}')
        for i in range(8):
            a(f'v_lshlrev_b32 v{b+2*i}, 16, v{b+32+i}')
            a(f'v_and_b32 v{b+2*i+1}, s{sT+7}, v{b+32+i}')
        for i in range(0, 16, 2):
            a(f'v_pk_mul_f32 v[{b+i}:{b+i+1}], v[{b+i}:{b+i+1}], v[{D}:{D+1}] op_sel_hi:[1,0]')
        for i in range(8):
            a(f'v_cvt_pk_bf16_f32 v{b+32+i}, v{b+2*i}, v{b+2*i+1}')
        a(f'buffer_store_dwordx4 {vr(b+32,4)}, v{vL16}, s[{sW}:{sW+3}], s{sT+4+rb} offen{sc}')
        a(f'buffer_store_dwordx4 {vr(b+36,4)}, v{vL16}, s[{sW}:{sW+3}], s{sT+4+rb} offen offset:1024{sc}')


def gen_k2(a):
    L = 'k2_ophase_kernel'
    kernel_head(a, L)
    a('s_cmp_ge_u32 s2, 256')
    a(f's_cbranch_scc1 {L}_end')
    a(f's_load_dwordx2 s[4:5], s[0:1], {KA_WPHI}')
    a(f's_load_dwordx2 s[6:7], s[0:1], {KA_WS}')
    a('v_lshrrev_b32 v3, 6, v0')
    a('v_and_b32 v1, 63, v0')
    a('v_readfirstlane_b32 s20, v3')
    a('v_lshlrev_b32 v2, 4, v1')
    a('s_and_b32 s21, s2, 31')
    a('s_lshr_b32 s22, s2, 5')
    a('s_waitcnt lgkmcnt(0)')
    srd(a, 8, 's6', 's7', WS_USED)
    ophase(a, 6, 4, 21, 22, 20, 1, 2, 0, 8, 12, 24, 8)
    a.label(f'{L}_end')
    a('s_endpgm')
    return L, kernel_desc(L, 216, 40, 216), (256, 256, 8192)


K3_NS = 8
K3_STAGE = 8192
K3_LDS = K3_NS * K3_STAGE


def gen_k3(a, cfg):
    L = 'k3_gemm2_kernel'
    kernel_head(a, L)
    sA, sB, sX, sO = 8, 12, 16, 20
    sWave, sMt, sNt, sAo, sBo, sStage, sCnt, sDst = 24, 25, 26, 27, 28, 29, 30, 31
    vLane, vL16, vDma, vRd, vXo = 1, 2, 3, 5, 7
    ACC, GS, XR, BF, AR = 16, 48, 64, 80, 112
    a('s_cmp_ge_u32 s2, 256')
    a(f's_cbranch_scc1 {L}_end')
    stamp(a, cfg, 0)
    stamp(a, cfg, 1)
    a(f's_load_dwordx2 s[40:41], s[0:1], {KA_X}')
    a(f's_load_dwordx2 s[42:43], s[0:1], {KA_WO}')
    a(f's_load_dwordx4 s[44:47], s[0:1], {KA_WD}')
    a(f's_load_dwordx2 s[48:49], s[0:1], {KA_WS}')
    a('v_lshrrev_b32 v8, 6, v0')
    a(f'v_and_b32 v{vLane}, 63, v0')
    a(f'v_readfirstlane_b32 s{sWave}, v8')
    a(f'v_lshlrev_b32 v{vL16}, 4, v{vLane}')
    mp = cfg.get('k3_map', 0)
    if mp == 0:
        a('s_bfe_u32 s50, s2, 0x20001')
        a('s_lshl_b32 s50, s50, 2')
        a('s_bfe_u32 s51, s2, 0x20003')
        a(f's_add_u32 s{sMt}, s50, s51')
        a('s_and_b32 s50, s2, 1')
        a('s_lshl_b32 s50, s50, 3')
        a('s_lshr_b32 s51, s2, 5')
        a(f's_add_u32 s{sNt}, s50, s51')
    elif mp == 1:
        a('s_and_b32 s50, s2, 7')
        a('s_lshl_b32 s50, s50, 1')
        a('s_bfe_u32 s51, s2, 0x10003')
        a(f's_add_u32 s{sMt}, s50, s51')
        a(f's_lshr_b32 s{sNt}, s2, 4')
    elif mp == 2:
        a('s_bfe_u32 s50, s2, 0x20001')
        a('s_lshl_b32 s50, s50, 2')
        a('s_bfe_u32 s51, s2, 0x20003')
        a(f's_add_u32 s{sMt}, s50, s51')
        a('s_and_b32 s50, s2, 1')
        a('s_lshr_b32 s51, s2, 5')
        a('s_lshl_b32 s51, s51, 1')
        a(f's_add_u32 s{sNt}, s50, s51')
    elif mp == 3:
        a('s_bfe_u32 s50, s2, 0x10002')
        a('s_lshl_b32 s50, s50, 3')
        a('s_bfe_u32 s51, s2, 0x30003')
        a(f's_add_u32 s{sMt}, s50, s51')
        a('s_and_b32 s50, s2, 3')
        a('s_lshl_b32 s50, s50, 2')
        a('s_lshr_b32 s51, s2, 6')
        a(f's_add_u32 s{sNt}, s50, s51')
    a('s_waitcnt lgkmcnt(0)')
    PFD = cfg.get('k3_pf', 0)
    if PFD:
        a(f's_cmp_lg_u32 s{sWave}, 4')
        a(f's_cbranch_scc1 {L}_main')
        a(f's_and_b32 s50, s{sNt}, 3')
        a(f's_lshl_b32 s51, s{sMt}, 2')
        a('s_add_u32 s50, s50, s51')
        a(f's_mul_i32 s51, s50, {HO_RB}')
        a(f's_add_u32 s51, s51, {HO_OFF}')
        srd_off(a, sA, 's48', 's49', 's51', HO_RB)
        srd(a, sB, 's44', 's45', 3584 * 2048)
        a('s_and_b32 s43, s43, 0xffff')
        a(f's_bfe_u32 s{sAo}, s{sNt}, 0x10002')
        a(f's_lshl_b32 s{sAo}, s{sAo}, 13')
        a(f's_and_b32 s{sBo}, s{sMt}, 3')
        a(f's_lshl_b32 s{sBo}, s{sBo}, 17')
        a(f's_mov_b32 s52, s{sBo}')
        a(f'v_lshlrev_b32 v3, 7, v{vLane}')
        a(f'v_lshlrev_b32 v4, 11, v{vLane}')
        a(f's_lshl_b32 s51, s{sNt}, 7')
        a('v_add_u32 v4, s51, v4')
        a(f's_mov_b32 s{sCnt}, 0')
        a.label(f'{L}_pf')
        a(f'buffer_load_dword v5, v4, s[{sB}:{sB+3}], s{sBo} offen')
        a(f'buffer_load_dword v5, v3, s[{sA}:{sA+3}], s{sAo} offen')
        a(f's_add_u32 s{sAo}, s{sAo}, 16384')
        a(f's_add_u32 s{sBo}, s{sBo}, {256*2048}')
        a(f's_add_u32 s{sCnt}, s{sCnt}, 1')
        a(f's_cmp_eq_u32 s{sCnt}, 14')
        a(f's_cselect_b32 s{sB}, s42, s{sB}')
        a(f's_cselect_b32 s{sB+1}, s43, s{sB+1}')
        a(f's_cselect_b32 s{sB+2}, {1024*2048}, s{sB+2}')
        a(f's_cselect_b32 s{sBo}, s52, s{sBo}')
        a(f's_cmp_ge_u32 s{sCnt}, 18')
        a(f's_cbranch_scc1 {L}_end')
        a(f's_cmp_lt_u32 s{sCnt}, {PFD}')
        a(f's_cbranch_scc1 {L}_pf')
        for i in range(4):
            a('s_barrier')
        a(f's_branch {L}_pf')
        a.label(f'{L}_main')
    a(f's_lshl_b32 s50, s{sMt}, 2')
    a(f's_add_u32 s50, s50, s{sWave}')
    a(f's_mul_i32 s51, s50, {HO_RB}')
    a(f's_add_u32 s51, s51, {HO_OFF}')
    srd_off(a, sA, 's48', 's49', 's51', HO_RB)
    srd(a, sB, 's44', 's45', 3584 * 2048)
    srd(a, sX, 's40', 's41', 0x400000)
    srd(a, sO, 's46', 's47', 0x400000)
    a('s_and_b32 s43, s43, 0xffff')
    a(f'v_lshrrev_b32 v8, 3, v{vLane}')
    a(f'v_and_b32 v9, 7, v{vLane}')
    a('v_and_b32 v10, 2, v8')
    a('v_xor_b32 v9, v9, v10')
    a(f's_lshl_b32 s51, s{sWave}, 4')
    a('v_add_u32 v8, s51, v8')
    a('v_lshlrev_b32 v8, 11, v8')
    a('v_lshl_add_u32 v8, v9, 4, v8')
    a(f's_lshl_b32 s51, s{sNt}, 7')
    a(f'v_add_u32 v{vDma}, s51, v8')
    a(f'v_add_u32 v{vDma+1}, {8*2048}, v{vDma}')
    if cfg.get('k3_fakeb'):
        a(f's_lshl_b32 s53, s{sNt}, 13')
        a(f's_lshl_b32 s54, s{sWave}, 11')
        a('s_add_u32 s53, s53, s54')
        a(f'v_add_u32 v{vDma}, s53, v{vL16}')
        a(f'v_add_u32 v{vDma+1}, 1024, v{vDma}')
    a(f's_lshl_b32 s{sDst}, s{sWave}, 11')
    a(f's_mov_b32 s{sAo}, 0')
    a(f's_mov_b32 s{sBo}, 0')
    a(f's_mov_b32 s{sStage}, 0')

    vm = VmQ()

    inloop = [False]

    def dma_u(stage, u):
        slot = stage % K3_NS
        if inloop[0] and cfg.get('k3_nob'):
            vm.issue(('B', stage), 0)
            return
        a(f's_add_u32 m0, s{sDst}, {slot*K3_STAGE + u*1024}')
        a(f'buffer_load_dwordx4 v{vDma+u}, s[{sB}:{sB+3}], s{sBo} offen lds')
        vm.issue(('B', stage))

    def dma_adv():
        a(f's_add_u32 s{sBo}, s{sBo}, {64*2048}')
        a(f's_add_u32 s{sStage}, s{sStage}, 1')
        a(f's_cmp_eq_u32 s{sStage}, 56')
        a(f's_cselect_b32 s{sB}, s42, s{sB}')
        a(f's_cselect_b32 s{sB+1}, s43, s{sB+1}')
        a(f's_cselect_b32 s{sB+2}, {1024*2048}, s{sB+2}')
        a(f's_cselect_b32 s{sBo}, 0, s{sBo}')

    def aload(step):
        e = step % 32
        if inloop[0] and cfg.get('k3_noa'):
            vm.issue(('A', step), 0)
            return
        a(f'buffer_load_dwordx4 {vr(AR+4*e,4)}, v{vL16}, s[{sA}:{sA+3}], s{sAo} offen offset:{(step&3)*1024}')
        vm.issue(('A', step))
        if (step & 3) == 3:
            a(f's_add_u32 s{sAo}, s{sAo}, 4096')

    def bread(step, bs=(0, 1)):
        stage = step >> 2
        slot = stage % K3_NS
        e = step % 4
        for b in bs:
            for h in range(2):
                off = slot * K3_STAGE + ((step & 3) * 16 + 8 * h) * 128
                a(f'ds_read_b64_tr_b16 {vr(BF+e*8+b*4+2*h,2)}, v{vRd+b} offset:{off}')

    a(f'v_and_b32 v8, 31, v{vLane}')
    a('v_lshlrev_b32 v8, 11, v8')
    a(f'v_lshrrev_b32 v9, 5, v{vLane}')
    a('v_lshl_add_u32 v8, v9, 6, v8')
    a('s_lshl_b32 s52, s50, 16')
    a('s_add_u32 s52, s52, s51')
    a(f'v_add_u32 v{vXo}, s52, v8')
    for i in range(4):
        a(f'buffer_load_dwordx4 {vr(XR+4*i,4)}, v{vXo}, s[{sX}:{sX+3}], 0 offen offset:{16*i}')
    for s in range(-32, 0):
        if (s + 3) % 4 == 0:
            p = (s + 3) // 4
            if p == 0:
                a(f'v_lshrrev_b32 v8, 5, v{vLane}')
                a(f'v_bfe_u32 v9, v{vLane}, 2, 2')
                a('v_lshl_add_u32 v8, v8, 2, v9')
                a('v_lshlrev_b32 v8, 7, v8')
                a(f'v_and_b32 v10, 1, v{vLane}')
                a('v_lshl_add_u32 v8, v10, 6, v8')
                a(f'v_bfe_u32 v10, v{vLane}, 4, 1')
                a('v_lshl_add_u32 v8, v10, 4, v8')
                a(f'v_bfe_u32 v10, v{vLane}, 1, 1')
                a('v_lshl_add_u32 v8, v10, 3, v8')
                a('v_lshrrev_b32 v9, 1, v9')
                a(f'v_lshl_add_u32 v{vRd}, v9, 5, v8')
                a(f'v_xor_b32 v{vRd+1}, 32, v{vRd}')
                for i in range(32):
                    a(f'v_mov_b32 v{ACC+i}, 0')
                a(f's_waitcnt vmcnt({vm.need([("B", 0)])})')
                a('s_barrier')
        if (s + 3) // 4 + 6 >= 0:
            if (s + 3) % 4 in (0, 1):
                dma_u((s + 3) // 4 + 6, (s + 3) % 4)
            if (s + 3) % 4 == 2:
                dma_adv()
        if s >= -3:
            bread(s + 3)
        aload(s + 32)
    a(f's_mov_b32 s{sCnt}, 0')
    stamp(a, cfg, 2)
    inloop[0] = True
    waits = {}

    def step(s):
        e = s % 32
        if (s + 3) % 4 == 0:
            p = (s + 3) // 4
            n = min(vm.need([('B', p)]), vm.need([('A', s)]))
            waits.setdefault((e, 'B'), []).append(n)
            a(f's_waitcnt vmcnt({n}) lgkmcnt(8)')
            a('s_barrier')
        else:
            n = vm.need([('A', s)])
            waits.setdefault((e, 'A'), []).append(n)
            a(f's_waitcnt vmcnt({n}) lgkmcnt(8)')
        for b in range(2):
            d = vr(ACC + 16 * b, 16)
            a(f'{MFMA} {d}, {vr(BF+(s%4)*8+b*4,4)}, {vr(AR+4*e,4)}, {d}')
            bread(s + 3, (b,))
            if b == 0 and (s + 3) % 4 in (0, 1):
                dma_u((s + 3) // 4 + 6, (s + 3) % 4)
            if b == 0 and (s + 3) % 4 == 2:
                dma_adv()
        aload(s + 32)

    abl = cfg.get('k3_noa') or cfg.get('k3_nob')
    s0 = 0
    if abl:
        sl, sh = a.lines, a.hist
        a.lines = []
        for s in range(32):
            step(s)
        a.lines, a.hist = sl, sh
        waits.clear()
        s0 = 32
    a.raw('.p2align 6')
    a.label(f'{L}_loop')
    for s in range(s0, s0 + 32):
        step(s)
    a(f's_add_u32 s{sCnt}, s{sCnt}, 1')
    a(f's_cmp_lg_u32 s{sCnt}, 7')
    a(f's_cbranch_scc1 {L}_noswitch')
    a.nop(16)
    a(f's_mov_b32 s53, {LOG2E | 0x80000000}')
    a('s_mov_b32 s54, 0xffff0000')
    for i in range(16):
        a(f'v_cvt_pk_bf16_f32 v{GS+i}, v{ACC+2*i}, v{ACC+2*i+1}')
    for i in range(16):
        a(f'v_lshlrev_b32 v{ACC+2*i}, 16, v{GS+i}')
        a(f'v_and_b32 v{ACC+2*i+1}, s54, v{GS+i}')
    for half in range(4):
        o = ACC + 8 * half
        for i in range(8):
            a(f'v_mul_f32 v{8+i}, s53, v{o+i}')
        for i in range(8):
            a(f'v_exp_f32 v{8+i}, v{8+i}')
        for i in range(8):
            a(f'v_add_f32 v{8+i}, 1.0, v{8+i}')
        for i in range(8):
            a(f'v_rcp_f32 v{8+i}, v{8+i}')
        for i in range(8):
            a(f'v_mul_f32 v{o+i}, v{o+i}, v{8+i}')
    for i in range(16):
        a(f'v_cvt_pk_bf16_f32 v{GS+i}, v{ACC+2*i}, v{ACC+2*i+1}')
    for i in range(32):
        a(f'v_mov_b32 v{ACC+i}, 0')
    a.nop(2)
    a.label(f'{L}_noswitch')
    a(f's_cmp_lt_u32 s{sCnt}, 9')
    a(f's_cbranch_scc1 {L}_loop')
    saved_lines, saved_hist = a.lines, a.hist
    a.lines = []
    for s in range(s0 + 32, s0 + 64):
        step(s)
    a.lines, a.hist = saved_lines, saved_hist
    for k, v in waits.items():
        assert v[0] <= v[1], (k, v)
    stamp(a, cfg, 3)
    a.nop(16)
    T = AR
    a('s_waitcnt vmcnt(0)')
    for i in range(16):
        a(f'v_cvt_pk_bf16_f32 v{T+i}, v{ACC+2*i}, v{ACC+2*i+1}')
    for i in range(16):
        a(f'v_lshlrev_b32 v{ACC+2*i}, 16, v{T+i}')
        a(f'v_and_b32 v{ACC+2*i+1}, s54, v{T+i}')
        a(f'v_lshlrev_b32 v{T+32+2*i}, 16, v{GS+i}')
        a(f'v_and_b32 v{T+32+2*i+1}, s54, v{GS+i}')
    for i in range(0, 32, 2):
        a(f'v_pk_mul_f32 v[{ACC+i}:{ACC+i+1}], v[{ACC+i}:{ACC+i+1}], v[{T+32+i}:{T+33+i}]')
    for i in range(16):
        a(f'v_cvt_pk_bf16_f32 v{T+i}, v{ACC+2*i}, v{ACC+2*i+1}')
    for i in range(16):
        a(f'v_lshlrev_b32 v{ACC+2*i}, 16, v{T+i}')
        a(f'v_and_b32 v{ACC+2*i+1}, s54, v{T+i}')
        a(f'v_lshlrev_b32 v{T+32+2*i}, 16, v{XR+i}')
        a(f'v_and_b32 v{T+32+2*i+1}, s54, v{XR+i}')
    for i in range(0, 32, 2):
        a(f'v_pk_add_f32 v[{ACC+i}:{ACC+i+1}], v[{ACC+i}:{ACC+i+1}], v[{T+32+i}:{T+33+i}]')
    for i in range(16):
        a(f'v_cvt_pk_bf16_f32 v{T+i}, v{ACC+2*i}, v{ACC+2*i+1}')
    for i in range(4):
        a(f'buffer_store_dwordx4 {vr(T+4*i,4)}, v{vXo}, s[{sO}:{sO+3}], 0 offen offset:{16*i}')
    if cfg.get('prof'):
        a('s_waitcnt vmcnt(0)')
    stamp(a, cfg, 4)
    stamp(a, cfg, 5)
    stamp_store(a, cfg, 3)
    a.label(f'{L}_end')
    a('s_endpgm')
    return L, kernel_desc(L, 240, 102, 240), (256, 320 if PFD else 256, K3_LDS)


K3B_CH = 16384
K3B_LDS = 4 * K3B_CH
SPIN_MAX = 200000


def gen_k3b(a, cfg):
    L = 'k3_gemm2_kernel'
    kernel_head(a, L)
    sA, sW, sX, sO = 8, 12, 16, 20
    sWave, sMt, sCt, sP, sAo, sBo, sCh, sCnt, sDst, sB2, sEo, sEi, sFl = range(24, 37)
    vLane, vL16, vR1, vR2, vXo, vFl = 1, 2, 3, 7, 9, 10
    ACC, BF2, AR, BF1 = 16, 80, 112, 176
    EXR, XR, GS, TM = 176, 208, 224, 240
    a('s_cmp_ge_u32 s2, 512')
    a(f's_cbranch_scc1 {L}_end')
    a(f's_load_dwordx2 s[40:41], s[0:1], {KA_X}')
    a(f's_load_dwordx2 s[42:43], s[0:1], {KA_WPHI}')
    a(f's_load_dwordx2 s[46:47], s[0:1], {KA_OUT}')
    a(f's_load_dwordx2 s[48:49], s[0:1], {KA_WS}')
    a('v_lshrrev_b32 v8, 6, v0')
    a(f'v_and_b32 v{vLane}, 63, v0')
    a(f'v_readfirstlane_b32 s{sWave}, v8')
    a(f'v_lshlrev_b32 v{vL16}, 4, v{vLane}')
    a('s_cmp_ge_u32 s2, 256')
    a(f's_cbranch_scc1 {L}_main')
    a('s_and_b32 s50, s2, 7')
    a('s_lshl_b32 s50, s50, 2')
    a('s_bfe_u32 s51, s2, 0x20003')
    a('s_add_u32 s25, s50, s51')
    a('s_lshr_b32 s26, s2, 5')
    a('s_waitcnt lgkmcnt(0)')
    srd(a, sW, 's48', 's49', WS_USED)
    ophase(a, 48, 42, 25, 26, sWave, vLane, vL16, 0, sW, 16, 52, 8, sc=' sc1')
    a('s_waitcnt vmcnt(0)')
    a('s_barrier')
    a(f's_cmp_lg_u32 s{sWave}, 0')
    a(f's_cbranch_scc1 {L}_end')
    a('s_lshl_b32 s50, s26, 7')
    a(f's_add_u32 s50, s50, {CNT_OFF}')
    a('v_mov_b32 v3, 1')
    a('v_mov_b32 v4, 0')
    a('s_mov_b64 exec, 1')
    a(f'buffer_atomic_add v3, v4, s[{sW}:{sW+3}], s50 offen sc1')
    a('s_endpgm')
    a.label(f'{L}_main')
    a.reset()
    a('s_sub_u32 s2, s2, 256')
    stamp(a, cfg, 0)
    stamp(a, cfg, 1)
    a(f's_and_b32 s{sP}, s2, 1')
    a('s_bfe_u32 s50, s2, 0x20001')
    a('s_lshl_b32 s50, s50, 2')
    a('s_bfe_u32 s51, s2, 0x20003')
    a(f's_add_u32 s{sMt}, s50, s51')
    a(f's_lshr_b32 s{sCt}, s2, 5')
    a(f's_lshl_b32 s50, s{sMt}, 2')
    a(f's_add_u32 s50, s50, s{sWave}')
    a(f's_mul_i32 s51, s50, {HO_RB}')
    a(f's_add_u32 s51, s51, {HO_OFF}')
    a(f's_mul_i32 s{sAo}, s{sP}, {112*1024}')
    a(f's_mul_i32 s{sBo}, s{sCt}, {3584*256}')
    a(f's_mul_i32 s52, s{sP}, {1792*256}')
    a(f's_add_u32 s{sBo}, s{sBo}, s52')
    a(f's_lshl_b32 s{sDst}, s{sWave}, 12')
    a(f's_add_u32 s{sBo}, s{sBo}, s{sDst}')
    a(f's_add_u32 s{sBo}, s{sBo}, {WDT_OFF}')
    a(f's_mov_b32 s{sCh}, 0')
    a('s_waitcnt lgkmcnt(0)')
    srd_off(a, sA, 's48', 's49', 's51', HO_RB)
    srd(a, sW, 's48', 's49', WS_USED)

    vm = VmQ()

    def dma_q(chunk, u):
        slot = chunk % 4
        a(f's_add_u32 m0, s{sDst}, {slot*K3B_CH}')
        a(f'buffer_load_dwordx4 v{vL16}, s[{sW}:{sW+3}], s{sBo} offen offset:{u*1024} lds')
        vm.issue(('B', chunk))

    def dma_adv():
        a(f's_add_u32 s{sBo}, s{sBo}, {K3B_CH}')
        a(f's_add_u32 s{sCh}, s{sCh}, 1')
        a(f's_cmp_eq_u32 s{sCh}, 28')
        a(f's_cselect_b32 s{sBo}, s{sB2}, s{sBo}')
        a(f's_cmp_eq_u32 s{sCh}, 36')
        a(f's_cselect_b32 s{sBo}, {WS_USED}, s{sBo}')

    def aload(step):
        e = step % 16
        a(f'buffer_load_dwordx4 {vr(AR+4*e,4)}, v{vL16}, s[{sA}:{sA+3}], s{sAo} offen offset:{(step&3)*1024} sc1')
        vm.issue(('A', step))
        if (step & 3) == 3:
            a(f's_add_u32 s{sAo}, s{sAo}, 4096')

    def bread1(step, blk):
        slot = (step >> 2) % 4
        e = step % 4
        for h in range(2):
            off = slot * K3B_CH + ((step & 3) * 16 + 8 * h) * 256
            a(f'ds_read_b64_tr_b16 {vr(BF1+e*16+blk*4+2*h,2)}, v{vR1+blk} offset:{off}')

    def bread2(step, b):
        slot = (step >> 3) % 4
        e = step % 4
        for h in range(2):
            off = slot * K3B_CH + ((step & 7) * 16 + 8 * h) * 128
            a(f'ds_read_b64_tr_b16 {vr(BF2+e*8+b*4+2*h,2)}, v{vR2+b} offset:{off}')

    a(f's_lshl_b32 s53, s{sCt}, 1')
    a(f's_add_u32 s53, s53, s{sP}')
    a(f's_lshl_b32 s{sB2}, s53, 17')
    a(f's_add_u32 s{sB2}, s{sB2}, s{sDst}')
    a(f's_add_u32 s{sB2}, s{sB2}, {WOT_OFF}')
    for s_ in range(-16, -2):
        c = (s_ + 2) // 4 + 3
        if s_ % 4 in (2, 3) and c >= 0:
            dma_q(c, 2 * (s_ % 4 - 2))
            dma_q(c, 2 * (s_ % 4 - 2) + 1)
            if s_ % 4 == 3:
                dma_adv()
        aload(s_ + 16)
    srd(a, sX, 's40', 's41', 0x400000)
    srd(a, sO, 's46', 's47', 0x400000)
    a('s_lshl_b32 s54, s2, 2')
    a(f's_add_u32 s54, s54, s{sWave}')
    a(f's_lshl_b32 s{sEo}, s54, 13')
    a(f's_add_u32 s{sEo}, s{sEo}, {EX_OFF}')
    a('s_xor_b32 s54, s54, 4')
    a(f's_lshl_b32 s{sEi}, s54, 13')
    a(f's_add_u32 s{sEi}, s{sEi}, {EX_OFF}')
    a(f's_lshr_b32 s{sFl}, s{sMt}, 1')
    a(f's_lshl_b32 s{sFl}, s{sFl}, 7')
    a(f's_add_u32 s{sFl}, s{sFl}, {CNT_OFF}')
    a(f'v_and_b32 v11, 31, v{vLane}')
    a('v_lshlrev_b32 v11, 11, v11')
    a(f'v_lshrrev_b32 v12, 5, v{vLane}')
    a('v_lshl_add_u32 v11, v12, 6, v11')
    a('s_lshl_b32 s52, s50, 16')
    a('s_lshl_b32 s54, s53, 7')
    a('s_add_u32 s52, s52, s54')
    a(f'v_add_u32 v{vXo}, s52, v11')
    a(f'v_bfe_u32 v13, v{vLane}, 2, 2')
    a('v_lshl_add_u32 v12, v12, 2, v13')
    a(f'v_and_b32 v14, 1, v{vLane}')
    a('v_lshlrev_b32 v11, 6, v14')
    a(f'v_bfe_u32 v14, v{vLane}, 4, 1')
    a('v_lshl_add_u32 v11, v14, 4, v11')
    a(f'v_bfe_u32 v14, v{vLane}, 1, 1')
    a('v_lshl_add_u32 v11, v14, 3, v11')
    a('v_lshrrev_b32 v14, 1, v13')
    a('v_lshl_add_u32 v15, v12, 7, v11')
    a(f'v_lshl_add_u32 v{vR2}, v14, 5, v15')
    a(f'v_xor_b32 v{vR2+1}, 32, v{vR2}')
    a('v_lshl_add_u32 v15, v12, 8, v11')
    a('v_lshl_add_u32 v15, v14, 7, v15')
    a('v_and_b32 v14, 1, v13')
    a('v_lshl_add_u32 v15, v14, 5, v15')
    a(f's_lshl_b32 s54, s{sP}, 7')
    a(f'v_xor_b32 v{vR1}, s54, v15')
    a(f'v_xor_b32 v{vR1+1}, 32, v{vR1}')
    a(f'v_xor_b32 v{vR1+2}, 0x80, v{vR1}')
    a(f'v_xor_b32 v{vR1+3}, 0xa0, v{vR1}')
    a('v_mov_b32 v15, 0')
    for i in range(64):
        a(f'v_mov_b32 v{ACC+i}, 0')
    a(f's_waitcnt vmcnt({vm.need([("B", 0)])})')
    a('s_barrier')
    for s_ in (-2, -1):
        for blk in range(4):
            bread1(s_ + 2, blk)
        dma_q(3, 2 * (s_ % 4 - 2))
        dma_q(3, 2 * (s_ % 4 - 2) + 1)
        if s_ % 4 == 3:
            dma_adv()
        aload(s_ + 16)
    a(f's_mov_b32 s{sCnt}, 0')
    stamp(a, cfg, 2)
    stampv(a, cfg, 14, 0)
    waits = {}

    def w(key, n):
        waits.setdefault(key, []).append(n)
        return n

    def step1(s):
        e = s % 16
        bar = s % 4 == 2
        c = (s + 2) // 4 + 3
        for blk in range(4):
            if blk == 0:
                a(f's_waitcnt vmcnt({w((e, "A"), vm.need([("A", s)]))}) lgkmcnt(8)')
            d = vr(ACC + 16 * blk, 16)
            a(f'{MFMA} {d}, {vr(BF1+(s%4)*16+blk*4,4)}, {vr(AR+4*e,4)}, {d}')
            if bar:
                if blk == 1:
                    a(f's_waitcnt vmcnt({w((e, "B"), vm.need([("B", (s+2)//4)]))}) lgkmcnt(0)')
                    a('s_barrier')
                    bread1(s + 2, 0)
                if blk == 2:
                    bread1(s + 2, 1)
                    bread1(s + 2, 2)
                    dma_q(c, 0)
                if blk == 3:
                    bread1(s + 2, 3)
                    dma_q(c, 1)
            else:
                bread1(s + 2, blk)
                if s % 4 == 3 and blk in (0, 2):
                    dma_q(c, 2 + blk // 2)
                if s % 4 == 0 and blk == 0 and False:
                    pass
                if s % 4 == 3 and blk == 3:
                    dma_adv()
            if blk == 0 and e == 1:
                a(f'buffer_load_dword v{vFl}, v15, s[{sW}:{sW+3}], s{sFl} offen sc1')
                vm.issue(('F', s))
        aload(s + 16)

    a.raw('.p2align 6')
    a.label(f'{L}_loop1')
    for s_ in range(16):
        step1(s_)
    a(f's_add_u32 s{sCnt}, s{sCnt}, 1')
    if cfg.get('prof') == 3:
        a(f's_mov_b32 m0, s{sCnt}')
        stampv(a, cfg, 14, 'm0')
    a(f's_cmp_lg_u32 s{sCnt}, 6')
    a(f's_cbranch_scc1 {L}_l1next')
    a(f's_mov_b32 s{sAo}, {224*1024}')
    a(f's_waitcnt vmcnt({vm.need([("F", 1)])})')
    a('s_mov_b32 s55, 0')
    a.label(f'{L}_poll')
    a(f'v_readfirstlane_b32 s54, v{vFl}')
    a('s_cmp_ge_u32 s54, 32')
    a(f's_cbranch_scc1 {L}_l1next')
    a('s_add_u32 s55, s55, 1')
    a(f's_cmp_ge_u32 s55, {SPIN_MAX}')
    a(f's_cbranch_scc1 {L}_l1next')
    a('s_sleep 4')
    a(f'buffer_load_dword v{vFl}, v15, s[{sW}:{sW+3}], s{sFl} offen sc1')
    a('s_waitcnt vmcnt(0)')
    a(f's_branch {L}_poll')
    a.label(f'{L}_l1next')
    a(f's_cmp_lt_u32 s{sCnt}, 7')
    a(f's_cbranch_scc1 {L}_loop1')
    sl, sh = a.lines, a.hist
    a.lines = []
    for s_ in range(16, 32):
        step1(s_)
    a.lines, a.hist = sl, sh
    for k, v in waits.items():
        assert v[0] <= v[1], (k, v)
    vm.q = [((('A2', t[1] - 32) if t[0] == 'A' else ('B', t[1] + 20) if t[0] == 'B' else t), wt) for (t, wt) in vm.q]
    a('s_waitcnt lgkmcnt(0)')
    for s_ in range(3):
        bread2(s_, 0)
        bread2(s_, 1)
    a.nop(12)
    a('s_mov_b32 s54, 0xfffffffe')
    a(f's_add_u32 s55, s{sEo}, 4096')
    for q in range(8):
        for i in range(4):
            r = ACC + 32 + 4 * q + i
            a(f'v_min_u32 v{r}, s54, v{r}')
        a(f'buffer_store_dwordx4 {vr(ACC+32+4*q,4)}, v{vL16}, s[{sW}:{sW+3}], s{sEo if q < 4 else 55} offen offset:{(q&3)*1024} sc1')
        vm.issue(('P', q))
    for i in range(4):
        a(f'buffer_load_dwordx4 {vr(XR+4*i,4)}, v{vXo}, s[{sX}:{sX+3}], 0 offen offset:{16*i}')
        vm.issue(('X', i))
    for i in range(32):
        a(f'v_mov_b32 v{ACC+32+i}, 0')
    a(f's_mov_b32 s{sCnt}, 0')
    a(f's_add_u32 s55, s{sEi}, 4096')
    stampv(a, cfg, 14, 8)
    waits.clear()

    def aload2(step):
        e = step % 16
        a(f'buffer_load_dwordx4 {vr(AR+4*e,4)}, v{vL16}, s[{sA}:{sA+3}], s{sAo} offen offset:{(step&3)*1024} sc1')
        vm.issue(('A2', step))
        if (step & 3) == 3:
            a(f's_add_u32 s{sAo}, s{sAo}, 4096')

    def exload(q):
        a(f'buffer_load_dwordx4 {vr(EXR+4*q,4)}, v{vL16}, s[{sW}:{sW+3}], s{sEi if q < 4 else 55} offen offset:{(q&3)*1024} sc1')

    def step2(s):
        e = s % 16
        k = s % 32
        bar = (s + 3) % 8 == 0
        c = 28 + (s + 3) // 8
        a(f's_waitcnt vmcnt({w((k, "A"), vm.need([("A2", s)]))}) lgkmcnt(8)')
        for b in range(2):
            d = vr(ACC + 32 + 16 * b, 16)
            a(f'{MFMA} {d}, {vr(BF2+(s%4)*8+b*4,4)}, {vr(AR+4*e,4)}, {d}')
            if bar:
                if b == 1:
                    a(f's_waitcnt vmcnt({w((k, "B"), vm.need([("B", c)]))}) lgkmcnt(0)')
                    a('s_barrier')
                    bread2(s + 3, 0)
                    bread2(s + 3, 1)
            else:
                bread2(s + 3, b)
                u = (s + 3) % 8 - 1
                if b == 0 and 0 <= u < 4 and not (s < 5):
                    dma_q(c + 3, u)
                if b == 0 and u == 4 and not (s < 5):
                    dma_adv()
            if b == 0 and 12 <= k < 20:
                exload(k - 12)
                vm.issue(('E', s))
        aload2(s + 16)

    for s_ in range(32):
        step2(s_)
    stampv(a, cfg, 14, 9)
    a(f's_waitcnt vmcnt({vm.need([("E", 19)])})')
    a('s_mov_b32 s56, 0')
    a.label(f'{L}_chk')
    a(f'v_max3_u32 v11, v{EXR}, v{EXR+1}, v{EXR+2}')
    for i in range(3, 31, 2):
        a(f'v_max3_u32 v11, v11, v{EXR+i}, v{EXR+i+1}')
    a(f'v_max_u32 v11, v11, v{EXR+31}')
    a('v_cmp_eq_u32 vcc, -1, v11')
    a('s_nop 4')
    a(f's_cbranch_vccz {L}_got')
    a('s_add_u32 s56, s56, 1')
    a(f's_cmp_ge_u32 s56, {SPIN_MAX}')
    a(f's_cbranch_scc1 {L}_got')
    a('s_sleep 4')
    for q in range(8):
        exload(q)
    a('s_waitcnt vmcnt(0)')
    a(f's_branch {L}_chk')
    a.label(f'{L}_got')
    stampv(a, cfg, 14, 10)
    a(f's_mov_b32 s53, {LOG2E | 0x80000000}')
    a('s_mov_b32 s54, 0xffff0000')
    for i in range(0, 32, 2):
        a(f'v_pk_add_f32 v[{ACC+i}:{ACC+i+1}], v[{ACC+i}:{ACC+i+1}], v[{EXR+i}:{EXR+i+1}]')
    for i in range(16):
        a(f'v_cvt_pk_bf16_f32 v{GS+i}, v{ACC+2*i}, v{ACC+2*i+1}')
    for i in range(16):
        a(f'v_lshlrev_b32 v{ACC+2*i}, 16, v{GS+i}')
        a(f'v_and_b32 v{ACC+2*i+1}, s54, v{GS+i}')
    for i in range(32):
        a(f'v_mul_f32 v{EXR+i}, s53, v{ACC+i}')
    for i in range(32):
        a(f'v_exp_f32 v{EXR+i}, v{EXR+i}')
    for i in range(32):
        a(f'v_add_f32 v{EXR+i}, 1.0, v{EXR+i}')
    for i in range(32):
        a(f'v_rcp_f32 v{EXR+i}, v{EXR+i}')
    for i in range(0, 32, 2):
        a(f'v_pk_mul_f32 v[{ACC+i}:{ACC+i+1}], v[{ACC+i}:{ACC+i+1}], v[{EXR+i}:{EXR+i+1}]')
    for i in range(16):
        a(f'v_cvt_pk_bf16_f32 v{GS+i}, v{ACC+2*i}, v{ACC+2*i+1}')
    for i in range(16):
        a(f'v_lshlrev_b32 v{ACC+2*i}, 16, v{GS+i}')
        a(f'v_and_b32 v{ACC+2*i+1}, s54, v{GS+i}')
        a(f'v_lshlrev_b32 v{EXR+2*i}, 16, v{XR+i}')
        a(f'v_and_b32 v{EXR+2*i+1}, s54, v{XR+i}')
    stampv(a, cfg, 14, 11)

    def step2b(s):
        e = s % 16
        bar = (s + 3) % 8 == 0
        c = 28 + (s + 3) // 8
        last_read = s + 3 < 64
        a(f's_waitcnt vmcnt({vm.need([("A2", s)])}) lgkmcnt({min(8, 4*(63-s))})')
        for b in range(2):
            d = vr(ACC + 32 + 16 * b, 16)
            a(f'{MFMA} {d}, {vr(BF2+(s%4)*8+b*4,4)}, {vr(AR+4*e,4)}, {d}')
            if not last_read:
                continue
            if bar:
                if b == 1:
                    a(f's_waitcnt vmcnt({vm.need([("B", c)])}) lgkmcnt(0)')
                    a('s_barrier')
                    bread2(s + 3, 0)
                    bread2(s + 3, 1)
            else:
                bread2(s + 3, b)
                u = (s + 3) % 8 - 1
                if b == 0 and 0 <= u < 4 and c + 3 < 36:
                    dma_q(c + 3, u)
                if b == 0 and u == 4 and c + 3 < 36:
                    dma_adv()
        if s + 16 < 64:
            aload2(s + 16)

    for s_ in range(32, 64):
        step2b(s_)
    stamp(a, cfg, 3)
    stampv(a, cfg, 14, 12)
    S = ACC + 32
    T = AR
    for i in range(16):
        a(f'v_cvt_pk_bf16_f32 v{T+i}, v{S+2*i}, v{S+2*i+1}')
    for i in range(16):
        a(f'v_lshlrev_b32 v{S+2*i}, 16, v{T+i}')
        a(f'v_and_b32 v{S+2*i+1}, s54, v{T+i}')
    for i in range(0, 32, 2):
        a(f'v_pk_mul_f32 v[{S+i}:{S+i+1}], v[{S+i}:{S+i+1}], v[{ACC+i}:{ACC+i+1}]')
    for i in range(16):
        a(f'v_cvt_pk_bf16_f32 v{T+i}, v{S+2*i}, v{S+2*i+1}')
    for i in range(16):
        a(f'v_lshlrev_b32 v{S+2*i}, 16, v{T+i}')
        a(f'v_and_b32 v{S+2*i+1}, s54, v{T+i}')
    for i in range(0, 32, 2):
        a(f'v_pk_add_f32 v[{S+i}:{S+i+1}], v[{S+i}:{S+i+1}], v[{EXR+i}:{EXR+i+1}]')
    for q in range(4):
        for i in range(4 * q, 4 * q + 4):
            a(f'v_cvt_pk_bf16_f32 v{T+i}, v{S+2*i}, v{S+2*i+1}')
        a(f'buffer_store_dwordx4 {vr(T+4*q,4)}, v{vXo}, s[{sO}:{sO+3}], 0 offen offset:{16*q}')
    if cfg.get('prof'):
        a('s_waitcnt vmcnt(0)')
    stamp(a, cfg, 4)
    stamp(a, cfg, 5)
    stampv(a, cfg, 14, 13)
    if cfg.get('prof') == 3:
        a('s_getreg_b32 s98, hwreg(HW_REG_HW_ID)')
        a('v_writelane_b32 v14, s98, 20')
        a('s_getreg_b32 s98, hwreg(HW_REG_XCC_ID)')
        a('v_writelane_b32 v14, s98, 21')
    stampv_store(a, cfg, 14, 13)
    stamp_store(a, cfg, 3)
    a.label(f'{L}_end')
    a('s_endpgm')
    return L, kernel_desc(L, 240, 102, 240), (512, 256, K3B_LDS)


HEADER = """; Kernarg layout for this problem (88 bytes, ptrs only, base s[0:1]):
"""


def build(cfg):
    a = Asm()
    if cfg.get('old'):
        ks = [gen_k0(a, cfg), gen_k1(a, cfg), gen_k2(a), gen_k3(a, cfg)]
    else:
        ks = [gen_k0(a, cfg), gen_k1(a, cfg), gen_k3b(a, cfg)]
    out = HEADER
    for (lab, _, (g, b, lds)) in ks:
        out += f'; @launch kernel={lab} grid=({g},1,1) block=({b},1,1) lds={lds}\n'
    out += '.amdgcn_target "amdgcn-amd-amdhsa--gfx950"\n.text\n'
    out += a.text()
    out += 'code_end:\n'
    out += '.section .rodata,"a"\n'
    for (_, desc, _) in ks:
        out += '.p2align 6\n' + desc
    return out


if __name__ == '__main__':
    cfg = {}
    outp = sys.argv[1] if len(sys.argv) > 1 else f'cdna_kernels/{NAME}.s'
    for kv in sys.argv[2:]:
        k, v = kv.split('=')
        cfg[k] = int(v)
    open(outp, 'w').write(build(cfg))
    print('wrote', outp)
```

```python
import sys
import os
sys.path.insert(0, os.path.dirname(os.path.abspath(__file__)))
from asmlib import Asm, vr, ar, sr
from gen import (NAME, srd, srd_off, stamp, stampv, stampv_store, stamp_store, kernel_head, kernel_desc, VmQ, HEADER,
                 KA_X, KA_WQKV, KA_WPHI, KA_WO, KA_WG, KA_WU, KA_WD, KA_OUT, KA_DBG, KA_WS, LOG2E,
                 XN_OFF, HO_OFF, HO_RB, Q_OFF, KVP_OFF, ZP_OFF, WDT_OFF, WOT_OFF)

EX_OFF = 0x2600000
CNT_OFF = 0x3200000
ID_OFF = CNT_OFF + 1024
WS_USED = 0x3202000

M32 = 'v_mfma_f32_32x32x16_bf16'
M16 = 'v_mfma_f32_16x16x32_bf16'
SPIN_MAX = 200000
POL = {0: '', 1: ' nt', 2: ' sc1', 3: ' sc0 sc1'}


def touch_setup(a, sWave, sT, sO, vO, vt0, vt1, pq, pg, pu, rows):
    a(f's_cmp_eq_u32 s{sWave}, 1')
    a(f's_cselect_b32 s{sT}, s{pg}, s{pu}')
    a(f's_cselect_b32 s{sT+1}, s{int(pg)+1}, s{int(pu)+1}')
    a(f's_movk_i32 s{sO+1}, 7168')
    a(f's_movk_i32 s{sO}, 896')
    a(f's_cmp_eq_u32 s{sWave}, 0')
    a(f's_cselect_b32 s{sT}, s{pq}, s{sT}')
    a(f's_cselect_b32 s{sT+1}, s{int(pq)+1}, s{sT+1}')
    a(f's_cselect_b32 s{sO+1}, 6144, s{sO+1}')
    a(f's_cselect_b32 s{sO}, 256, s{sO}')
    a(f's_cselect_b32 s{sT+3}, 6, 7')
    a(f's_cselect_b32 s{sT+2}, 1792, 0')
    a(f'v_and_b32 v{vt0}, 7, v0')
    a(f'v_lshrrev_b32 v{vt1}, 1, v{vt0}')
    a(f'v_mul_u32_u24 v{vt1}, s{sT+2}, v{vt1}')
    a(f'v_lshl_add_u32 v{vO}, v{vt0}, 7, v{vt1}')
    a(f'v_cmp_gt_u32 vcc, s{sT+3}, v{vt0}')
    a(f'v_bfe_u32 v{vt0}, v0, 3, 3')
    a(f'v_mul_u32_u24 v{vt1}, s{sO+1}, v{vt0}')
    a(f'v_add_u32 v{vO}, v{vO}, v{vt1}')
    a(f'v_mov_b32 v{vt1}, 0x1000000')
    a(f'v_cndmask_b32 v{vO}, v{vt1}, v{vO}, vcc')
    if rows < 8:
        a(f'v_cmp_gt_u32 vcc, {rows}, v{vt0}')
        a(f'v_cndmask_b32 v{vO}, v{vt1}, v{vO}, vcc')
    a(f's_and_b32 s{sT+2}, s2, 7')
    a(f's_mul_i32 s{sO}, s{sO}, s{sT+2}')
    a(f's_lshr_b32 s{sT+2}, s2, 3')
    a(f's_mul_i32 s{sT+2}, s{sT+2}, {rows}')
    a(f's_mul_i32 s{sT+2}, s{sT+2}, s{sO+1}')
    a(f's_add_u32 s{sO}, s{sO}, s{sT+2}')
    a(f's_lshl_b32 s{sT+2}, s{sO+1}, 10')
    a(f's_and_b32 s{sT+1}, s{sT+1}, 0xffff')
    a(f's_mov_b32 s{sT+3}, 0x20000')


def gen_k0(a, cfg):
    L = 'k0_ln_kernel'
    kernel_head(a, L)
    a('s_cmp_ge_u32 s2, 256')
    a(f's_cbranch_scc1 {L}_end')
    a(f's_load_dwordx4 s[24:27], s[0:1], {KA_X}')
    a(f's_load_dwordx2 s[6:7], s[0:1], {KA_WS}')
    a(f's_load_dwordx4 s[32:35], s[0:1], {KA_WG}')
    a('v_and_b32 v1, 7, v0')
    a('v_lshrrev_b32 v2, 3, v0')
    a('v_lshlrev_b32 v3, 11, v1')
    a('v_lshl_add_u32 v3, v2, 4, v3')
    a('s_lshl_b32 s3, s2, 14')
    a('v_lshrrev_b32 v5, 6, v0')
    a('v_readfirstlane_b32 s36, v5')
    a('s_lshr_b32 s16, s2, 3')
    a('s_lshl_b32 s16, s16, 13')
    a('s_bfe_u32 s17, s2, 0x20001')
    a('s_lshl_b32 s17, s17, 10')
    a('s_or_b32 s16, s16, s17')
    a('s_and_b32 s17, s2, 1')
    a('s_lshl_b32 s17, s17, 7')
    a('s_or_b32 s16, s16, s17')
    a('s_add_u32 s17, s16, 0x200000')
    a('v_lshrrev_b32 v4, 3, v2')
    a('v_lshlrev_b32 v4, 18, v4')
    a('v_bfe_u32 v6, v2, 2, 1')
    a('v_lshl_add_u32 v4, v6, 12, v4')
    a('v_and_b32 v6, 3, v2')
    a('v_lshl_add_u32 v4, v6, 8, v4')
    a('v_lshl_add_u32 v4, v1, 4, v4')
    a('v_lshlrev_b32 v6, 5, v1')
    a('v_lshl_add_u32 v5, v5, 2, v6')
    a('s_mov_b32 s18, 0xffff0000')
    a('s_waitcnt lgkmcnt(0)')
    srd(a, 8, 's24', 's25', 0x400000)
    a('buffer_load_dwordx4 v[8:11], v3, s[8:11], s3 offen')
    a('buffer_load_dwordx4 v[12:15], v3, s[8:11], s3 offen offset:1024')
    npf = 0
    if not cfg.get('k0_nopf'):
        touch_setup(a, 36, 20, 38, 7, 62, 63, '26', '32', '34', 8)
        a('s_cmp_gt_u32 s36, 2')
        a('s_cselect_b32 s22, 0, s22')
        a('buffer_load_dword v63, v7, s[20:23], s38 offen')
        a('s_lshl_b32 s39, s39, 8')
        npf = 1
        for _ in range(cfg.get('k0_early', 1) - 1):
            a('s_add_u32 s38, s38, s39')
            a('buffer_load_dword v63, v7, s[20:23], s38 offen')
            npf += 1
    a('s_cmp_lg_u32 s2, 0')
    a(f's_cbranch_scc1 {L}_nz')
    srd_off(a, 12, 's6', 's7', CNT_OFF, 8192)
    for i in range(4):
        a(f'v_mov_b32 v{16+i}, 0')
    a('v_lshlrev_b32 v3, 4, v0')
    a('buffer_store_dwordx4 v[16:19], v3, s[12:15], 0 offen')
    a('s_waitcnt vmcnt(0)')
    a.label(f'{L}_nz')
    srd(a, 12, 's6', 's7', 0x400000)
    a(f's_waitcnt vmcnt({npf})')
    X = 16
    for i in range(8):
        a(f'v_lshlrev_b32 v{X+2*i}, 16, v{8+i}')
        a(f'v_and_b32 v{X+2*i+1}, s18, v{8+i}')

    def reduce_all(acc, tmp, ldsoff, filler=None):
        a(f'v_add_f32_dpp v{acc}, v{acc}, v{acc} row_ror:8 row_mask:0xf bank_mask:0xf')
        a(f'v_mov_b32 v{tmp}, v{acc}')
        a(f'v_permlane16_swap_b32 v{acc}, v{tmp}')
        a(f'v_add_f32 v{acc}, v{acc}, v{tmp}')
        a(f'v_mov_b32 v{tmp}, v{acc}')
        a(f'v_permlane32_swap_b32 v{acc}, v{tmp}')
        a(f'v_add_f32 v{acc}, v{acc}, v{tmp}')
        a('s_mov_b64 exec, 0xff')
        a(f'ds_write_b32 v5, v{acc} offset:{ldsoff}')
        a('s_mov_b64 exec, -1')
        if filler:
            filler()
        a('s_waitcnt lgkmcnt(0)')
        a('s_barrier')
        a(f'ds_read_b128 v[48:51], v6 offset:{ldsoff}')
        a(f'ds_read_b128 v[52:55], v6 offset:{ldsoff+16}')
        a('s_waitcnt lgkmcnt(0)')
        a('v_pk_add_f32 v[48:49], v[48:49], v[50:51]')
        a('v_pk_add_f32 v[52:53], v[52:53], v[54:55]')
        a('v_pk_add_f32 v[48:49], v[48:49], v[52:53]')
        a(f'v_add_f32 v{acc}, v48, v49')

    a(f'v_pk_add_f32 v[32:33], v[{X}:{X+1}], v[{X+2}:{X+3}]')
    a(f'v_pk_add_f32 v[34:35], v[{X+4}:{X+5}], v[{X+6}:{X+7}]')
    a(f'v_pk_add_f32 v[36:37], v[{X+8}:{X+9}], v[{X+10}:{X+11}]')
    a(f'v_pk_add_f32 v[38:39], v[{X+12}:{X+13}], v[{X+14}:{X+15}]')
    a('v_pk_add_f32 v[32:33], v[32:33], v[34:35]')
    a('v_pk_add_f32 v[36:37], v[36:37], v[38:39]')
    a('v_pk_add_f32 v[32:33], v[32:33], v[36:37]')
    a('v_add_f32 v56, v32, v33')
    reduce_all(56, 57, 0)
    a('v_mul_f32 v56, 0x3a800000, v56')
    for i in range(16):
        a(f'v_sub_f32 v{32+i}, v{X+i}, v56')
    a('v_pk_mul_f32 v[58:59], v[32:33], v[32:33]')
    a('v_pk_mul_f32 v[60:61], v[34:35], v[34:35]')
    for i in range(2, 8):
        d = 58 + 2 * (i & 1)
        a(f'v_pk_fma_f32 v[{d}:{d+1}], v[{32+2*i}:{33+2*i}], v[{32+2*i}:{33+2*i}], v[{d}:{d+1}]')
    a('v_pk_add_f32 v[58:59], v[58:59], v[60:61]')
    a('v_add_f32 v58, v58, v59')

    def fill():
        a('v_cvt_pk_bf16_f32 v62, v56, v56')
        a('v_lshlrev_b32 v62, 16, v62')
        for i in range(16):
            a(f'v_sub_f32 v{32+i}, v{X+i}, v62')
        for i in range(8):
            a(f'v_cvt_pk_bf16_f32 v{8+i}, v{32+2*i}, v{33+2*i}')
        for i in range(8):
            a(f'v_lshlrev_b32 v{X+2*i}, 16, v{8+i}')
            a(f'v_and_b32 v{X+2*i+1}, s18, v{8+i}')
    reduce_all(58, 57, 256, fill)
    a('v_mul_f32 v58, 0x3a800000, v58')
    a('v_cvt_pk_bf16_f32 v58, v58, v58')
    a('v_lshlrev_b32 v58, 16, v58')
    a('v_add_f32 v58, 0x3727c5ac, v58')
    a('v_cvt_pk_bf16_f32 v58, v58, v58')
    a('v_lshlrev_b32 v58, 16, v58')
    a('v_sqrt_f32 v58, v58')
    a('v_cvt_pk_bf16_f32 v58, v58, v58')
    a('v_lshlrev_b32 v58, 16, v58')
    a('v_rcp_f32 v58, v58')
    for i in range(0, 16, 2):
        a(f'v_pk_mul_f32 v[{X+i}:{X+i+1}], v[{X+i}:{X+i+1}], v[58:59] op_sel_hi:[1,0]')
    for i in range(8):
        a(f'v_cvt_pk_bf16_f32 v{8+i}, v{X+2*i}, v{X+2*i+1}')
        if i == 3:
            a('buffer_store_dwordx4 v[8:11], v4, s[12:15], s16 offen')
    a('buffer_store_dwordx4 v[12:15], v4, s[12:15], s17 offen')
    for _ in range(cfg.get('k0_q', 1) - cfg.get('k0_early', 1)):
        a('s_add_u32 s38, s38, s39')
        a('buffer_load_dword v63, v7, s[20:23], s38 offen')
    a.label(f'{L}_end')
    a('s_endpgm')
    return L, kernel_desc(L, 64, 48, 64), (256, 512, 512)


def softmax_pm(a, blocks, sL, sMask):
    sL0 = 's' + sL[2:].split(':')[0]

    def each(f):
        for b in blocks:
            f(b)
    for i in range(16):
        each(lambda b: a(f"v_cvt_pk_bf16_f32 v{b['P']+i}, 0, v{b['P']+i}"))
    each(lambda b: (a(f"v_max3_f32 v{b['T']}, v{b['P']}, v{b['P']+1}, v{b['P']+2}"),
                    a(f"v_min3_f32 v{b['T']+2}, v{b['P']}, v{b['P']+1}, v{b['P']+2}")))
    for i in range(3, 15, 2):
        each(lambda b: (a(f"v_max3_f32 v{b['T']}, v{b['T']}, v{b['P']+i}, v{b['P']+i+1}"),
                        a(f"v_min3_f32 v{b['T']+2}, v{b['T']+2}, v{b['P']+i}, v{b['P']+i+1}")))
    each(lambda b: (a(f"v_max_f32 v{b['T']}, v{b['T']}, v{b['P']+15}"),
                    a(f"v_min_f32 v{b['T']+2}, v{b['T']+2}, v{b['P']+15}")))
    each(lambda b: (a(f"v_mov_b32 v{b['T']+1}, v{b['T']}"),
                    a(f"v_mov_b32 v{b['T']+3}, v{b['T']+2}")))
    each(lambda b: (a(f"v_permlane32_swap_b32 v{b['T']}, v{b['T']+1}"),
                    a(f"v_permlane32_swap_b32 v{b['T']+2}, v{b['T']+3}")))
    each(lambda b: (a(f"v_max_f32 v{b['T']}, v{b['T']}, v{b['T']+1}"),
                    a(f"v_min_f32 v{b['T']+2}, v{b['T']+2}, v{b['T']+3}")))
    each(lambda b: (a(f"v_mul_f32 v{b['T']}, {sL0}, v{b['T']}"),
                    a(f"v_mul_f32 v{b['T']+2}, {sL0}, v{b['T']+2}")))
    for i in range(0, 16, 2):
        each(lambda b: (
            a(f"v_pk_fma_f32 v[{b['E']+i}:{b['E']+i+1}], v[{b['P']+i}:{b['P']+i+1}], {sL}, v[{b['T']+2}:{b['T']+3}] op_sel_hi:[1,1,0] neg_lo:[1,0,0] neg_hi:[1,0,0]"),
            a(f"v_pk_fma_f32 v[{b['P']+i}:{b['P']+i+1}], v[{b['P']+i}:{b['P']+i+1}], {sL}, v[{b['T']}:{b['T']+1}] op_sel_hi:[1,1,0] neg_lo:[0,0,1] neg_hi:[0,0,1]")))
    for i in range(16):
        each(lambda b: (a(f"v_exp_f32 v{b['P']+i}, v{b['P']+i}"),
                        a(f"v_exp_f32 v{b['E']+i}, v{b['E']+i}")))
    each(lambda b: (a(f"v_pk_add_f32 v[{b['T']}:{b['T']+1}], v[{b['P']}:{b['P']+1}], v[{b['P']+2}:{b['P']+3}]"),
                    a(f"v_pk_add_f32 v[{b['T']+2}:{b['T']+3}], v[{b['E']}:{b['E']+1}], v[{b['E']+2}:{b['E']+3}]")))
    for i in range(4, 16, 2):
        each(lambda b: (a(f"v_pk_add_f32 v[{b['T']}:{b['T']+1}], v[{b['T']}:{b['T']+1}], v[{b['P']+i}:{b['P']+i+1}]"),
                        a(f"v_pk_add_f32 v[{b['T']+2}:{b['T']+3}], v[{b['T']+2}:{b['T']+3}], v[{b['E']+i}:{b['E']+i+1}]")))
    each(lambda b: (a(f"v_add_f32 v{b['T']}, v{b['T']}, v{b['T']+1}"),
                    a(f"v_add_f32 v{b['T']+2}, v{b['T']+2}, v{b['T']+3}")))
    each(lambda b: (a(f"v_mov_b32 v{b['T']+1}, v{b['T']}"),
                    a(f"v_mov_b32 v{b['T']+3}, v{b['T']+2}")))
    each(lambda b: (a(f"v_permlane32_swap_b32 v{b['T']}, v{b['T']+1}"),
                    a(f"v_permlane32_swap_b32 v{b['T']+2}, v{b['T']+3}")))
    each(lambda b: (a(f"v_add_f32 v{b['T']}, v{b['T']}, v{b['T']+1}"),
                    a(f"v_add_f32 v{b['T']+2}, v{b['T']+2}, v{b['T']+3}")))
    each(lambda b: (a(f"v_rcp_f32 v{b['T']}, v{b['T']}"),
                    a(f"v_rcp_f32 v{b['T']+2}, v{b['T']+2}")))
    for i in range(0, 16, 2):
        each(lambda b: (a(f"v_pk_mul_f32 v[{b['P']+i}:{b['P']+i+1}], v[{b['P']+i}:{b['P']+i+1}], v[{b['T']}:{b['T']+1}] op_sel_hi:[1,0]"),
                        a(f"v_pk_mul_f32 v[{b['E']+i}:{b['E']+i+1}], v[{b['E']+i}:{b['E']+i+1}], v[{b['T']+2}:{b['T']+3}] op_sel_hi:[1,0]")))
    for i in range(8):
        each(lambda b: (a(f"v_cvt_pk_bf16_f32 v{b['O']+i}, v{b['P']+2*i}, v{b['P']+2*i+1}"),
                        a(f"v_cvt_pk_bf16_f32 v{b['O']+8+i}, v{b['E']+2*i}, v{b['E']+2*i+1}")))


class Rec:
    def __init__(self):
        self.l = []

    def __call__(self, t):
        self.l.append(t)

    def items(self):
        out = []
        for t in self.l:
            op = t.split()[0]
            glue = op.startswith(('s_cselect', 's_addc', 's_subb'))
            if out and not glue and op in ('s_movk_i32', 's_mov_b32') and out[-1].split('\n')[-1].split()[0].startswith(('s_cmp', 's_cselect')):
                glue = True
            if glue:
                out[-1] += '\n' + t
            else:
                out.append(t)
        return out


def wphi_addr(a, vd, vt, vLane, base):
    a(f'v_lshrrev_b32 v{vd}, 5, v{vLane}')
    a(f'v_bfe_u32 v{vt}, v{vLane}, 2, 2')
    a(f'v_lshl_add_u32 v{vd}, v{vd}, 3, v{vt}')
    a(f'v_lshlrev_b32 v{vd}, 6, v{vd}')
    a(f'v_bfe_u32 v{vt}, v{vLane}, 4, 1')
    a(f'v_lshl_add_u32 v{vd}, v{vt}, 5, v{vd}')
    a(f'v_and_b32 v{vt}, 3, v{vLane}')
    a(f'v_lshl_add_u32 v{vd}, v{vt}, 3, v{vd}')
    if base:
        a(f'v_add_u32 v{vd}, {base}, v{vd}')


C_QKV, C_G, C_U, C_SZ = 0, 6144, 13312, 20480
K1_STAGE = 2 * C_SZ
K1_WPHI = 3 * K1_STAGE
K1_RED = K1_WPHI + 2048
K1_ZR = K1_RED + 4 * 8192
K1_LDS = K1_ZR + 4 * 512
ADDR_SPLIT = 3 * C_SZ


def gen_k1(a, cfg):
    L = 'k1_gemm1_kernel'
    kernel_head(a, L)
    sA, sB0, sW, sP, sT = 8, 12, 32, 36, 40
    sOff, sStep, sDst = 44, 49, 54
    sAo, sAo2, sCnt, sWave, sHead, sMt, sU, sWid, sTo, sTs, sEx = range(59, 70)
    vLane, vDma, vA, vGU, vQE, vQO, vCd, vWo, vTo, vTd = 1, 2, 7, 8, 10, 12, 14, 15, 16, 17
    ACC_V = 32
    aX, aW, aI, aOnes, aWp, aC = 96, 192, 224, 232, 236, 244
    T0 = 20

    def acc(cb, tb):
        if cb < 6:
            return ('a', (cb * 4 + tb) * 4)
        isu = cb >= 13
        j = cb - (13 if isu else 6)
        return ('v', ACC_V + (j * 2 + (tb >> 1)) * 16 + (8 if isu else 0) + (tb & 1) * 4)

    def accs(cb, tb):
        k, b = acc(cb, tb)
        return vr(b, 4, k)

    a('s_cmp_ge_u32 s2, 256')
    a(f's_cbranch_scc1 {L}_end')
    stamp(a, cfg, 0)
    stamp(a, cfg, 1)
    stampv(a, cfg, 19, 0, 4)
    a(f's_load_dwordx2 s[82:83], s[0:1], {KA_WS}')
    a(f's_load_dwordx2 s[70:71], s[0:1], {KA_WQKV}')
    a(f's_load_dwordx4 s[72:75], s[0:1], {KA_WPHI}')
    a(f's_load_dwordx4 s[76:79], s[0:1], {KA_WG}')
    a(f's_load_dwordx2 s[80:81], s[0:1], {KA_WD}')
    a(f'v_lshrrev_b32 v{T0}, 6, v0')
    a(f'v_and_b32 v{vLane}, 63, v0')
    a(f'v_readfirstlane_b32 s{sWave}, v{T0}')
    a('s_and_b32 s3, s2, 7')
    a('s_lshl_b32 s3, s3, 2')
    a('s_bfe_u32 s4, s2, 0x20003')
    a(f's_add_u32 s{sHead}, s3, s4')
    a(f's_lshr_b32 s{sMt}, s2, 5')
    a(f'v_lshlrev_b32 v{vA}, 4, v{vLane}')
    a(f's_mul_i32 s3, s{sWave}, 5')
    a(f's_lshl_b32 s84, s{sHead}, 6')
    a(f's_mul_i32 s85, s{sHead}, 224')
    def params(t):
        d = sB0 + 4 * t
        a(f's_add_u32 s4, s3, {t}')
        a('s_cmp_ge_u32 s4, 13')
        a('s_cselect_b32 s5, 13, 6')
        a('s_cmp_lt_u32 s4, 6')
        a('s_cselect_b32 s5, 0, s5')
        a(f's_cselect_b32 s{d}, 12, 14')
        a(f's_cselect_b32 s{d+1}, s84, s85')
        a(f's_cselect_b32 s6, 1984, 0')
        a(f's_cselect_b32 s7, 2, 0')
        a(f's_movk_i32 s{d+3}, 4682')
        a(f's_cselect_b32 s{d+3}, 5462, s{d+3}')
        a(f's_lshl_b32 s{sDst+t}, s4, 10')
        a('s_sub_u32 s5, s4, s5')
        a('s_lshl_b32 s5, s5, 6')
        a(f's_lshl_b32 s{d+2}, s{d}, 9')
        a(f's_lshl_b32 s{sStep+t}, s{d}, 14')
        a(f'v_add_u32 v{T0}, s5, v{vLane}')
        a(f'v_mul_u32_u24 v{T0+1}, s{d+3}, v{T0}')
        a(f'v_lshrrev_b32 v{T0+1}, 16, v{T0+1}')
        a(f'v_mul_u32_u24 v{T0+2}, s{d}, v{T0+1}')
        a(f'v_sub_u32 v{T0+2}, v{T0}, v{T0+2}')
        a(f'v_lshrrev_b32 v{T0+3}, 1, v{T0+1}')
        a(f'v_and_b32 v{T0+4}, s7, v{T0+3}')
        a(f'v_xor_b32 v{T0+2}, v{T0+2}, v{T0+4}')
        a(f'v_and_b32 v{T0+3}, 4, v{T0+3}')
        a(f'v_and_b32 v{T0+4}, 4, v{T0+1}')
        a(f'v_lshl_or_b32 v{T0+3}, v{T0+4}, 1, v{T0+3}')
        a(f'v_and_or_b32 v{T0+1}, v{T0+1}, 19, v{T0+3}')
        a(f'v_mul_u32_u24 v{T0+1}, s{d+2}, v{T0+1}')
        a(f'v_lshl_add_u32 v{T0+1}, v{T0+2}, 4, v{T0+1}')
        a(f'v_lshrrev_b32 v{T0+2}, 2, v{T0+2}')
        a(f'v_mul_u32_u24 v{T0+2}, s6, v{T0+2}')
        a(f'v_add3_u32 v{vDma+t}, v{T0+1}, v{T0+2}, s{d+1}')
        a(f's_lshl_b32 s{d+2}, s{d+2}, 10')
        a(f's_mov_b32 s{sOff+t}, 0')

    def slot_srd(t):
        d = sB0 + 4 * t
        a(f's_cmp_ge_u32 s3, {13-t}')
        a(f's_cselect_b32 s{d}, s78, s76')
        a(f's_cselect_b32 s{d+1}, s79, s77')
        a(f's_cmp_lt_u32 s3, {6-t}')
        a(f's_cselect_b32 s{d}, s70, s{d}')
        a(f's_cselect_b32 s{d+1}, s71, s{d+1}')
        a(f's_and_b32 s{d+1}, s{d+1}, 0xffff')
        a(f's_mov_b32 s{d+3}, 0x20000')

    vm = VmQ()
    inloop = [False]

    def slot_of(u):
        return (u + 2) % 3

    def dma(u, i, parts=(0, 1, 2)):
        if inloop[0] and cfg.get('k1_nodma'):
            if 1 in parts:
                vm.issue(('B', u), 0)
            return
        t, ch = i % 5, i // 5
        d = sB0 + 4 * t
        if 0 in parts:
            a(f's_add_u32 m0, s{sDst+t}, {slot_of(u)*K1_STAGE + ch*C_SZ}')
        if 1 in parts:
            a(f'buffer_load_dwordx4 v{vDma+t}, s[{d}:{d+3}], s{sOff+t} offen lds')
            vm.issue(('B', u))
        if 2 in parts:
            a(f's_add_u32 s{sOff+t}, s{sOff+t}, s{sStep+t}')

    def aload(u, i):
        if inloop[0] and cfg.get('k1_noa'):
            vm.issue(('A', u), 0)
            return
        t, tb = i >> 2, i & 3
        a(f'buffer_load_dwordx4 {ar(aX+slot_of(u)*32+i*4, 4)}, v{vA}, s[{sA}:{sA+3}], s{sAo2 if t else sAo} offen offset:{tb*1024}')
        vm.issue(('A', u))
        if tb == 3:
            r = sAo2 if t else sAo
            a(f's_add_u32 s{r}, s{r}, 0x40000')

    def bread(u, cb, i):
        if inloop[0] and cfg.get('k1_nods'):
            return
        t, h = i >> 1, i & 1
        off = slot_of(u) * K1_STAGE + t * C_SZ
        hi = 1 if off >= ADDR_SPLIT else 0
        off -= hi * ADDR_SPLIT
        if cb < 6:
            off += C_QKV + 8 * h * 192 + 32 * cb
            addr = (vQO if cb & 1 else vQE) + hi
        elif cb < 13:
            off += C_G + 8 * h * 224 + 32 * (cb - 6)
            addr = vGU + hi
        else:
            off += C_U + 8 * h * 224 + 32 * (cb - 13)
            addr = vGU + hi
        a(f'ds_read_b64_tr_b16 {ar(aW+(cb%4)*8+2*i, 2)}, v{addr} offset:{off}')

    for t in range(3):
        params(t)
    a(f's_lshl_b32 s4, s{sMt}, 2')
    a(f's_add_u32 s4, s4, s{sWave}')
    a(f's_lshl_b32 s{sAo}, s4, 13')
    a(f's_add_u32 s{sAo2}, s{sAo}, 4096')
    a('s_waitcnt lgkmcnt(0)')
    stampv(a, cfg, 19, 1, 4)
    srd(a, sA, 's82', 's83', 0x400000)
    for t in range(3):
        slot_srd(t)
        dma(0, t)
        dma(0, t + 5)
    for t in range(3, 5):
        params(t)
        slot_srd(t)
        dma(0, t)
        dma(0, t + 5)
    for i in range(8):
        aload(0, i)
    stampv(a, cfg, 19, 2, 4)
    U = T0 + 4
    a(f'v_lshrrev_b32 v{U}, 5, v{vLane}')
    a(f'v_bfe_u32 v{U+1}, v{vLane}, 2, 3')
    a(f'v_lshl_add_u32 v{U}, v{U}, 4, v{U+1}')
    a(f'v_and_b32 v{U+2}, 3, v{vLane}')
    a(f'v_lshlrev_b32 v{U+2}, 3, v{U+2}')
    a(f'v_mul_u32_u24 v{U+3}, 224, v{U}')
    a(f'v_add_u32 v{vGU}, v{U+3}, v{U+2}')
    a(f'v_add_u32 v{vGU+1}, {ADDR_SPLIT}, v{vGU}')
    a(f'v_mul_u32_u24 v{U+3}, 192, v{U}')
    a(f'v_add_u32 v{U+3}, v{U+3}, v{U+2}')
    a(f'v_and_b32 v{U+1}, 16, v{vLane}')
    a(f'v_lshlrev_b32 v{U+1}, 1, v{U+1}')
    a(f'v_add_u32 v{vQE}, v{U+3}, v{U+1}')
    a(f'v_sub_u32 v{vQO}, v{U+3}, v{U+1}')
    a(f'v_add_u32 v{vQE+1}, {ADDR_SPLIT}, v{vQE}')
    a(f'v_add_u32 v{vQO+1}, {ADDR_SPLIT}, v{vQO}')
    srd(a, sP, 's72', 's73', 65536)
    a(f's_and_b32 s4, s{sWave}, 1')
    a('s_lshl_b32 s4, s4, 10')
    a(f's_lshl_b32 s5, s{sHead}, 11')
    a('s_add_u32 s5, s5, s4')
    a(f's_add_u32 m0, s4, {K1_WPHI}')
    a(f'buffer_load_dwordx4 v{vA}, s[{sP}:{sP+3}], s5 offen lds')
    a(f's_mov_b32 s{sCnt}, 0')
    a(f's_mov_b32 s{sU}, 0')
    stampv(a, cfg, 19, 3, 4)
    stampv(a, cfg, 19, 4, 4)
    a(f's_waitcnt vmcnt({vm.need([("B", 0)]) + 1})')
    a('s_barrier')
    stampv(a, cfg, 19, 5, 4)
    for cb in range(3):
        for i in range(4):
            bread(0, cb, i)
    stampv(a, cfg, 19, 6, 4)
    stamp(a, cfg, 2)
    stampv(a, cfg, 19, 7, 4)
    r = Rec()
    srd(r, sW, 's82', 's83', WS_USED)
    r(f's_lshl_b32 s{sWid}, s2, 2')
    r(f's_add_u32 s{sWid}, s{sWid}, s{sWave}')
    r(f's_lshl_b32 s{sWid}, s{sWid}, 10')
    touch_setup(r, sWave, sT, sTo, vTo, U, U + 1, '70', '76', '78', 4)
    r(f's_mul_i32 s4, s{sTs}, {256*cfg.get("k0_q", 1)}')
    r(f's_add_u32 s{sTo}, s{sTo}, s4')
    r(f's_lshl_b32 s{sTs}, s{sTs}, 7')
    r('s_mul_i32 s4, s2, 3584')
    r('s_and_b32 s81, s81, 0xffff')
    r(f's_cmp_eq_u32 s{sWave}, 3')
    r(f's_cselect_b32 s{sT}, s80, s{sT}')
    r(f's_cselect_b32 s{sT+1}, s81, s{sT+1}')
    r(f's_cselect_b32 s{sTo}, s4, s{sTo}')
    r('s_cselect_b64 s[4:5], -1, 0')
    r(f'v_lshlrev_b32 v{vCd}, 7, v{vLane}')
    r(f'v_cmp_gt_u32 vcc, 28, v{vLane}')
    r(f'v_cndmask_b32 v{U}, v{U+1}, v{vCd}, vcc')
    r(f'v_cndmask_b32 v{vTo}, v{vTo}, v{U}, s[4:5]')
    r(f'v_and_b32 v{U}, 31, v{vLane}')
    r(f'v_lshrrev_b32 v{U+1}, 5, v{vLane}')
    r(f'v_lshlrev_b32 v{U+1}, 2, v{U+1}')
    r(f'v_sub_u32 v{U}, v{U}, v{U+1}')
    r(f'v_mov_b32 v{U+2}, 0x3f80')
    r(f'v_mov_b32 v{U+3}, 0x3f800000')
    for t in range(2):
        for rho in range(4):
            c = 16 * t + 8 * (rho >> 1) + 2 * (rho & 1)
            r(f'v_cmp_eq_u32 vcc, {c}, v{U}')
            r(f'v_cmp_eq_u32 s[4:5], {c+1}, v{U}')
            r(f'v_cndmask_b32 v{U+4}, 0, v{U+2}, vcc')
            r(f'v_cndmask_b32 v{U+4}, v{U+4}, v{U+3}, s[4:5]')
            r(f'v_accvgpr_write_b32 a{aI+4*t+rho}, v{U+4}')
    r(f'v_mov_b32 v{U+4}, 0x3f803f80')
    for i in range(4):
        r(f'v_accvgpr_write_b32 a{aOnes+i}, v{U+4}')
    for i in range(4):
        r(f'v_mov_b32 v{T0+i}, -1')
    r(f's_add_u32 s{sEx}, s{sWid}, {EX_OFF}')
    inloop[0] = True
    waits = {}

    def w(key, n):
        waits.setdefault(key, []).append(n)
        return min(waits[key])

    def side(u, k):
        if k == 0:
            if cfg.get('k1_notouch'):
                return
            a(f'buffer_load_dword v{vTd}, v{vTo}, s[{sT}:{sT+3}], s{sTo} offen')
            a(f's_add_u32 s{sTo}, s{sTo}, s{sTs}')
            vm.issue(('T', u))
        elif k == 5:
            a(f's_cmp_lt_u32 s{sU}, 5')
            a(f's_cselect_b32 s{sEx}, s{sEx}, {WS_USED}')
        elif k == 6:
            a(f'buffer_store_dwordx4 {vr(T0,4)}, v{vA}, s[{sW}:{sW+3}], s{sEx} offen{POL[cfg.get("spol", 0)]}')
            a(f's_add_u32 s{sEx}, s{sEx}, 0x100000')
            vm.issue(('S', u))
        elif k == 7:
            a(f's_add_u32 s{sU}, s{sU}, 1')
        elif k == 4:
            a(f's_add_u32 s{sU}, s{sU}, 1')
            if cfg.get('prof') == 4 and cfg.get('ss'):
                a('s_memtime s[98:99]')
                a(f's_add_u32 m0, s{sU}, 31')
                a('s_waitcnt lgkmcnt(0)')
                a('v_writelane_b32 v19, s98, m0')

    def superstep(u, sched, first=False):
        sl = slot_of(u)
        key = 'f' if first else u % 3
        for cb in range(20):
            if cb == 0:
                a(f's_waitcnt vmcnt({w((key, "A"), vm.need([("A", u)]))}) lgkmcnt(8)')
            elif cb != 18:
                a('s_waitcnt lgkmcnt(8)')
            nu, ncb = (u, cb + 3) if cb + 3 < 20 else (u + 1, cb + 3 - 20)
            for m in range(8):
                tb, t = m >> 1, m & 1
                xf = ar(aX + sl * 32 + (t * 4 + tb) * 4, 4)
                wf = ar(aW + (cb % 4) * 8 + t * 4, 4)
                d = accs(cb, tb)
                c_ = '0' if (first and t == 0) else d
                if cb in (4, 5):
                    a(f'{M16} {d}, {xf}, {wf}, {c_}')
                else:
                    a(f'{M16} {d}, {wf}, {xf}, {c_}')
                if cb == 17:
                    if m == 3:
                        a(f's_waitcnt vmcnt({w((key, "B"), vm.need([("B", u + 1)]))}) lgkmcnt(0)')
                        if not cfg.get('k1_nobar'):
                            a('s_barrier')
                    if m >= 4:
                        bread(nu, ncb, m - 4)
                else:
                    if m in (0, 1, 2, 3):
                        bread(nu, ncb, m)
                for act in sched.get((cb, m), ()):
                    if act[0] == 'd':
                        dma(u + act[3], act[1], (act[2],))
                    elif act[0] == 'a':
                        aload(u + act[2], act[1])
                    elif act[0] == 'x':
                        a(act[1])
                    else:
                        side(u, act[1])

    def put(sc, cb, m, act):
        sc.setdefault((cb, m), []).append(act)
    sched = {}
    sch0 = {}
    if cfg.get('k1_a1', 1) == 0:
        for i in range(10):
            for p_ in range(3):
                put(sched, i, 4 + p_, ('d', i, p_, 2))
        for i in range(7):
            put(sched, 10 + i, 5, ('a', i, 2))
        put(sched, 17, 0, ('a', 7, 2))
        for i in range(10):
            cb, m0_ = i // 2, (1 if i % 2 == 0 else 5)
            for p_ in range(3):
                put(sch0, cb, m0_ + p_ - 1, ('d', i, p_, 1))
        for i in range(8):
            put(sch0, 5 + i // 2, 1 + 4 * (i % 2), ('a', i, 1))
        for i in range(10):
            cb, m0_ = 9 + i // 2, (1 if i % 2 == 0 else 5)
            for p_ in range(3):
                put(sch0, cb, m0_ + p_ - 1, ('d', i, p_, 2))
        for i in range(8):
            put(sch0, 14 + (i // 2 if i < 6 else 4 + (i - 6)), 1 + 4 * (i % 2) if i < 6 else 5, ('a', i, 2))
    else:
        for i in range(8):
            put(sched, i, 5, ('a', i, 1))
        for i in range(9):
            for p_ in range(3):
                put(sched, 8 + i, 4 + p_, ('d', i, p_, 2))
        for p_ in range(3):
            put(sched, 17, p_, ('d', 9, p_, 2))
        for i in range(10):
            for p_ in range(3):
                put(sch0, (i * 8) // 10 if False else i // 2 + (i // 2 > 9), (0 if i % 2 == 0 else 4) + p_, ('d', i, p_, 1))
        for i in range(8):
            put(sch0, 5 + i // 2, 1 + 4 * (i % 2), ('a', i, 1))
        for i in range(8):
            for p_ in range(3):
                put(sch0, 9 + i, 4 + p_, ('d', i, p_, 2))
        for p_ in range(3):
            put(sch0, 17, p_, ('d', 8, p_, 2))
            put(sch0, 18, 4 + p_, ('d', 9, p_, 2))
    for (cb, m, k) in ((18, 5, 0), (19, 4, 5), (19, 5, 6), (19, 6, 4)):
        put(sched, cb, m, ('s', k))
    items = r.items()
    slots = [(cb, m) for cb in range(17) for m in range(8) if m != 1]
    slots.sort()
    assert len(items) <= len(slots), (len(items), len(slots))
    for it, (cb, m) in zip(items, slots):
        put(sch0, cb, m, ('x', it))
    put(sch0, 19, 6, ('s', 0))
    put(sch0, 19, 7, ('s', 4))
    superstep(0, sch0, True)
    q0 = list(vm.q)
    sl_, sh_ = a.lines, a.hist
    a.lines = []
    for u in range(1, 10):
        superstep(u, sched)
    a.lines, a.hist = sl_, sh_
    vm.q = list(q0)
    if cfg.get('verbose'):
        print(waits)
    a.raw('.p2align 6')
    a.label(f'{L}_loop')
    for u in (1, 2, 3):
        superstep(u, sched)
    a(f's_add_u32 s{sCnt}, s{sCnt}, 1')
    a(f's_cmp_lg_u32 s{sCnt}, 2')
    a(f's_cbranch_scc1 {L}_n1')
    a(f's_cmp_eq_u32 s{sWave}, 3')
    a(f's_cbranch_scc1 {L}_n1')
    srd(a, sT, 's74', 's75', 1024 * 2048)
    a(f's_mul_i32 s{sTo}, s2, 3')
    a(f's_add_u32 s{sTo}, s{sTo}, s{sWave}')
    a(f's_lshl_b32 s{sTo}, s{sTo}, 10')
    a(f's_mov_b32 s{sTs}, {768*1024}')
    a(f'v_mov_b32 v{vTo}, 0x1000000')
    a(f'v_cmp_gt_u32 vcc, 8, v{vLane}')
    a(f'v_cndmask_b32 v{vTo}, v{vTo}, v{vCd}, vcc')
    a.label(f'{L}_n1')
    a(f's_cmp_lg_u32 s{sCnt}, {3 if cfg.get("l2lines", 0) else 99}')
    a(f's_cbranch_scc1 {L}_n2')
    NL = cfg.get('l2lines', 0)
    a('s_and_b32 s4, s2, 1')
    a(f's_mul_i32 s4, s4, {1792*2048}')
    srd_off(a, sT, 's80', 's81', 's4', 1792 * 2048)
    a('s_lshr_b32 s4, s2, 3')
    a('s_lshl_b32 s4, s4, 2')
    a(f's_add_u32 s4, s4, s{sWave}')
    if cfg.get('k3_map', 0) == 0:
        a(f's_mul_i32 s{sTo}, s4, {NL*128}')
        a(f's_add_u32 s{sTo}, s{sTo}, {5*128*NL*128}')
        a(f's_mov_b32 s{sTs}, {(-128*NL*128) & 0xffffffff}')
        a(f'v_mov_b32 v{vTo}, 0x1000000')
        a(f'v_cmp_gt_u32 vcc, {NL}, v{vLane}')
        a(f'v_cndmask_b32 v{vTo}, v{vTo}, v{vCd}, vcc')
    else:
        a(f's_mul_i32 s{sTo}, s4, {3*2048}')
        a('s_bfe_u32 s4, s2, 0x10001')
        a('s_lshl_b32 s4, s4, 10')
        a(f's_add_u32 s{sTo}, s{sTo}, s4')
        a(f's_add_u32 s{sTo}, s{sTo}, {5*384*2048}')
        a(f's_mov_b32 s{sTs}, {(-384*2048) & 0xffffffff}')
        a(f'v_lshrrev_b32 v24, 3, v{vLane}')
        a(f'v_lshlrev_b32 v24, 10, v24')
        a(f'v_add_u32 v{vCd}, v{vCd}, v24')
        a(f'v_mov_b32 v{vTo}, 0x1000000')
        a(f'v_cmp_gt_u32 vcc, 24, v{vLane}')
        a(f'v_cndmask_b32 v{vTo}, v{vTo}, v{vCd}, vcc')
    a.label(f'{L}_n2')
    a(f's_cmp_lt_u32 s{sCnt}, 5')
    a(f's_cbranch_scc1 {L}_loop')
    inloop[0] = False

    stamp(a, cfg, 3)
    stampv(a, cfg, 19, 8, 4)
    wphi_addr(a, 20, 21, vLane, K1_WPHI)
    for t in range(2):
        for h in range(2):
            a(f'ds_read_b64_tr_b16 {ar(aWp+4*t+2*h, 2)}, v20 offset:{(16*t+4*h)*64}')
    a(f's_lshl_b32 s3, s{sMt}, 3')
    a(f's_lshl_b32 s4, s{sWave}, 1')
    a('s_add_u32 s3, s3, s4')
    a('s_lshl_b32 s4, s3, 12')
    a(f's_add_u32 s4, s4, {HO_OFF}')
    a(f's_mul_i32 s5, s{sHead}, 7')
    for j in range(7):
        a(f's_add_u32 s6, s5, {j}')
        a('s_lshr_b32 s7, s6, 2')
        a('s_lshl_b32 s7, s7, 18')
        a('s_and_b32 s6, s6, 3')
        a('s_lshl_b32 s6, s6, 10')
        a('s_add_u32 s6, s6, s7')
        a(f's_add_u32 s{49+j}, s6, s4')
    a(f'v_add_u32 v{vDma}, 4096, v{vA}')
    a('s_lshl_b32 s84, s3, 16')
    a(f's_lshl_b32 s85, s{sHead}, 11')
    a('s_add_u32 s84, s84, s85')
    a(f's_add_u32 s84, s84, {Q_OFF}')
    a('s_add_u32 s85, s84, 65536')
    a(f's_mov_b32 s44, {LOG2E}')
    a(f's_mov_b32 s45, {LOG2E}')
    a('s_mov_b32 s46, 0xffff0000')
    HPOL = {0: '', 1: ' nt', 2: ' sc1', 3: ' sc0 sc1'}[cfg.get('hpol', 2)]
    stores = []
    for n in range(14):
        j, rb = n >> 1, n & 1
        G = ACC_V + n * 16
        D = ACC_V + n * 4
        if cfg.get('h_round'):
            pass
        for i in range(0, 8, 2):
            a(f'v_pk_mul_f32 v[{G+i}:{G+i+1}], v[{G+i}:{G+i+1}], v[{G+8+i}:{G+9+i}]')
        for i in range(4):
            a(f'v_cvt_pk_bf16_f32 v{D+i}, v{G+2*i}, v{G+2*i+1}')
        if n:
            P = D - 4
            a(f'v_permlane16_swap_b32 v{P}, v{P+2}')
            a(f'v_permlane16_swap_b32 v{P+1}, v{P+3}')
            if n % 3 == 0 and stores:
                a(stores.pop(0))
        stores.append(f'buffer_store_dwordx4 v[{D}:{D+3}], v{vDma if rb else vA}, s[{sW}:{sW+3}], s{49+j} offen{HPOL}')
    P = ACC_V + 13 * 4
    a(f'v_permlane16_swap_b32 v{P}, v{P+2}')
    a(f'v_permlane16_swap_b32 v{P+1}, v{P+3}')
    stampv(a, cfg, 19, 9, 4)
    a.sprinkle(stores, 28)

    def base(rb):
        return 96 + rb * 80
    KVp, KVm, Zp, Zm = 0, 16, 32, 48

    def conv_T(cb0, rb, tmp, dst):
        for db in range(2):
            for tl in range(2):
                s_ = acc(cb0 + db, rb * 2 + tl)[1]
                for i in range(4):
                    a(f'v_accvgpr_read_b32 v{tmp+db*8+tl*4+i}, a{s_+i}')
        for i in range(8):
            a(f'v_cvt_pk_bf16_f32 v{dst+i}, v{tmp+2*i}, v{tmp+2*i+1}')

    def swaps16(dst):
        for f in range(2):
            a(f'v_permlane16_swap_b32 v{dst+4*f}, v{dst+4*f+2}')
            a(f'v_permlane16_swap_b32 v{dst+4*f+1}, v{dst+4*f+3}')

    for rb in range(2):
        conv_T(2, rb, base(rb) + 16, base(rb) + 32)
    for rb in range(2):
        swaps16(base(rb) + 32)
    a('s_waitcnt lgkmcnt(0)')
    for t in range(2):
        for rb in range(2):
            b = base(rb)
            a(f'{M32} {vr(b,16)}, {ar(aWp+4*t,4)}, {vr(b+32+4*t,4)}, {vr(b,16) if t else 0}')
    for rb in range(2):
        conv_T(0, rb, base(rb) + 16, base(rb) + 64)
    for rb in range(2):
        swaps16(base(rb) + 64)
    a.sprinkle([f'buffer_store_dwordx4 {vr(base(rb)+64+4*t,4)}, v{vA}, s[{sW}:{sW+3}], s{84+rb} offen offset:{t*1024}'
                for rb in range(2) for t in range(2)], 28)
    for rb in range(2):
        b = base(rb)
        for tl in range(2):
            for db in range(2):
                s_ = acc(4 + db, rb * 2 + tl)[1]
                for i in range(4):
                    a(f'v_accvgpr_read_b32 v{b+16+tl*8+db*4+i}, a{s_+i}')
        for i in range(8):
            a(f'v_cvt_pk_bf16_f32 v{b+56+i}, v{b+16+2*i}, v{b+16+2*i+1}')
    for rb in range(2):
        swaps16(base(rb) + 56)
    for rb in range(2):
        d = base(rb) + 56
        for f in range(2):
            a(f'v_permlane32_swap_b32 v{d+4*f}, v{d+4*f+2}')
            a(f'v_permlane32_swap_b32 v{d+4*f+1}, v{d+4*f+3}')
    stampv(a, cfg, 19, 10, 4)
    softmax_pm(a, [dict(P=base(rb), E=base(rb) + 16, T=base(rb) + 32, O=base(rb) + 40) for rb in range(2)], 's[44:45]', 's46')
    stampv(a, cfg, 19, 11, 4)
    for t in range(2):
        for rb in range(2):
            b = base(rb)
            for pm in range(2):
                d = vr(b + 16 * pm, 16)
                a(f'{M32} {d}, {vr(b+40+8*pm+4*t,4)}, {ar(aI+4*t,4)}, {d if t else 0}')
    a.flush()
    a(f's_lshl_b32 s3, s{sWave}, 13')
    a(f's_add_u32 s3, s3, {K1_RED}')
    a(f'v_add_u32 v20, s3, v{vA}')
    a(f's_lshl_b32 s3, s{sWave}, 9')
    a(f's_add_u32 s3, s3, {K1_ZR}')
    a(f'v_lshlrev_b32 v21, 2, v{vLane}')
    a('v_add_u32 v22, s3, v21')
    a(f's_lshl_b32 s3, s{sWave}, 11')
    a(f's_add_u32 s3, s3, {K1_RED}')
    a(f'v_add_u32 v23, s3, v{vA}')
    a(f'v_lshrrev_b32 v8, 5, v{vLane}')
    a('v_lshlrev_b32 v8, 8, v8')
    a(f'v_and_b32 v9, 31, v{vLane}')
    a('v_lshl_add_u32 v8, v9, 2, v8')
    a(f'v_add_u32 v8, {K1_ZR}, v8')
    a(f's_lshl_b32 s3, s{sHead}, 3')
    a(f's_add_u32 s3, s3, s{sMt}')
    a('s_lshl_b32 s47, s3, 13')
    a(f's_lshl_b32 s48, s{sWave}, 11')
    a('s_add_u32 s47, s47, s48')
    a(f's_add_u32 s47, s47, {KVP_OFF}')
    a('s_lshl_b32 s48, s3, 8')
    a(f's_add_u32 s48, s48, {ZP_OFF}')
    first = True
    for rb in range(2):
        b = base(rb)
        for pm in range(2):
            for i in range(8):
                a(f'v_cvt_pk_bf16_f32 v{b+40+8*pm+i}, v{b+16*pm+2*i}, v{b+16*pm+2*i+1}')
        for t in range(2):
            for pm in range(2):
                d = ar(KVm if pm else KVp, 16)
                a(f'{M32} {d}, {vr(b+40+8*pm+4*t,4)}, {vr(b+56+4*t,4)}, {0 if first else d}')
            for pm in range(2):
                d = ar(Zm if pm else Zp, 16)
                a(f'{M32} {d}, {ar(aOnes,4)}, {vr(b+40+8*pm+4*t,4)}, {0 if first else d}')
            first = False
    stampv(a, cfg, 19, 12, 4)
    for q in range(8):
        a(f'ds_write_b128 v20, {ar(KVp+4*q,4)} offset:{q*1024}')
    a(f'ds_write_b32 v22, a{Zp}')
    a(f'ds_write_b32 v22, a{Zm} offset:256')
    a('s_waitcnt lgkmcnt(0)')
    a('s_barrier')
    R = 96
    for w_ in range(4):
        for q in range(2):
            a(f'ds_read_b128 {vr(R+w_*8+q*4,4)}, v23 offset:{w_*8192+q*1024}')
    for w_ in range(4):
        a(f'ds_read_b32 v{R+32+w_}, v8 offset:{w_*512}')
    a('s_waitcnt lgkmcnt(8)')
    for i in range(0, 8, 2):
        a(f'v_pk_add_f32 v[{R+i}:{R+1+i}], v[{R+i}:{R+1+i}], v[{R+8+i}:{R+9+i}]')
    a('s_waitcnt lgkmcnt(4)')
    for i in range(0, 8, 2):
        a(f'v_pk_add_f32 v[{R+16+i}:{R+17+i}], v[{R+16+i}:{R+17+i}], v[{R+24+i}:{R+25+i}]')
    for i in range(0, 8, 2):
        a(f'v_pk_add_f32 v[{R+i}:{R+1+i}], v[{R+i}:{R+1+i}], v[{R+16+i}:{R+17+i}]')
    a(f'buffer_store_dwordx4 {vr(R,4)}, v{vA}, s[{sW}:{sW+3}], s47 offen')
    a(f'buffer_store_dwordx4 {vr(R+4,4)}, v{vA}, s[{sW}:{sW+3}], s47 offen offset:1024')
    stampv(a, cfg, 19, 13, 4)
    stampv_store(a, cfg, 19, 18, 4)
    a(f's_cmp_lg_u32 s{sWave}, 0')
    a(f's_cbranch_scc1 {L}_end')
    a('s_waitcnt lgkmcnt(0)')
    a(f'v_add_f32 v{R+32}, v{R+32}, v{R+33}')
    a(f'v_add_f32 v{R+34}, v{R+34}, v{R+35}')
    a(f'v_add_f32 v{R+32}, v{R+32}, v{R+34}')
    a(f'buffer_store_dword v{R+32}, v21, s[{sW}:{sW+3}], s48 offen')
    if cfg.get('prof'):
        a('s_waitcnt vmcnt(0)')
    stamp(a, cfg, 4)
    stamp(a, cfg, 5)
    stamp_store(a, cfg, 1)
    a.label(f'{L}_end')
    a('s_endpgm')
    return L, kernel_desc(L, 512, 102, 256), (256, 256, K1_LDS)


NOSENT = [0]
KVEVERY = [8]


def ophase(a, sWphiLo, sHead, sMt, sWave, vLane, vL16, sW, sP, sT, vb, sc, sEx):
    L_KV, L_WP, L_Z = 0, 4096, 6144
    srd(a, sP, f's{sWphiLo}', f's{sWphiLo+1}', 65536)
    a(f's_and_b32 s{sT}, s{sWave}, 1')
    a(f's_lshl_b32 s{sT}, s{sT}, 10')
    a(f's_lshl_b32 s{sT+1}, s{sHead}, 11')
    a(f's_add_u32 s{sT+1}, s{sT+1}, s{sT}')
    a(f's_add_u32 m0, s{sT}, {L_WP}')
    a(f'buffer_load_dwordx4 v{vL16}, s[{sP}:{sP+3}], s{sT+1} offen lds')
    QF = vb + 80
    a(f's_lshl_b32 s{sT+2}, s{sMt}, 3')
    a(f's_lshl_b32 s{sT+1}, s{sWave}, 1')
    a(f's_add_u32 s{sT+2}, s{sT+2}, s{sT+1}')
    a(f's_lshl_b32 s{sT}, s{sT+2}, 16')
    a(f's_lshl_b32 s{sT+1}, s{sHead}, 11')
    a(f's_add_u32 s{sT}, s{sT}, s{sT+1}')
    a(f's_add_u32 s{sT}, s{sT}, {Q_OFF}')
    a(f's_add_u32 s{sT+3}, s{sT}, 65536')
    for rb in range(2):
        for t in range(2):
            a(f'buffer_load_dwordx4 {vr(QF+rb*8+t*4,4)}, v{vL16}, s[{sW}:{sW+3}], s{sT+3*rb} offen offset:{t*1024}')
    a(f's_lshl_b32 s{sT+4}, s{sT+2}, 12')
    a(f's_lshr_b32 s{sT+1}, s{sHead}, 1')
    a(f's_lshl_b32 s{sT+1}, s{sT+1}, 18')
    a(f's_add_u32 s{sT+4}, s{sT+4}, s{sT+1}')
    a(f's_and_b32 s{sT+1}, s{sHead}, 1')
    a(f's_lshl_b32 s{sT+1}, s{sT+1}, 11')
    a(f's_add_u32 s{sT+4}, s{sT+4}, s{sT+1}')
    a(f's_add_u32 s{sT+4}, s{sT+4}, {HO_OFF + 56*0x40000}')
    a(f's_add_u32 s{sT+5}, s{sT+4}, 4096')
    KL = vb
    ZL = vb + 64
    vT = vb + 72

    def kvloads():
        a(f's_lshl_b32 s{sT}, s{sHead}, 16')
        a(f's_lshl_b32 s{sT+1}, s{sWave}, 11')
        a(f's_add_u32 s{sT}, s{sT}, s{sT+1}')
        a(f's_add_u32 s{sT}, s{sT}, {KVP_OFF}')
        a(f's_lshl_b32 s{sT+1}, s{sHead}, 11')
        a(f's_add_u32 s{sT+1}, s{sT+1}, {ZP_OFF}')
        a(f'v_lshlrev_b32 v{vT}, 2, v{vLane}')
        it = []
        for m in range(8):
            for q in range(2):
                t = f'buffer_load_dwordx4 {vr(KL+m*8+q*4,4)}, v{vL16}, s[{sW}:{sW+3}], s{sT} offen offset:{q*1024}'
                if q == 1:
                    t += f'\ns_add_u32 s{sT}, s{sT}, 8192'
                it.append(t)
        for m in range(8):
            it.append(f'buffer_load_dword v{ZL+m}, v{vT}, s[{sW}:{sW+3}], s{sT+1} offen offset:{m*256}')
        return it
    B0 = vb + 96
    WP = vb + 208
    a(f's_mov_b32 s{sT+6}, {LOG2E}')
    a(f's_mov_b32 s{sT+7}, {LOG2E}')
    a(f's_mov_b32 s{sT+8}, 0xffff0000')
    a(f's_lshl_b32 s{sT}, s{sWave}, 10')
    a(f's_add_u32 s{sT}, s{sT}, {L_KV}')
    a(f'v_add_u32 v{vT+1}, s{sT}, v{vL16}')
    a(f'v_lshlrev_b32 v{vT+2}, 1, v{vLane}')
    a(f'v_lshrrev_b32 v{vT+4}, 5, v{vLane}')
    a(f'v_lshlrev_b32 v{vT+4}, 3, v{vT+4}')
    wphi_addr(a, vT + 3, vT + 5, vLane, 0)

    def base(rb):
        return B0 + rb * 56
    a('s_waitcnt vmcnt(0)')
    a('s_barrier')
    for t in range(2):
        for h in range(2):
            a(f'ds_read_b64_tr_b16 {vr(WP+4*t+2*h,2)}, v{vT+3} offset:{L_WP+(16*t+4*h)*64}')
    a('s_waitcnt lgkmcnt(0)')
    for t in range(2):
        for rb in range(2):
            d = vr(base(rb), 16)
            a(f'{M32} {d}, {vr(WP+4*t,4)}, {vr(QF+rb*8+t*4,4)}, {d if t else 0}')
    a.sprinkle(kvloads(), KVEVERY[0])
    softmax_pm(a, [dict(P=base(rb), E=base(rb) + 16, T=base(rb) + 32, O=base(rb) + 40) for rb in range(2)],
               f's[{sT+6}:{sT+7}]', f's{sT+8}')
    a.flush()
    a('s_waitcnt vmcnt(8)')
    for stride in (32, 16, 8):
        for o in range(0, stride, 2):
            a(f'v_pk_add_f32 v[{KL+o}:{KL+o+1}], v[{KL+o}:{KL+o+1}], v[{KL+stride+o}:{KL+stride+o+1}]')
    for i in range(4):
        a(f'v_cvt_pk_bf16_f32 v{KL+i}, v{KL+2*i}, v{KL+2*i+1}')
    a(f'ds_write_b128 v{vT+1}, {vr(KL,4)}')
    a('s_waitcnt vmcnt(0)')
    for stride in (4, 2):
        for o in range(0, stride, 2):
            a(f'v_pk_add_f32 v[{ZL+o}:{ZL+o+1}], v[{ZL+o}:{ZL+o+1}], v[{ZL+stride+o}:{ZL+stride+o+1}]')
    a(f'v_add_f32 v{ZL}, v{ZL}, v{ZL+1}')
    a(f'v_cvt_pk_bf16_f32 v{ZL}, v{ZL}, v{ZL}')
    a(f'ds_write_b16 v{vT+2}, v{ZL} offset:{L_Z}')
    a('s_waitcnt lgkmcnt(0)')
    a('s_barrier')
    KVF = vb + 8
    ZF = vb + 24
    for f in range(4):
        a(f'ds_read_b128 {vr(KVF+4*f,4)}, v{vL16} offset:{L_KV+f*1024}')
    for f in range(4):
        for h in range(2):
            a(f'ds_read_b64 {vr(ZF+4*f+2*h,2)}, v{vT+4} offset:{L_Z+f*32+h*16}')
    a('s_waitcnt lgkmcnt(0)')
    for f in range(4):
        for rb in range(2):
            b = base(rb)
            a(f'{M32} {vr(b+16,16)}, {vr(ZF+4*f,4)}, {vr(b+40+4*f,4)}, {vr(b+16,16) if f else 0}')
            a(f'{M32} {vr(b,16)}, {vr(KVF+4*f,4)}, {vr(b+40+4*f,4)}, {vr(b,16) if f else 0}')
    for rb in range(2):
        D = base(rb) + 16
        a(f'v_add_f32 v{D}, 0x358637bd, v{D}')
        a(f'v_rcp_f32 v{D}, v{D}')
    for rb in range(2):
        b = base(rb)
        D = b + 16
        for i in range(0, 16, 2):
            a(f'v_pk_mul_f32 v[{b+i}:{b+i+1}], v[{b+i}:{b+i+1}], v[{D}:{D+1}] op_sel_hi:[1,0]')
        for i in range(8):
            a(f'v_cvt_pk_bf16_f32 v{b+32+i}, v{b+2*i}, v{b+2*i+1}')
        a(f'buffer_store_dwordx4 {vr(b+32,4)}, v{vL16}, s[{sW}:{sW+3}], s{sT+4+rb} offen{sc}')
        a(f'buffer_store_dwordx4 {vr(b+36,4)}, v{vL16}, s[{sW}:{sW+3}], s{sT+4+rb} offen offset:1024{sc}')


CH = 16384
K3_LDS = 4 * CH


def gen_k3(a, cfg):
    L = 'k3_gemm2_kernel'
    kernel_head(a, L)
    sB, sW, sX, sO = 8, 12, 16, 20
    sWave, sMt, sCt, sP, sAo, sBo, sCnt, sDst, sB2, sEo, sEi, sFl, sOb, sXo, sBq, sBs = range(24, 40)
    vLane, vL16, vR1, vR2, vXo, vFl, vZ, vD = 1, 2, 3, 7, 9, 11, 15, 12
    ACC, BF2, AR, BF1, ID8, vId, vB = 16, 80, 112, 176, 240, 248, 252
    AX = 176
    EXR, TMP, XP = 176, 192, 224
    MAIN_FIRST = cfg.get('k3_mainfirst', 0)
    a('s_cmp_ge_u32 s2, 512')
    a(f's_cbranch_scc1 {L}_end')
    a(f's_load_dwordx2 s[48:49], s[0:1], {KA_WS}')
    a(f's_load_dwordx4 s[44:47], s[0:1], {KA_WD}')
    a(f's_load_dwordx2 s[40:41], s[0:1], {KA_X}')
    a(f's_load_dwordx2 s[42:43], s[0:1], {KA_WPHI}')
    a(f's_load_dwordx2 s[66:67], s[0:1], {KA_WO}')
    a('v_lshrrev_b32 v8, 6, v0')
    a(f'v_and_b32 v{vLane}, 63, v0')
    a(f'v_readfirstlane_b32 s{sWave}, v8')
    a(f'v_lshlrev_b32 v{vL16}, 4, v{vLane}')
    a('s_cmp_ge_u32 s2, 256')
    a(f's_cbranch_scc{0 if MAIN_FIRST else 1} {L}_main')
    if cfg.get('k3_hprio'):
        a(f's_setprio {cfg["k3_hprio"]}')
    if cfg.get('k3_nohelp'):
        a('s_endpgm')
    a('s_and_b32 s50, s2, 7')
    a('s_lshl_b32 s50, s50, 2')
    a('s_bfe_u32 s51, s2, 0x20003')
    a('s_add_u32 s25, s50, s51')
    a('s_bfe_u32 s26, s2, 0x30005')
    a('s_waitcnt lgkmcnt(0)')
    srd(a, sW, 's48', 's49', WS_USED)
    ophase(a, 42, 25, 26, sWave, vLane, vL16, sW, 16, 52, 8, ' sc1', None)
    a('s_waitcnt vmcnt(0)')
    a('s_barrier')
    a(f's_cmp_lg_u32 s{sWave}, 0')
    a(f's_cbranch_scc1 {L}_end')
    a('s_lshl_b32 s50, s26, 7')
    a(f's_add_u32 s50, s50, {CNT_OFF}')
    a('v_mov_b32 v3, 1')
    a('v_mov_b32 v4, 0')
    a('s_mov_b64 exec, 1')
    a(f'buffer_atomic_add v3, v4, s[{sW}:{sW+3}], s50 offen sc1')
    a('s_endpgm')
    a.label(f'{L}_main')
    a.reset()
    a('s_and_b32 s2, s2, 255')
    stamp(a, cfg, 0)
    stamp(a, cfg, 1)
    a(f's_and_b32 s{sP}, s2, 1')
    if cfg.get('k3_map', 0) == 0:
        a('s_bfe_u32 s50, s2, 0x20001')
        a('s_lshl_b32 s50, s50, 2')
        a('s_bfe_u32 s51, s2, 0x20003')
        a(f's_add_u32 s{sMt}, s50, s51')
        a(f's_lshr_b32 s{sCt}, s2, 5')
    else:
        a('s_bfe_u32 s50, s2, 0x10002')
        a('s_lshl_b32 s50, s50, 3')
        a('s_bfe_u32 s51, s2, 0x30003')
        a(f's_add_u32 s{sMt}, s50, s51')
        a('s_bfe_u32 s50, s2, 0x10001')
        a('s_lshl_b32 s50, s50, 2')
        a('s_lshr_b32 s51, s2, 6')
        a(f's_add_u32 s{sCt}, s50, s51')
    a(f's_lshl_b32 s50, s{sMt}, 2')
    a(f's_add_u32 s50, s50, s{sWave}')
    a(f's_lshl_b32 s{sOb}, s50, 12')
    a(f's_add_u32 s{sOb}, s{sOb}, {HO_OFF}')
    a(f's_mul_i32 s52, s{sP}, {28*0x40000}')
    a(f's_add_u32 s{sAo}, s{sOb}, s52')
    a(f's_add_u32 s{sOb}, s{sOb}, {56*0x40000}')
    a(f's_mul_i32 s{sBo}, s{sP}, {1792*2048}')
    a(f's_lshl_b32 s52, s{sWave}, 15')
    a(f's_add_u32 s{sBo}, s{sBo}, s52')
    a(f's_lshl_b32 s52, s{sCt}, 8')
    a(f's_add_u32 s{sBo}, s{sBo}, s52')
    a(f's_movk_i32 s{sBq}, 8192')
    a(f's_mov_b32 s{sBs}, {0x20000 - 4*8192}')
    a(f's_lshl_b32 s{sDst}, s{sWave}, 12')
    a(f'v_lshrrev_b32 v12, 4, v{vLane}')
    a('v_and_b32 v13, 1, v12')
    a('v_and_b32 v14, 2, v12')
    a('v_lshlrev_b32 v13, 1, v13')
    a('v_lshl_or_b32 v13, v14, 2, v13')
    a(f'v_and_b32 v14, 15, v{vLane}')
    a('v_xor_b32 v13, v13, v14')
    a('v_lshlrev_b32 v12, 11, v12')
    a(f'v_lshl_add_u32 v{vB}, v13, 4, v12')
    a(f'v_lshrrev_b32 v12, 5, v{vLane}')
    a(f'v_bfe_u32 v13, v{vLane}, 2, 2')
    a(f'v_and_b32 v14, 1, v{vLane}')
    a('v_lshlrev_b32 v11, 6, v14')
    a(f'v_bfe_u32 v14, v{vLane}, 4, 1')
    a('v_lshl_add_u32 v11, v14, 4, v11')
    a(f'v_bfe_u32 v14, v{vLane}, 1, 1')
    a('v_lshl_add_u32 v11, v14, 3, v11')
    a('v_lshrrev_b32 v14, 1, v13')
    a('v_lshl_add_u32 v15, v12, 2, v13')
    a('v_lshl_add_u32 v15, v15, 7, v11')
    a(f'v_lshl_add_u32 v{vR2}, v14, 5, v15')
    a(f'v_xor_b32 v{vR2+1}, 32, v{vR2}')
    a('v_lshl_add_u32 v15, v12, 3, v13')
    a('v_lshl_add_u32 v15, v15, 8, v11')
    a('v_lshl_add_u32 v15, v14, 7, v15')
    a('v_and_b32 v14, 1, v13')
    a('v_lshl_add_u32 v15, v14, 5, v15')
    a(f's_lshl_b32 s54, s{sP}, 7')
    a(f'v_xor_b32 v{vR1}, s54, v15')
    a(f'v_xor_b32 v{vR1+1}, 32, v{vR1}')
    a(f'v_xor_b32 v{vR1+2}, 0x80, v{vR1}')
    a(f'v_xor_b32 v{vR1+3}, 0xa0, v{vR1}')
    for i in range(4):
        a(f'v_mov_b32 v{12+i}, 0')
    a('s_waitcnt lgkmcnt(0)')
    srd(a, sB, 's44', 's45', 3584 * 2048)
    srd(a, sW, 's48', 's49', WS_USED)

    vm = VmQ()
    inloop = [False]

    def dma_next(chunk):
        a(f's_add_u32 s{sBo}, s{sBo}, s{sBs}')
        a(f's_add_u32 m0, s{sDst}, {(chunk % 4)*CH}')

    def dma_switch():
        a(f's_cmp_eq_u32 s{sCnt}, 6')
        a(f's_cselect_b32 s{sBo}, s{sB2}, s{sBo}')
        a(f's_cselect_b32 s{sBs}, {0x40000 - 4*16384}, s{sBs}')
        a(f's_cselect_b32 s{sBq}, 16384, s{sBq}')
        a(f's_cselect_b32 s{sB}, s66, s{sB}')
        a(f's_cselect_b32 s{sB+1}, s67, s{sB+1}')
        a(f's_cselect_b32 s{sB+2}, {1024*2048}, s{sB+2}')
        a('s_cselect_b64 s[56:57], -1, 0')
        a(f'v_cndmask_b32 v{vB}, v{vB}, v{vB+1}, s[56:57]')

    def dma_q(chunk, u):
        if inloop[0] and cfg.get('k3_nob'):
            vm.issue(('B', chunk), 0)
            return
        a(f'buffer_load_dwordx4 v{vB}, s[{sB}:{sB+3}], s{sBo} offen lds')
        a(f's_add_u32 s{sBo}, s{sBo}, s{sBq}')
        if u < 3:
            a('s_add_u32 m0, m0, 1024')
        vm.issue(('B', chunk))

    def aload_to(reg, step, tag):
        if inloop[0] and cfg.get('k3_noa'):
            vm.issue((tag, step), 0)
            return
        a(f'buffer_load_dwordx4 {vr(reg,4)}, v{vL16}, s[{sW}:{sW+3}], s{sAo} offen offset:{(step&3)*1024} sc1')
        vm.issue((tag, step))
        if (step & 3) == 3:
            a(f's_add_u32 s{sAo}, s{sAo}, 0x40000')

    def aload(step):
        aload_to(AR + 4 * (step % 16), step, 'A')

    def bread1(step, blk):
        slot = (step >> 2) % 4
        e = step % 4
        for h in range(2):
            off = slot * CH + ((step & 3) * 16 + 4 * h) * 256
            a(f'ds_read_b64_tr_b16 {vr(BF1+e*16+blk*4+2*h,2)}, v{vR1+blk} offset:{off}')

    def bread2(step, b):
        slot = (step >> 3) % 4
        e = step % 4
        for h in range(2):
            off = slot * CH + ((step & 7) * 16 + 8 * h) * 128
            a(f'ds_read_b64_tr_b16 {vr(BF2+e*8+b*4+2*h,2)}, v{vR2+b} offset:{off}')

    r = Rec()
    for b in range(4):
        r(f'{M32} {vr(ACC+16*b,16)}, v[12:15], v[12:15], 0')
    srd(r, sX, 's40', 's41', 0x400000)
    srd(r, sO, 's46', 's47', 0x400000)
    r('s_and_b32 s67, s67, 0xffff')
    r(f's_lshl_b32 s53, s{sCt}, 1')
    r(f's_add_u32 s53, s53, s{sP}')
    r(f's_lshl_b32 s{sB2}, s53, 7')
    r(f's_lshl_b32 s54, s{sWave}, 16')
    r(f's_add_u32 s{sB2}, s{sB2}, s54')
    r(f'v_lshrrev_b32 v{vId}, 3, v{vLane}')
    r(f'v_and_b32 v{vId+1}, 2, v{vId}')
    r(f'v_and_b32 v{vId+2}, 7, v{vLane}')
    r(f'v_xor_b32 v{vId+1}, v{vId+1}, v{vId+2}')
    r(f'v_lshlrev_b32 v{vId}, 11, v{vId}')
    r(f'v_lshl_add_u32 v{vB+1}, v{vId+1}, 4, v{vId}')
    r('s_lshl_b32 s54, s2, 2')
    r(f's_add_u32 s54, s54, s{sWave}')
    r(f's_lshl_b32 s{sEi}, s54, 10')
    r(f's_add_u32 s{sEi}, s{sEi}, {EX_OFF}')
    r(f's_xor_b32 s{sEo}, s{sEi}, 0x1000')
    r(f's_lshr_b32 s{sFl}, s{sMt}, 1')
    r(f's_lshl_b32 s{sFl}, s{sFl}, 7')
    r(f's_add_u32 s{sFl}, s{sFl}, {CNT_OFF}')
    r(f's_lshl_b32 s{sXo}, s50, 16')
    r('s_lshl_b32 s55, s53, 7')
    r(f's_add_u32 s{sXo}, s{sXo}, s55')
    r(f'v_lshrrev_b32 v{vId+1}, 4, v{vLane}')
    r(f'v_xor_b32 v{vId+1}, v{vId+1}, v{vId+2}')
    r(f'v_lshl_add_u32 v{vXo}, v{vId+1}, 4, v{vId}')
    r(f'v_xor_b32 v{vXo+1}, 64, v{vXo}')
    r(f'v_and_b32 v{vId+1}, 31, v{vLane}')
    r(f'v_lshrrev_b32 v{vId+2}, 5, v{vLane}')
    r(f'v_lshlrev_b32 v{vId+2}, 2, v{vId+2}')
    r(f'v_sub_u32 v{vId+1}, v{vId+1}, v{vId+2}')
    r(f'v_mov_b32 v{vId+2}, 0x3f80')
    r(f'v_mov_b32 v{vId+3}, 0x3f800000')
    for t in range(2):
        for rho in range(4):
            c = 16 * t + 8 * (rho >> 1) + 2 * (rho & 1)
            d = ID8 + 4 * t + rho
            r(f'v_cmp_eq_u32 vcc, {c}, v{vId+1}')
            r(f'v_cmp_eq_u32 s[56:57], {c+1}, v{vId+1}')
            r(f'v_cndmask_b32 v{d}, 0, v{vId+2}, vcc')
            r(f'v_cndmask_b32 v{d}, v{d}, v{vId+3}, s[56:57]')
    r(f'v_and_b32 v{vId}, 31, v{vLane}')
    r(f'v_bfe_u32 v{vId+1}, v{vLane}, 1, 3')
    r(f'v_lshrrev_b32 v{vId+2}, 5, v{vLane}')
    r(f'v_lshlrev_b32 v{vId+2}, 2, v{vId+2}')
    r(f'v_xor_b32 v{vId+1}, v{vId+1}, v{vId+2}')
    r(f'v_lshlrev_b32 v{vId}, 7, v{vId}')
    r(f'v_lshl_add_u32 v{vId}, v{vId+1}, 4, v{vId}')
    r(f'v_add_u32 v{vId}, s{sDst}, v{vId}')
    for q in range(1, 4):
        r(f'v_xor_b32 v{vId+q}, {q*16}, v{vId}')
    r(f'v_add_u32 v{vD}, s{sDst}, v{vL16}')
    items = r.items()

    a(f's_mov_b32 m0, s{sDst}')
    nper = -(-len(items) // 9)
    for s_ in range(-16, 0):
        ph = s_ % 4
        c = (s_ + 2) // 4 + 3
        if s_ == -2:
            for it in items:
                a(it)
            items = []
            a(f's_waitcnt vmcnt({vm.need([("B", 0)])})')
            a('s_barrier')
            for t_ in range(2):
                for blk in range(4):
                    bread1(t_, blk)
        if ph == 3:
            aload(s_ + 15)
        if c >= 0:
            if ph == 2 and c > 0:
                dma_next(c)
            dma_q(c, (ph + 2) % 4)
        if ph != 2:
            aload(s_ + 16)
        if s_ >= -11:
            for it in items[:nper]:
                a(it)
            items = items[nper:]
    a(f's_mov_b32 s{sCnt}, 0')
    stamp(a, cfg, 2)
    stampv(a, cfg, 14, 0)
    inloop[0] = True
    waits = {}

    def w(key, n):
        waits.setdefault(key, []).append(n)
        return min(waits[key])

    def step1(s):
        e = s % 16
        ph = s % 4
        c = (s + 2) // 4 + 3
        for blk in range(4):
            if blk == 0:
                a(f's_waitcnt vmcnt({w((e, "A"), vm.need([("A", s)]))}) lgkmcnt(8)')
            d = vr(ACC + 16 * blk, 16)
            a(f'{M32} {d}, {vr(BF1+ph*16+blk*4,4)}, {vr(AR+4*e,4)}, {d}')
            if ph == 2:
                if blk == 0:
                    dma_next(c)
                    if e == 2:
                        dma_switch()
                if blk == 1:
                    a(f's_waitcnt vmcnt({w((e, "B"), vm.need([("B", (s+2)//4)]))}) lgkmcnt(0)')
                    a('s_barrier')
                    bread1(s + 2, 0)
                if blk == 2:
                    bread1(s + 2, 1)
                    bread1(s + 2, 2)
                if blk == 3:
                    bread1(s + 2, 3)
                    dma_q(c, 0)
            else:
                bread1(s + 2, blk)
                if blk == 1:
                    dma_q(c, (ph + 2) % 4)
                if blk == 0 and ph == 3:
                    aload(s + 15)
            if blk == 2 and e == 1:
                a(f'buffer_load_dword v{vFl}, v{vZ}, s[{sW}:{sW+3}], s{sFl} offen sc1')
                vm.issue(('F', s))
        if ph != 2:
            aload(s + 16)

    q0 = list(vm.q)
    sl_, sh_ = a.lines, a.hist
    a.lines = []
    for s_ in range(48):
        step1(s_)
    a.lines, a.hist = sl_, sh_
    vm.q = list(q0)
    a.raw('.p2align 6')
    a.label(f'{L}_loop1')
    for s_ in range(16):
        step1(s_)
    a(f's_add_u32 s{sCnt}, s{sCnt}, 1')
    if cfg.get('prof') == 3:
        a('s_mov_b32 s58, m0')
        a(f's_mov_b32 m0, s{sCnt}')
        stampv(a, cfg, 14, 'm0')
        a('s_mov_b32 m0, s58')
    a(f's_cmp_lg_u32 s{sCnt}, 6')
    a(f's_cbranch_scc1 {L}_l1next')
    a(f's_mov_b32 s{sAo}, s{sOb}')
    a(f's_waitcnt vmcnt({vm.need([("F", 1)])})')
    a('s_mov_b32 s55, 0')
    a.label(f'{L}_poll')
    a(f'v_readfirstlane_b32 s54, v{vFl}')
    a('s_cmp_ge_u32 s54, 32')
    a(f's_cbranch_scc1 {L}_l1next')
    a('s_add_u32 s55, s55, 1')
    a(f's_cmp_ge_u32 s55, {1 if cfg.get("k3_nohelp") else SPIN_MAX}')
    a(f's_cbranch_scc1 {L}_l1next')
    a('s_sleep 4')
    a(f'buffer_load_dword v{vFl}, v{vZ}, s[{sW}:{sW+3}], s{sFl} offen sc1')
    a('s_waitcnt vmcnt(0)')
    a(f's_branch {L}_poll')
    a.label(f'{L}_l1next')
    a(f's_cmp_lt_u32 s{sCnt}, 7')
    a(f's_cbranch_scc1 {L}_loop1')
    inloop[0] = False
    vm.q = [((('A2', t[1] - 16) if t[0] == 'A' else ('B', t[1] + 24) if t[0] == 'B' else t), wt) for (t, wt) in vm.q]

    def areg2(s):
        return AX + 4 * (s - 16) if 16 <= s < 32 else AR + 4 * (s % 16)

    dma_q(31, 2)
    dma_q(31, 3)
    a('s_waitcnt lgkmcnt(0)')
    for s_ in range(3):
        bread2(s_, 0)
        bread2(s_, 1)
    a('s_mov_b32 s54, 0xfffffffe')
    PB = ACC + 32
    NAX = cfg.get('k3_nax', 16)
    for i in range(16):
        if i < NAX:
            aload_to(areg2(16 + i), 16 + i, 'A2')
        a(f'v_cvt_pk_bf16_f32 v{PB+i}, v{PB+2*i}, v{PB+2*i+1}')
        a(f'v_min_u32 v{PB+i}, s54, v{PB+i}')
    for q in range(4):
        a(f's_add_u32 s55, s{sEo}, {q*0x100000}')
        a(f'buffer_store_dwordx4 {vr(PB+4*q,4)}, v{vL16}, s[{sW}:{sW+3}], s55 offen sc1')
        vm.issue(('P', q))
    stampv(a, cfg, 14, 8)

    def exload(q):
        a(f's_add_u32 s55, s{sEi}, {q*0x100000}')
        a(f'buffer_load_dwordx4 {vr(EXR+4*q,4)}, v{vL16}, s[{sW}:{sW+3}], s55 offen sc1')

    MID = cfg.get('k3_mid', 40)
    EL = cfg.get('k3_el', 24)
    XS = 0
    pend = list(range(16 + NAX, 32))

    def step2(s):
        bar = (s + 3) % 8 == 0
        c = 28 + (s + 3) // 8
        a(f's_waitcnt vmcnt({vm.need([("A2", s)])}) lgkmcnt(8)')
        for b in range(2):
            d = vr(ACC + 32 + 16 * b, 16)
            a(f'{M32} {d}, {vr(BF2+(s%4)*8+b*4,4)}, {vr(areg2(s),4)}, {d if s else 0}')
            if bar:
                if b == 0 and c + 3 < 36:
                    dma_next(c + 3)
                if b == 1:
                    a(f's_waitcnt vmcnt({vm.need([("B", c)])}) lgkmcnt(0)')
                    a('s_barrier')
                    bread2(s + 3, 0)
                    bread2(s + 3, 1)
            else:
                bread2(s + 3, b)
                u = (s + 3) % 8 - 1
                if b == 0 and 0 <= u < 4 and s >= 5 and c + 3 < 36:
                    dma_q(c + 3, u)
            if b == 0 and 38 <= s < 42:
                q = s - 38
                a(f's_add_u32 m0, s{sDst}, {XS*CH + q*1024}')
                a(f's_add_u32 s55, s{sXo}, {q*16384}')
                a(f'buffer_load_dwordx4 v{vXo+(q&1)}, s[{sX}:{sX+3}], s55 offen lds')
                vm.issue(('X', q))
        if s < 16:
            pend.append(s + 32)
        elif 32 <= s < 48:
            pend.append(s + 16)
        if pend:
            t = pend.pop(0)
            aload_to(areg2(t), t, 'A2')
        if EL <= s < EL + 4:
            exload(s - EL)
            vm.issue(('E', s - EL))

    assert EL >= 20 and MID >= 32
    for s_ in range(MID):
        step2(s_)
        if s_ % 8 == 7:
            stampv(a, cfg, 14, 32 + s_ // 8)
    stampv(a, cfg, 14, 9)
    a(f's_waitcnt vmcnt({vm.need([("E", 3)])})')
    a('s_mov_b32 s56, 0')
    a.label(f'{L}_chk')
    a(f'v_max3_u32 v{vFl}, v{EXR}, v{EXR+1}, v{EXR+2}')
    for i in range(3, 15, 2):
        a(f'v_max3_u32 v{vFl}, v{vFl}, v{EXR+i}, v{EXR+i+1}')
    a(f'v_max_u32 v{vFl}, v{vFl}, v{EXR+15}')
    a(f'v_cmp_eq_u32 vcc, -1, v{vFl}')
    a('s_nop 4')
    a(f's_cbranch_vccz {L}_got')
    a('s_add_u32 s56, s56, 1')
    a(f's_cmp_ge_u32 s56, {SPIN_MAX}')
    a(f's_cbranch_scc1 {L}_got')
    a('s_sleep 2')
    for q in range(4):
        exload(q)
    a('s_waitcnt vmcnt(0)')
    a(f's_branch {L}_chk')
    a.label(f'{L}_got')
    if cfg.get('prof') == 3:
        a('v_writelane_b32 v14, s56, 23')
    stampv(a, cfg, 14, 10)
    a(f's_mov_b32 s53, {LOG2E | 0x80000000}')
    a('s_mov_b32 s54, 0xffff0000')
    for t in range(2):
        for b in range(2):
            d = vr(ACC + 16 * b, 16)
            a(f'{M32} {d}, {vr(ID8+4*t,4)}, {vr(EXR+8*b+4*t,4)}, {d}')
    mid = []
    for i in range(32):
        mid.append(f'v_mul_f32 v{TMP+i}, s53, v{ACC+i}')
    for i in range(32):
        mid.append(f'v_exp_f32 v{TMP+i}, v{TMP+i}')
    for i in range(32):
        mid.append(f'v_add_f32 v{TMP+i}, 1.0, v{TMP+i}')
    for i in range(32):
        mid.append(f'v_rcp_f32 v{TMP+i}, v{TMP+i}')
    for i in range(32):
        mid.append(f'v_mul_f32 v{ACC+i}, v{ACC+i}, v{TMP+i}')
    per = -(-len(mid) // (2 * (60 - MID - 2)))
    stampv(a, cfg, 14, 11)
    for s_ in range(MID, 64):
        if s_ == MID + 2:
            a.sprinkle(['\n'.join(mid[i:i + per]) for i in range(0, len(mid), per)], 4)
        if s_ == 61:
            a.flush()
            a(f's_waitcnt vmcnt({vm.need([("X", 3)])})')
            for q in range(4):
                a(f'ds_read_b128 {vr(XP+4*q,4)}, v{vId+q} offset:{XS*CH}')
        if s_ >= 61:
            a(f's_waitcnt vmcnt({vm.need([("A2", s_)])}) lgkmcnt({4*(63-s_)+4})')
            for b in range(2):
                d = vr(ACC + 32 + 16 * b, 16)
                a(f'{M32} {d}, {vr(BF2+(s_%4)*8+b*4,4)}, {vr(areg2(s_),4)}, {d}')
        else:
            step2(s_)
    assert not pend
    a('s_waitcnt lgkmcnt(0)')
    for i in range(16):
        a(f'v_lshlrev_b32 v{TMP+2*i}, 16, v{XP+i}')
        a(f'v_and_b32 v{TMP+2*i+1}, s54, v{XP+i}')
    stamp(a, cfg, 3)
    stampv(a, cfg, 14, 12)
    S = ACC + 32
    for q in range(4):
        for i in range(8 * q, 8 * q + 8):
            a(f'v_fma_f32 v{S+i}, v{S+i}, v{ACC+i}, v{TMP+i}')
        for i in range(4 * q, 4 * q + 4):
            a(f'v_cvt_pk_bf16_f32 v{XP+i}, v{S+2*i}, v{S+2*i+1}')
        a(f'ds_write_b128 v{vId+q}, {vr(XP+4*q,4)} offset:{XS*CH}')
    a('s_waitcnt lgkmcnt(0)')
    for q in range(4):
        a(f'ds_read_b128 {vr(S+4*q,4)}, v{vD} offset:{XS*CH + q*1024}')
    for q in range(4):
        a(f's_add_u32 s55, s{sXo}, {q*16384}')
        a(f's_waitcnt lgkmcnt({3-q})')
        a(f'buffer_store_dwordx4 {vr(S+4*q,4)}, v{vXo+(q&1)}, s[{sO}:{sO+3}], s55 offen{POL[cfg.get("opol", 0)]}')
    if cfg.get('prof'):
        a('s_waitcnt vmcnt(0)')
    stamp(a, cfg, 4)
    stamp(a, cfg, 5)
    stampv(a, cfg, 14, 13)
    stampv_store(a, cfg, 14, 13)
    stamp_store(a, cfg, 3)
    a.label(f'{L}_end')
    a('s_endpgm')
    return L, kernel_desc(L, 256, 102, 256), (512, 256, K3_LDS)


def build(cfg):
    a = Asm()
    KVEVERY[0] = cfg.get('kvevery', 2)
    ks = [gen_k0(a, cfg), gen_k1(a, cfg), gen_k3(a, cfg)]
    out = HEADER
    for (lab, _, (g, b, lds)) in ks:
        out += f'; @launch kernel={lab} grid=({g},1,1) block=({b},1,1) lds={lds}\n'
    out += '.amdgcn_target "amdgcn-amd-amdhsa--gfx950"\n.text\n'
    out += a.text()
    out += '.section .rodata,"a"\n'
    for (_, desc, _) in ks:
        out += '.p2align 6\n' + desc
    return out


if __name__ == '__main__':
    cfg = {}
    outp = sys.argv[1] if len(sys.argv) > 1 else f'cdna_kernels/{NAME}.s'
    for kv in sys.argv[2:]:
        k, v = kv.split('=')
        cfg[k] = int(v)
    open(outp, 'w').write(build(cfg))
    print('wrote', outp)
```
